```python
import torch

def _softmax(x, axis=-1):
    return torch.softmax(x, dim=axis)

def _gelu(x):
    return torch.nn.functional.gelu(x, approximate='tanh')

def _silu(x):
    return torch.nn.functional.silu(x)

def _sigmoid(x):
    return torch.sigmoid(x)

def _layernorm(x, axis=-1, eps=1e-05):
    m = x.mean(dim=axis, keepdim=True)
    v = x.var(dim=axis, keepdim=True, unbiased=False)
    return (x - m) / torch.sqrt(v + eps)

def _scatter_add(tgt, idx, src, axis=0):
    return tgt.clone().index_add_(axis, idx, src)

def _segment_sum(src, seg, n):
    out = torch.zeros((n,) + src.shape[1:], dtype=src.dtype)
    return out.index_add_(0, seg, src)

def _pad(x, pw):
    flat = tuple((v for pair in reversed(pw) for v in pair))
    return torch.nn.functional.pad(x, flat)
kernel_name = 'adaLN_cond__sliding_block_cached__glu_gated_glu__decode'

def setup_inputs():

    _w = lambda a: (lambda t: t.to(torch.bfloat16) if t.is_floating_point() else t)(torch.as_tensor(a))

    def _A_setup():
        B, Sq, D = (4, 1, 512)
        Hq, Hkv, Sk, Dh = (32, 8, 8192, 128)
        assert Hq % Hkv == 0, (Hq, Hkv)
        return {'x': _w((lambda *s: torch.randn(*s, dtype=torch.bfloat16) * 0.05)(B, Sq, D)), 'k_cache': _w((lambda *s: torch.randn(*s, dtype=torch.bfloat16) * 3.2)(B, Hkv, Sk, Dh)), 'v_cache': _w((lambda *s: torch.randn(*s, dtype=torch.bfloat16) * 0.4)(B, Hkv, Sk, Dh)), 'wq': _w((lambda *s: torch.randn(*s, dtype=torch.bfloat16) * 3.2)(D, Hq * Dh) * D ** (-0.5)), 'wo': _w((lambda *s: torch.randn(*s, dtype=torch.bfloat16) * 0.4)(Hq * Dh, D) * (Hq * Dh) ** (-0.5))}
    _A_in = _A_setup()

    def _B_setup():
        B, S, D, F = (4, 1, 512, 1792)
        return {'x': _w((lambda *s: torch.randn(*s, dtype=torch.bfloat16) * 0.05)(B, S, D)), 'w_gate': _w((lambda *s: torch.randn(*s, dtype=torch.bfloat16) * 0.05)(D, F)), 'w_up': _w((lambda *s: torch.randn(*s, dtype=torch.bfloat16) * 0.05)(D, F)), 'w_down': _w((lambda *s: torch.randn(*s, dtype=torch.bfloat16) * 0.05)(F, D))}
    _B_in = _B_setup()
    return {'A_x': _A_in['x'], 'A_k_cache': _A_in['k_cache'], 'A_v_cache': _A_in['v_cache'], 'A_wq': _A_in['wq'], 'A_wo': _A_in['wo'], 'B_x': _B_in['x'], 'B_w_gate': _B_in['w_gate'], 'B_w_up': _B_in['w_up'], 'B_w_down': _B_in['w_down'], 'c': _w((lambda *s: torch.randn(*s, dtype=torch.bfloat16) * 0.1)(4, 512) * 8.0), 'w_mod': _w((lambda *s: torch.randn(*s, dtype=torch.bfloat16) * 0.1)(512, 6 * 512) * 512 ** (-0.5) * 8.0)}

def reference(A_x, A_k_cache, A_v_cache, A_wq, A_wo, B_x, B_w_gate, B_w_up, B_w_down, c, w_mod):

    def _A_ref(x, k_cache, v_cache, wq, wo):
        B, Sq, D = x.shape
        Hq, Dh = (32, 128)
        Hkv, Sk = (k_cache.shape[1], k_cache.shape[2])
        W = min(4096, max(256, Sk // 4))
        rep = Hq // Hkv
        q = (lambda x, *d: x.permute(*d))((x @ wq).reshape(B, Sq, Hq, Dh), 0, 2, 1, 3)
        k = (lambda x, n, axis: torch.repeat_interleave(x, n, dim=axis))(k_cache[:, :, Sk - W:, :], rep, axis=1)
        v = (lambda x, n, axis: torch.repeat_interleave(x, n, dim=axis))(v_cache[:, :, Sk - W:, :], rep, axis=1)
        scores = torch.einsum('bhqd,bhkd->bhqk', q, k) * Dh ** (-0.5)
        p = _softmax(scores, axis=-1)
        o = torch.einsum('bhqk,bhkd->bhqd', p, v)
        return (lambda x, *d: x.permute(*d))(o, 0, 2, 1, 3).reshape(B, Sq, Hq * Dh) @ wo

    def _B_ref(x, w_gate, w_up, w_down):
        g = torch.einsum('bsd,df->bsf', x, w_gate)
        u = torch.einsum('bsd,df->bsf', x, w_up)
        h = _sigmoid(g) * u
        return torch.einsum('bsf,fd->bsd', h, w_down)
    x = A_x
    mod = (_silu(c) @ w_mod).reshape(c.shape[0], 6, 1, -1)
    sa, ca, ga, sb, cb, gb = (mod[:, 0].clone(), mod[:, 1].clone(), mod[:, 2].clone(), mod[:, 3].clone(), mod[:, 4].clone(), mod[:, 5].clone())
    h = _layernorm(x, axis=-1) * (1 + ca) + sa
    x = x + ga * _A_ref(h, A_k_cache, A_v_cache, A_wq, A_wo)
    h = _layernorm(x, axis=-1) * (1 + cb) + sb
    x = x + gb * _B_ref(h, B_w_gate, B_w_up, B_w_down)
    return x
```

```python
NAME = "adaLN_cond__sliding_block_cached__glu_gated_glu__decode"

HEADER_COMMENT = """; Kernarg layout for this problem (112 bytes, ptrs only, base s[0:1]):
"""

KOFF = dict(x=0, k=8, v=16, wq=24, wo=32, bx=40, wg=48, wu=56, wd=64, c=72, wmod=80, out=88, dbg=96, ws=104)
KSIZE = dict(x=4096, k=67108864, v=67108864, wq=4194304, wo=4194304, bx=4096, wg=1835008, wu=1835008,
             wd=1835008, c=4096, wmod=3145728, out=4096, dbg=256, ws=268435456)


class Asm:
    def __init__(self):
        self.lines = []
        self.nlabel = 0

    def __call__(self, s=""):
        for ln in s.split("\n"):
            ln = ln.strip()
            if ln == "":
                continue
            if ln.endswith(":") or ln.startswith("."):
                self.lines.append(ln)
            else:
                self.lines.append("    " + ln)

    def label(self, base="L"):
        self.nlabel += 1
        return "%s_%d" % (base, self.nlabel)

    def text(self):
        return "\n".join(self.lines) + "\n"


def kernel_file(body, grid, block, lds, vgpr, sgpr=102, accum=None, name=None):
    name = name or NAME + "_kernel"
    if accum is None:
        accum = min(256, (vgpr + 3) // 4 * 4)
    s = HEADER_COMMENT
    s += "; @launch grid=(%d,1,1) block=(%d,1,1) lds=%d\n" % (grid, block, lds)
    s += '.amdgcn_target "amdgcn-amd-amdhsa--gfx950"\n.text\n.globl %s\n.p2align 8\n.type %s,@function\n%s:\n' % (name, name, name)
    s += body
    s += '.section .rodata,"a"\n.p2align 6\n.amdhsa_kernel %s\n' % name
    s += "  .amdhsa_next_free_vgpr %d\n  .amdhsa_next_free_sgpr %d\n  .amdhsa_accum_offset %d\n" % (vgpr, sgpr, accum)
    s += "  .amdhsa_group_segment_fixed_size 0\n  .amdhsa_kernarg_size 112\n  .amdhsa_user_sgpr_count 2\n"
    s += "  .amdhsa_user_sgpr_kernarg_segment_ptr 1\n  .amdhsa_system_sgpr_workgroup_id_x 1\n"
    s += "  .amdhsa_float_denorm_mode_32 3\n"
    s += ".end_amdhsa_kernel\n"
    return s


def srd(a, d, base, size):
    a("s_mov_b32 s%d, s%d" % (d, base))
    a("s_and_b32 s%d, s%d, 0xffff" % (d + 1, base + 1))
    a("s_mov_b32 s%d, %d" % (d + 2, size))
    a("s_mov_b32 s%d, 0x00020000" % (d + 3))
```

```python
import re

TRANS = ("v_exp_f32", "v_log_f32", "v_rcp_f32", "v_rsq_f32", "v_sqrt_f32", "v_sin_f32", "v_cos_f32")


def regs_of(tok):
    tok = tok.strip()
    tok = tok.lstrip("-")
    if tok.startswith("abs(") or tok.startswith("|"):
        tok = tok.replace("abs(", "").replace(")", "").replace("|", "")
    m = re.fullmatch(r"([vsa])\[(\d+):(\d+)\]", tok)
    if m:
        return {(m.group(1), i) for i in range(int(m.group(2)), int(m.group(3)) + 1)}
    m = re.fullmatch(r"([vsa])(\d+)", tok)
    if m:
        return {(m.group(1), int(m.group(2)))}
    if tok == "vcc":
        return {("s", "vcc_lo"), ("s", "vcc_hi")}
    if tok in ("vcc_lo", "vcc_hi", "m0", "exec_lo", "exec_hi"):
        return {("s", tok)}
    if tok == "exec":
        return {("s", "exec_lo"), ("s", "exec_hi")}
    return set()


class Ins:
    def __init__(self, text):
        self.text = text
        t = text.split(";")[0].strip()
        self.op = t.split()[0]
        rest = t[len(self.op):].strip()
        parts = []
        depth = 0
        cur = ""
        for ch in rest:
            if ch == "[" or ch == "(":
                depth += 1
            if ch == "]" or ch == ")":
                depth -= 1
            if ch == "," and depth == 0:
                parts.append(cur.strip())
                cur = ""
            else:
                cur += ch
        if cur.strip():
            parts.append(cur.strip())
        self.mods = ""
        if parts:
            last = parts[-1].split(None, 1)
            parts[-1] = last[0]
            self.mods = last[1] if len(last) > 1 else ""
        self.ops = parts
        op = self.op
        self.is_mfma = op.startswith("v_mfma")
        self.is_valu = op.startswith("v_") and not self.is_mfma
        self.is_ds = op.startswith("ds_")
        self.is_vmem = op.startswith("buffer_") or op.startswith("global_")
        self.is_salu = op.startswith("s_")
        self.is_dpp = "_dpp" in op
        self.is_trans = any(op.startswith(x) for x in TRANS)
        self.is_perm = op.startswith("v_permlane")
        self.is_rdlane = op.startswith("v_readlane") or op.startswith("v_readfirstlane")
        self.is_dot = op.startswith("v_dot")
        self.states = 1
        if op == "s_nop":
            self.states = int(self.ops[0], 0) + 1
        R = [regs_of(x) for x in self.ops]
        self.w = set()
        self.r = set()
        self.mA = self.mB = self.mC = set()
        self.store_data = set()
        self.lds_dma = False
        if self.is_mfma:
            self.w = R[0]
            self.mA, self.mB, self.mC = R[1], R[2], R[3]
            self.r = R[1] | R[2] | R[3]
            self.passes = 8 if "32x32" in op else (2 if "4x4" in op else 4)
        elif self.is_valu:
            self.w = set(R[0])
            self.r = set().union(*R[1:]) if len(R) > 1 else set()
            if self.is_perm:
                self.w = R[0] | R[1]
                self.r = R[0] | R[1]
            if op.startswith("v_fmac") or op.startswith("v_dot2c") or op.startswith("v_writelane") or self.is_dpp:
                self.r |= R[0]
            if "_co_" in op:
                self.w |= R[1]
        elif self.is_ds:
            if op.startswith("ds_read") or op.startswith("ds_bpermute") or op.startswith("ds_swizzle"):
                self.w = R[0]
                self.r = set().union(*R[1:])
            else:
                self.r = set().union(*R)
        elif self.is_vmem:
            lds = re.search(r"\blds\b", self.mods) is not None
            if "load" in op and not lds:
                self.w = R[0]
                self.r = set().union(*R[1:])
            else:
                self.r = set().union(*R) if R else set()
                if lds:
                    self.lds_dma = True
                    self.r |= {("s", "m0")}
                if "store" in op and ("x4" in op or "x3" in op):
                    self.store_data = R[0] if op.startswith("buffer_") else R[1]
        elif self.is_salu:
            if op.startswith("s_cmp") or op.startswith("s_cbranch") or op in ("s_nop", "s_waitcnt", "s_barrier", "s_branch", "s_endpgm", "s_setprio", "s_sleep") or op.startswith("s_bitcmp"):
                self.r = set().union(*R) if R else set()
            else:
                self.w = R[0] if R else set()
                self.r = set().union(*R[1:]) if len(R) > 1 else set()
                if "saveexec" in op:
                    self.w = self.w | regs_of("exec")


def vg(s):
    return {x for x in s if x[0] in "va"}


def sg(s):
    return {x for x in s if x[0] == "s"}


def required(p, c):
    n = 0
    if p.is_valu:
        pv = vg(p.w)
        ps = sg(p.w)
        if c.is_mfma and pv & c.r:
            n = max(n, 2)
        if c.is_dpp and pv & c.r:
            n = max(n, 2)
        if c.is_perm and pv & c.r:
            n = max(n, 2)
        if c.is_rdlane and pv & c.r:
            n = max(n, 1)
        if p.is_trans and (c.is_valu or c.is_mfma) and not c.is_trans and pv & c.r:
            n = max(n, 1)
        if p.is_trans and c.is_trans and pv & c.r:
            n = max(n, 1)
        if ps and c.is_valu and ps & c.r:
            n = max(n, 4 if (c.op.startswith("v_readlane") or c.op.startswith("v_writelane")) else 2)
        if ps and c.is_vmem and ps & c.r:
            n = max(n, 5)
        if ps and c.is_salu and ps & c.r:
            n = max(n, 1)
        if p.is_dot and pv & (c.r | c.w) and (c.is_valu or c.is_mfma or c.is_vmem or c.is_ds):
            n = max(n, 3)
        if "sdwa" in p.op and c.is_valu and pv & (c.r | c.w):
            n = max(n, 1)
    if p.is_mfma:
        P = p.passes
        full = {2: 5, 4: 8, 8: 12}[P]
        part = {2: 4, 4: 6, 8: 10}[P]
        if c.is_mfma:
            if p.w & (c.mA | c.mB):
                n = max(n, full)
            if p.w & c.mC:
                if p.w == c.mC and c.passes == P:
                    n = max(n, 2 if P == 2 else 0)
                else:
                    n = max(n, part)
            elif p.w & c.w:
                n = max(n, full)
        elif (c.is_valu or c.is_vmem or c.is_ds) and p.w & (c.r | c.w):
            n = max(n, full)
        if c.is_valu and p.mC & c.w:
            n = max(n, {2: 1, 4: 3, 8: 7}[P])
    if p.is_salu and ("s", "m0") in p.w and (c.lds_dma or c.op.startswith("v_writelane")):
        n = max(n, 1)
    if p.store_data and p.store_data & c.w:
        n = max(n, 2)
    return n


def fix(lines, maxd=12):
    items = []
    for ln in lines:
        s = ln.strip()
        if s.endswith(":") or s.startswith(".") or s.startswith(";"):
            items.append(s)
        else:
            items.append(Ins(s))
    changed = True
    total = 0
    while changed:
        changed = False
        idx = [i for i, it in enumerate(items) if isinstance(it, Ins)]
        pos = {i: k for k, i in enumerate(idx)}
        lab = {}
        for i, it in enumerate(items):
            if isinstance(it, str) and it.endswith(":"):
                j = i + 1
                while j < len(items) and not isinstance(items[j], Ins):
                    j += 1
                lab[it[:-1]] = j
        preds = {i: [] for i in idx}
        for k, i in enumerate(idx):
            it = items[i]
            if it.op not in ("s_branch", "s_endpgm") and k + 1 < len(idx):
                preds[idx[k + 1]].append(i)
            if it.op == "s_branch" or it.op.startswith("s_cbranch"):
                t = lab[it.ops[0]]
                if t in preds:
                    preds[t].append(i)
        for i in idx:
            c = items[i]
            need = 0
            stack = [(p, 0) for p in preds[i]]
            seen = {}
            while stack:
                p, d = stack.pop()
                if d >= maxd or seen.get(p, 99) <= d:
                    continue
                seen[p] = d
                need = max(need, required(items[p], c) - d)
                for q in preds[p]:
                    stack.append((q, d + items[p].states))
            if need > 0:
                items.insert(i, Ins("s_nop %d" % (need - 1)))
                total += need
                changed = True
                break
    out = []
    for it in items:
        out.append(it if isinstance(it, str) else "    " + it.text)
    return out, total
```

```python
import sys
from asmlib import *
import hazard

WS_H, WS_M2, WS_ST, WS_C, WS_Q, WS_B, WS_A = 0x0, 0x1000, 0x5000, 0x7000, 0xB000, 0x13000, 0x20000
WS_STAMP = 0x100000
L_V = 0
L_WQ = 65536
L_M = 81920
L_T1 = 65536
L_T2 = 98304
L_MISC = 131072
L_Q = L_MISC
L_SC = L_MISC + 1024
L_N = L_SC + 4096
L_H2 = L_SC
L_P = L_N + 4096
L_RED = L_P + 2048
L_RED2 = L_RED + 2048
L_MAX = L_RED2 + 1024
L_SUM = L_MAX + 64
LDS_BYTES = L_MISC + 16384
assert L_SUM + 64 <= LDS_BYTES

LOG2E = 0x3FB8AA3B
NLOG2E = 0xBFB8AA3B
SCALE = 0x3DB504F3
EPS = 0x3727C5AC
SPIN_MAX = 0x10000

S_G, S_I, S_B, S_S, S_W = "s4", "s5", "s6", "s7", "s3"
P_X, P_WQ, P_WO, P_WG, P_WU = 8, 14, 16, 20, 22
P_WD, P_C, P_WMOD, P_OUT, P_DBG, P_WS = 24, 26, 28, 30, 32, 34
R_WS, R_K, R_V, R_TA, R_TB, R_WD, R_X, R_C, R_OUT, R_DBG = 36, 40, 44, 48, 52, 56, 60, 64, 68, 72
R_WQ, R_WMOD = 48, 52
STAMP0 = 84


def q4(n):
    return "s[%d:%d]" % (n, n + 3)


def vr(n, k=4):
    return "v[%d:%d]" % (n, n + k - 1)


class Gen:
    def __init__(self, stamps=False, win=6, st_local="sc1", nt="nt", mg_h=1, mg_o=0):
        self.a = Asm()
        self.stamps = stamps
        self.win = win
        self.st_local = st_local
        self.nt = nt
        self.mg_h = mg_h
        self.mg_o = mg_o

    def stamp(self, k):
        if self.stamps:
            a = self.a
            a("s_memrealtime s[100:101]")
            a("s_waitcnt lgkmcnt(0)")
            a("s_mov_b32 s%d, s100" % (STAMP0 + k))

    def finish(self):
        a = self.a
        if self.stamps:
            a("s_branch L_stamps")
        else:
            a("s_endpgm")

    def mksrd(self, d, p, size):
        a = self.a
        a("s_mov_b64 s[%d:%d], s[%d:%d]" % (d, d + 1, p, p + 1))
        a("s_mov_b32 s%d, %d" % (d + 2, size))
        a("s_mov_b32 s%d, 0x00020000" % (d + 3))

    def spin_tail(self, lab, cnt):
        a = self.a
        a("s_add_u32 %s, %s, 1" % (cnt, cnt))
        a("s_cmp_lt_u32 %s, %d" % (cnt, SPIN_MAX))
        a("s_cbranch_scc1 %s" % lab)

    def allreduce(self, op, regs, tmp, rors=(1, 2, 4, 8)):
        a = self.a
        for r in rors:
            for x in regs:
                a("%s_dpp v%d, v%d, v%d row_ror:%d row_mask:0xf bank_mask:0xf" % (op, x, x, x, r))
        for sw in ("v_permlane16_swap_b32", "v_permlane32_swap_b32"):
            for x, t in zip(regs, tmp):
                a("v_mov_b32 v%d, v%d" % (t, x))
            for x, t in zip(regs, tmp):
                a("%s v%d, v%d" % (sw, x, t))
            for x, t in zip(regs, tmp):
                a("%s v%d, v%d, v%d" % (op, x, x, t))

    def unpack(self, dst, src, n, mask):
        a = self.a
        for j in range(n):
            a("v_lshlrev_b32 v%d, 16, v%d" % (dst + 2 * j, src + j))
            a("v_and_b32 v%d, %s, v%d" % (dst + 2 * j + 1, mask, src + j))

    def pack(self, dst, src, n):
        a = self.a
        for j in range(n):
            a("v_cvt_pk_bf16_f32 v%d, v%d, v%d" % (dst + j, src + 2 * j, src + 2 * j + 1))

    def rnd(self, x, n, tmp, mask):
        self.pack(tmp, x, n)
        self.unpack(x, tmp, n, mask)

    def sigma_voff(self, dst, rowb, t1, t2):
        a = self.a
        a("v_bfe_u32 v%d, v0, 3, 2" % t1)
        a("v_lshlrev_b32 v%d, 3, v%d" % (t1, t1))
        a("v_bfe_u32 v%d, v0, 1, 2" % t2)
        a("v_add_u32 v%d, v%d, v%d" % (t1, t1, t2))
        a("v_lshrrev_b32 v%d, 5, v0" % t2)
        a("v_lshl_add_u32 v%d, v%d, 2, v%d" % (t1, t2, t1))
        a("v_mul_u32_u24 v%d, %d, v%d" % (t1, rowb, t1))
        a("v_and_b32 v%d, 1, v0" % t2)
        a("v_lshl_add_u32 v%d, v%d, 4, v%d" % (dst, t2, t1))

    def prologue(self):
        a = self.a
        if self.stamps:
            a("s_memrealtime s[100:101]")
        a("s_load_dwordx2 s[%d:%d], s[0:1], 8" % (R_K, R_K + 1))
        a("s_load_dwordx2 s[%d:%d], s[0:1], 16" % (R_V, R_V + 1))
        a("s_load_dwordx16 s[8:23], s[0:1], 0")
        a("s_load_dwordx8 s[24:31], s[0:1], 64")
        a("s_load_dwordx4 s[32:35], s[0:1], 96")
        a("s_cmp_ge_u32 s2, 256")
        a("s_cbranch_scc1 L_exit")
        a("v_lshrrev_b32 v1, 6, v0")
        a("v_and_b32 v0, 63, v0")
        a("v_readfirstlane_b32 %s, v1" % S_W)
        a("s_and_b32 %s, s2, 7" % S_G)
        a("s_lshr_b32 %s, s2, 3" % S_I)
        a("s_lshr_b32 %s, s2, 6" % S_B)
        a("s_and_b32 %s, %s, 7" % (S_S, S_I))
        a("s_mov_b32 s%d, %d" % (R_K + 2, KSIZE['k']))
        a("s_mov_b32 s%d, 0x00020000" % (R_K + 3))
        a("s_mov_b32 s%d, %d" % (R_V + 2, KSIZE['v']))
        a("s_mov_b32 s%d, 0x00020000" % (R_V + 3))
        a("s_mov_b32 s83, 0xffff0000")
        if self.stamps:
            for k in range(1, 16):
                a("s_mov_b32 s%d, 0" % (STAMP0 + k))
        a("s_cmp_eq_u32 %s, 4" % S_W)
        a("s_cbranch_scc1 L_front")

    def main_wave(self):
        a = self.a
        W = self.win
        MASK = "s83"
        a("s_lshl_b32 s76, %s, 3" % S_B)
        a("s_add_u32 s76, s76, %s" % S_G)
        a("s_lshl_b32 s76, s76, 21")
        a("s_lshl_b32 s77, %s, 2" % S_S)
        a("s_add_u32 s77, s77, %s" % S_W)
        a("s_lshl_b32 s77, s77, 12")
        a("s_add_u32 s76, s76, s77")
        a("s_add_u32 s76, s76, %d" % (6144 * 256))
        a("v_bfe_u32 v1, v0, 2, 2")
        a("v_lshlrev_b32 v1, 10, v1")
        a("v_lshrrev_b32 v3, 4, v0")
        a("v_lshl_add_u32 v1, v3, 6, v1")
        a("v_and_b32 v4, 3, v0")
        a("v_lshl_add_u32 v2, v4, 4, v1")
        a("v_and_b32 v7, 15, v0")
        a("v_lshlrev_b32 v1, 1, v3")
        a("v_xor_b32 v1, v1, v7")
        a("v_lshlrev_b32 v1, 4, v1")
        a("v_lshl_add_u32 v5, v3, 8, v1")
        a("v_xor_b32 v6, 0x80, v5")
        a("v_lshlrev_b32 v8, 4, v0")
        a("s_waitcnt lgkmcnt(0)")
        if self.stamps:
            a("s_mov_b32 s%d, s100" % STAMP0)
        self.mksrd(R_WS, P_WS, KSIZE['ws'])
        self.mksrd(R_X, P_X, KSIZE['x'])
        a("s_cmp_eq_u32 %s, %d" % (S_G, self.mg_h))
        a("s_cbranch_scc1 L_mprep")
        a("s_cmp_eq_u32 %s, %d" % (S_G, self.mg_o))
        a("s_cbranch_scc1 L_mprep")
        a("L_stream:")
        n_out = 0
        for e in range(16):
            rho, j = e >> 2, e & 3
            if j == 0 and rho > 0:
                a("s_add_u32 s64, s76, %d" % (rho * 131072))
            a("buffer_load_dwordx4 %s, v2, %s, %s offen offset:%d %s" % (vr(64 + 4 * e), q4(R_K), "s76" if rho == 0 else "s64", j * 256, self.nt))
            n_out += 1
            if e == W - 1:
                self.main_setup()
            if n_out >= W:
                a("s_waitcnt vmcnt(%d)" % (W - 1))
        self.stamp(1)
        a("s_lshl_b32 s78, %s, 12" % S_W)
        for e in range(16):
            step, j = e >> 2, e & 3
            if j == 0:
                a("s_add_u32 m0, s78, %d" % (L_V + step * 16384))
                a("s_add_u32 s77, s76, %d" % (step * 131072))
            a("buffer_load_dwordx4 v%d, %s, s77 offen offset:%d %s lds" % (5 + (j & 1), q4(R_V), j * 1024, self.nt))
            a("s_waitcnt vmcnt(%d)" % (W - 1))
        self.stamp(2)
        a("s_barrier")
        self.stamp(3)
        a("ds_read_b128 %s, v9" % vr(32))
        a("s_cmp_ge_u32 %s, 16" % S_I)
        a("s_cbranch_scc1 L_t1_g")
        NT1 = 4
        a("s_mov_b32 m0, s80")
        for e in range(4):
            a("s_add_u32 s77, s79, %d" % (e * (16384 - 1024)))
            a("buffer_load_dwordx4 v10, %s, s77 offen offset:%d %s lds" % (q4(R_TA), e * 1024, self.nt))
        a("s_branch L_t1_done")
        a("L_t1_g:")
        a("s_mov_b32 m0, s80")
        a("s_add_u32 s77, s80, 16384")
        a("buffer_load_dwordx4 v10, %s, s79 offen %s lds" % (q4(R_TA), self.nt))
        a("s_mov_b32 m0, s77")
        a("s_lshl_b32 s77, %s, 10" % S_W)
        a("buffer_load_dwordx4 v11, %s, s79 offen %s lds" % (q4(R_TB), self.nt))
        a("buffer_load_dwordx2 %s, v12, %s, s77 offen" % (vr(24, 2), q4(R_X)))
        a("buffer_load_dwordx2 %s, v12, %s, s77 offen offset:512" % (vr(26, 2), q4(R_X)))
        a("L_t1_done:")
        a("s_waitcnt lgkmcnt(0)")
        for e in range(16):
            a("v_mfma_f32_16x16x32_bf16 %s, %s, %s, 0" % (vr(128 + 4 * e), vr(64 + 4 * e), vr(32)))
        for rho in range(4):
            subs = [x for x in range(4) if x != rho]
            for k, sub in enumerate(subs):
                for rp in range(4):
                    D = 128 + 4 * (4 * rho + rp)
                    src1 = D + rho if k == 0 else 36 + rp
                    a("v_add_f32_dpp v%d, v%d, v%d row_ror:%d row_mask:0xf bank_mask:0x%x" % (36 + rp, D + sub, src1, (4 * (rho - sub)) & 15, 1 << rho))
        self.rnd(36, 2, 40, MASK)
        for r in range(4):
            a("v_mul_f32 v%d, 0x%x, v%d" % (36 + r, SCALE, 36 + r))
        self.rnd(36, 2, 40, MASK)
        a("v_max3_f32 v42, v36, v37, v38")
        a("v_max_f32 v42, v42, v39")
        self.allreduce("v_max_f32", [42], [43], rors=(4, 8))
        a("ds_write_b32 v13, v42 offset:%d" % (L_MAX - L_MISC))
        a("s_waitcnt lgkmcnt(0)")
        a("s_barrier")
        a("ds_read_b128 %s, v14 offset:%d" % (vr(44), L_MAX - L_MISC))
        a("s_waitcnt lgkmcnt(0)")
        a("v_max3_f32 v42, v44, v45, v46")
        a("v_max_f32 v42, v42, v47")
        for r in range(4):
            a("v_sub_f32 v%d, v%d, v42" % (36 + r, 36 + r))
        for r in range(4):
            a("v_mul_f32 v%d, 0x%x, v%d" % (36 + r, LOG2E, 36 + r))
        for r in range(4):
            a("v_exp_f32 v%d, v%d" % (36 + r, 36 + r))
        self.pack(40, 36, 2)
        a("ds_write_b64 v15, %s" % vr(40, 2))
        a("v_add_f32 v36, v36, v37")
        a("v_add_f32 v38, v38, v39")
        a("v_add_f32 v36, v36, v38")
        self.allreduce("v_add_f32", [36], [37], rors=(4, 8))
        a("ds_write_b32 v13, v36 offset:%d" % (L_SUM - L_MISC))
        a("s_waitcnt vmcnt(%d) lgkmcnt(0)" % (4 + NT1))
        a("s_barrier")
        self.stamp(4)
        a("ds_read_b128 %s, v14 offset:%d" % (vr(44), L_SUM - L_MISC))
        for kg in range(8):
            a("ds_read_b128 %s, v16 offset:%d" % (vr(64 + 4 * kg), kg * 256))

        def vreads(kg):
            step, u = kg >> 1, kg & 1
            T0 = step * 4 + 2 * u
            for d in range(2):
                base = 128 + 8 * kg + 4 * d
                a("ds_read_b64_tr_b16 %s, v%d offset:%d" % (vr(base, 2), 17 + d, T0 * 4096))
                a("ds_read_b64_tr_b16 %s, v%d offset:%d" % (vr(base + 2, 2), 17 + d, (T0 + 1) * 4096))

        def vmfma(kg):
            for d in range(2):
                a("v_mfma_f32_16x16x32_bf16 %s, %s, %s, %s" % (vr(48 + 4 * d), vr(128 + 8 * kg + 4 * d), vr(64 + 4 * kg), "0" if kg == 0 else vr(48 + 4 * d)))
        a("s_waitcnt lgkmcnt(8)")
        a("v_add_f32 v44, v44, v45")
        a("v_add_f32 v46, v46, v47")
        a("v_add_f32 v43, v44, v46")
        a("s_lshl_b64 exec, 1, %s" % S_W)
        a("buffer_store_dwordx2 %s, v19, %s, s81 offen %s" % (vr(42, 2), q4(R_WS), self.st_local))
        a("s_mov_b64 exec, -1")
        a("s_waitcnt lgkmcnt(0)")
        for kg in range(3):
            vreads(kg)
        a("s_waitcnt lgkmcnt(0)")
        for kg in range(3, 6):
            vreads(kg)
        for kg in range(3):
            vmfma(kg)
        a("s_waitcnt lgkmcnt(0)")
        for kg in range(3, 6):
            vmfma(kg)
        a("s_waitcnt vmcnt(%d)" % (NT1 + 1))
        a("s_barrier")
        self.stamp(5)
        vreads(6)
        vreads(7)
        a("s_waitcnt lgkmcnt(4)")
        vmfma(6)
        a("s_waitcnt lgkmcnt(0)")
        vmfma(7)
        a("s_mov_b32 exec_lo, 0x000f000f")
        a("s_mov_b32 exec_hi, 0x000f000f")
        self.pack(56, 48, 4)
        a("buffer_store_dwordx4 %s, v20, %s, s82 offen %s" % (vr(56), q4(R_WS), self.st_local))
        a("s_mov_b64 exec, -1")
        self.stamp(6)
        a("s_cmp_ge_u32 %s, 16" % S_I)
        a("s_cbranch_scc1 L_role_g")
        self.role_w()
        self.role_g()
        self.mprep()

    def main_setup(self):
        a = self.a
        a("v_bfe_u32 v1, v0, 2, 2")
        a("v_lshlrev_b32 v9, 8, v4")
        a("v_lshl_add_u32 v9, v3, 6, v9")
        a("v_lshl_add_u32 v9, v1, 4, v9")
        a("v_add_u32 v9, %d, v9" % L_Q)
        a("v_lshlrev_b32 v14, 4, v4")
        a("v_add_u32 v14, %d, v14" % L_MISC)
        a("s_lshl_b32 s77, %s, 2" % S_W)
        a("v_add_u32 v13, s77, v14")
        a("v_lshl_add_u32 v16, v3, 6, v14")
        a("v_add_u32 v16, %d, v16" % (L_P - L_MISC))
        a("v_lshl_add_u32 v15, v1, 9, v16")
        a("s_lshr_b32 s77, %s, 1" % S_W)
        a("s_lshl_b32 s77, s77, 8")
        a("s_and_b32 s78, %s, 1" % S_W)
        a("s_lshl_b32 s78, s78, 3")
        a("s_add_u32 s77, s77, s78")
        a("v_add_u32 v15, s77, v15")
        a("v_lshrrev_b32 v17, 2, v0")
        a("v_and_b32 v18, 7, v17")
        a("s_lshl_b32 s77, %s, 1" % S_W)
        a("v_xor_b32 v18, s77, v18")
        a("v_lshlrev_b32 v18, 5, v18")
        a("v_lshl_add_u32 v17, v17, 8, v18")
        a("v_lshl_add_u32 v17, v4, 3, v17")
        a("v_xor_b32 v18, 32, v17")
        a("v_lshlrev_b32 v19, 8, v4")
        a("s_lshl_b32 s81, %s, 10" % S_G)
        a("s_lshl_b32 s77, %s, 3" % S_I)
        a("s_add_u32 s81, s81, s77")
        a("s_add_u32 s81, s81, %d" % WS_ST)
        a("v_lshlrev_b32 v20, 13, v4")
        a("v_lshl_add_u32 v20, v3, 8, v20")
        self.a_slot("s82", "s77")
        a("s_lshl_b32 s77, %s, 11" % S_W)
        a("s_add_u32 s82, s82, s77")
        a("s_cmp_ge_u32 %s, 16" % S_I)
        a("s_cbranch_scc1 L_su_g")
        self.mksrd(R_TA, P_WO, KSIZE['wo'])
        self.mksrd(R_TB, P_WD, KSIZE['wd'])
        a("v_and_b32 v1, 1, v3")
        a("v_lshlrev_b32 v1, 1, v1")
        a("v_xor_b32 v1, v1, v4")
        a("v_lshrrev_b32 v10, 2, v0")
        a("v_lshlrev_b32 v10, 10, v10")
        a("v_lshl_add_u32 v10, v1, 4, v10")
        a("s_and_b32 s77, %s, 1" % S_I)
        a("s_lshl_b32 s78, %s, 1" % S_W)
        a("s_add_u32 s77, s77, s78")
        a("s_lshl_b32 s80, s77, 12")
        a("s_add_u32 s80, s80, %d" % L_T1)
        a("s_lshl_b32 s78, %s, 3" % S_G)
        a("s_add_u32 s77, s77, s78")
        a("s_lshl_b32 s79, s77, 16")
        a("s_lshl_b32 s77, %s, 6" % S_I)
        a("s_add_u32 s79, s79, s77")
        a("v_mov_b32 v11, 0")
        a("v_mov_b32 v12, 0")
        a("s_branch L_su_done")
        a("L_su_g:")
        self.mksrd(R_TA, P_WG, KSIZE['wg'])
        self.mksrd(R_TB, P_WU, KSIZE['wu'])
        a("s_cmp_eq_u32 %s, 7" % S_G)
        a("s_cselect_b32 s%d, 0, %d" % (R_TA + 2, KSIZE['wg']))
        a("s_cselect_b32 s%d, 0, %d" % (R_TB + 2, KSIZE['wu']))
        self.sigma_voff(10, 3584, 1, 11)
        a("v_xor_b32 v11, 16, v10")
        a("s_and_b32 s77, %s, 3" % S_I)
        a("s_lshl_b32 s77, s77, 2")
        a("s_add_u32 s77, s77, %s" % S_W)
        a("s_lshl_b32 s80, s77, 10")
        a("s_add_u32 s80, s80, %d" % L_T1)
        a("s_mul_i32 s79, s77, %d" % (32 * 3584))
        a("s_lshl_b32 s77, %s, 4" % S_G)
        a("s_add_u32 s77, s77, %s" % S_I)
        a("s_sub_u32 s77, s77, 16")
        a("s_lshl_b32 s77, s77, 5")
        a("s_add_u32 s79, s79, s77")
        a("v_lshrrev_b32 v1, 1, v3")
        a("v_lshl_add_u32 v1, v1, 4, v7")
        a("v_lshlrev_b32 v1, 4, v1")
        a("v_and_b32 v12, 1, v3")
        a("v_lshl_add_u32 v12, v12, 3, v1")
        a("L_su_done:")

    def a_slot(self, d, t):
        a = self.a
        a("s_lshl_b32 %s, %s, 15" % (d, S_G))
        a("s_lshr_b32 %s, %s, 2" % (t, S_S))
        a("s_lshl_b32 %s, %s, 10" % (t, t))
        a("s_add_u32 %s, %s, %s" % (d, d, t))
        a("s_lshl_b32 %s, %s, 6" % (t, S_B))
        a("s_add_u32 %s, %s, %s" % (d, d, t))
        a("s_and_b32 %s, %s, 3" % (t, S_S))
        a("s_lshl_b32 %s, %s, 4" % (t, t))
        a("s_add_u32 %s, %s, %s" % (d, d, t))
        a("s_add_u32 %s, %s, %d" % (d, d, WS_A))

    def role_w(self):
        a = self.a
        MASK = "s83"
        a("s_xor_b32 s79, s79, 0x10000")
        a("s_xor_b32 m0, s80, 0x1000")
        for e in range(4):
            a("s_add_u32 s77, s79, %d" % (e * (16384 - 1024)))
            a("buffer_load_dwordx4 v10, %s, s77 offen offset:%d %s lds" % (q4(R_TA), e * 1024, self.nt))
        a("s_lshl_b32 s76, %s, 2" % S_G)
        a("s_add_u32 s76, s76, %s" % S_W)
        a("s_lshl_b32 s77, s76, 8")
        a("s_add_u32 s77, s77, %d" % WS_ST)
        a("s_lshl_b32 s76, s76, 13")
        a("s_add_u32 s76, s76, %d" % WS_A)
        a("s_add_u32 s78, s76, 4096")
        a("v_and_b32 v1, 7, v0")
        a("v_lshlrev_b32 v1, 3, v1")
        a("v_lshl_add_u32 v21, v3, 6, v1")
        a("v_lshrrev_b32 v22, 2, v0")
        a("v_lshlrev_b32 v22, 6, v22")
        a("v_and_b32 v1, 1, v3")
        a("v_lshl_add_u32 v22, v1, 5, v22")
        a("v_lshl_add_u32 v22, v4, 3, v22")
        a("s_lshl_b32 s79, %s, 13" % S_W)
        a("s_add_u32 s79, s79, %d" % L_T1)
        a("v_add_u32 v22, s79, v22")
        a("v_xor_b32 v23, 32, v22")
        a("v_lshlrev_b32 v24, 2, v7")
        a("v_lshl_add_u32 v24, v3, 7, v24")
        a("s_lshl_b32 s79, %s, 9" % S_W)
        a("s_add_u32 s79, s79, %d" % L_RED)
        a("v_add_u32 v24, s79, v24")
        a("v_lshlrev_b32 v25, 3, v0")
        a("v_add_u32 v25, %d, v25" % L_RED)
        a("v_lshlrev_b32 v26, 2, v7")
        a("v_lshl_add_u32 v26, v3, 13, v26")
        a("s_lshl_b32 s80, %s, 4" % S_G)
        a("s_add_u32 s80, s80, %s" % S_I)
        a("s_lshl_b32 s80, s80, 6")
        a("s_add_u32 s80, s80, %d" % WS_B)
        a("s_mov_b32 s79, 0")

        def loads():
            a("buffer_load_dwordx2 %s, v21, %s, s77 offen sc1" % (vr(28, 2), q4(R_WS)))
            for e in range(8):
                a("buffer_load_dwordx4 %s, v8, %s, %s offen offset:%d sc1" % (vr(64 + 4 * e), q4(R_WS), "s76" if e < 4 else "s78", (e & 3) * 1024))
        loads()
        a("s_waitcnt vmcnt(9)")
        for tau in range(2):
            for kk in range(4):
                for rd in range(2):
                    a("ds_read_b64_tr_b16 %s, v%d offset:%d" % (vr(96 + 16 * tau + 4 * kk + 2 * rd, 2), 22 + tau, (2 * kk + rd) * 1024))
            if tau == 0:
                a("s_waitcnt lgkmcnt(4)")
        a("s_branch L_w_in")
        a("L_w_retry:")
        loads()
        a("L_w_in:")
        a("s_waitcnt vmcnt(8)")
        a("v_max_f32_dpp v30, v28, v28 quad_perm:[1,0,3,2] row_mask:0xf bank_mask:0xf")
        a("v_max_f32_dpp v30, v30, v30 quad_perm:[2,3,0,1] row_mask:0xf bank_mask:0xf")
        a("v_max_f32_dpp v30, v30, v30 row_ror:4 row_mask:0xf bank_mask:0xf")
        a("v_sub_f32 v30, v28, v30")
        a("v_mul_f32 v30, 0x%x, v30" % LOG2E)
        a("v_exp_f32 v30, v30")
        a("v_mul_f32 v31, v30, v29")
        a("v_add_f32_dpp v31, v31, v31 quad_perm:[1,0,3,2] row_mask:0xf bank_mask:0xf")
        a("v_add_f32_dpp v31, v31, v31 quad_perm:[2,3,0,1] row_mask:0xf bank_mask:0xf")
        a("v_add_f32_dpp v31, v31, v31 row_ror:4 row_mask:0xf bank_mask:0xf")
        a("v_rcp_f32 v31, v31")
        a("v_mul_f32 v30, v30, v31")
        a("s_waitcnt lgkmcnt(0)")
        for e in range(8):
            kk, rg = e >> 1, e & 1
            a("s_waitcnt vmcnt(%d)" % (7 - e))
            for tau in range(2):
                acc = 32 + 8 * tau + 4 * rg
                a("v_mfma_f32_16x16x32_bf16 %s, %s, %s, %s" % (vr(acc), vr(64 + 4 * e), vr(96 + 16 * tau + 4 * kk), "0" if kk == 0 else vr(acc)))
        for s in range(8):
            for tau in range(2):
                a("%s v%d, v30, v%d row_newbcast:%d row_mask:0xf bank_mask:0xf" % ("v_mul_f32_dpp" if s == 0 else "v_fmac_f32_dpp", 48 + tau, 32 + 8 * tau + s, s))
        a("v_cmp_u_f32 vcc, v48, v49")
        a("s_cbranch_vccz L_w_ok")
        self.spin_tail("L_w_retry", "s79")
        a("L_w_ok:")
        a("ds_write_b32 v24, v48")
        a("ds_write_b32 v24, v49 offset:64")
        a("s_waitcnt lgkmcnt(0)")
        a("s_barrier")
        self.stamp(7)
        a("s_cmp_lg_u32 %s, 0" % S_W)
        a("s_cbranch_scc1 L_w_pub_done")
        for h in range(4):
            a("ds_read_b64 %s, v25 offset:%d" % (vr(32 + 2 * h, 2), h * 512))
        a("s_waitcnt lgkmcnt(2)")
        a("v_pk_add_f32 v[32:33], v[32:33], v[34:35]")
        a("s_waitcnt lgkmcnt(0)")
        a("v_pk_add_f32 v[36:37], v[36:37], v[38:39]")
        a("v_pk_add_f32 v[32:33], v[32:33], v[36:37]")
        a("v_cvt_pk_bf16_f32 v32, v32, v33")
        a("buffer_store_dword v32, v26, %s, s80 offen sc1" % q4(R_WS))
        a("L_w_pub_done:")
        self.stamp(8)
        a("s_cmp_ge_u32 %s, 8" % S_I)
        a("s_cbranch_scc1 L_done")
        self.role_d()

    def role_d(self):
        a = self.a
        MASK = "s83"
        a("v_bfe_u32 v1, v0, 3, 2")
        a("v_lshlrev_b32 v10, 3, v1")
        a("v_bfe_u32 v1, v0, 1, 2")
        a("v_add_u32 v10, v10, v1")
        a("v_lshrrev_b32 v1, 5, v0")
        a("v_lshl_add_u32 v10, v1, 2, v10")
        a("v_and_b32 v1, 1, v0")
        a("v_lshl_add_u32 v10, v1, 5, v10")
        a("v_lshlrev_b32 v10, 10, v10")
        a("s_lshl_b32 s76, %s, 3" % S_G)
        a("s_add_u32 s76, s76, %s" % S_I)
        a("s_lshl_b32 s76, s76, 4")
        a("s_mul_i32 s78, %s, 7" % S_W)
        a("s_mov_b32 s77, %s" % S_I)
        for k in range(7):
            a("s_cmp_ge_u32 s77, 7")
            a("s_cselect_b32 s77, 0, s77")
            a("s_add_u32 s79, s78, s77")
            a("s_lshl_b32 s80, s79, 10")
            a("s_add_u32 m0, s80, %d" % L_T2)
            a("s_lshl_b32 s79, s79, 16")
            a("s_add_u32 s79, s79, s76")
            a("buffer_load_dwordx4 v10, %s, s79 offen %s lds" % (q4(R_TB), self.nt))
            a("s_add_u32 s77, s77, 1")
        self.mksrd(R_OUT, P_OUT, KSIZE['out'])
        a("s_lshl_b32 s79, s78, 10")
        a("s_add_u32 s79, s79, %d" % L_T2)
        a("v_lshlrev_b32 v22, 3, v0")
        a("v_add_u32 v22, s79, v22")
        a("v_lshrrev_b32 v1, 2, v7")
        a("v_lshlrev_b32 v21, 8, v1")
        a("v_lshl_add_u32 v21, v3, 6, v21")
        a("v_lshl_add_u32 v21, v4, 4, v21")
        a("s_lshl_b32 s78, s78, 9")
        a("s_add_u32 s78, s78, %d" % WS_C)
        a("v_lshrrev_b32 v1, 1, v3")
        a("v_lshlrev_b32 v24, 7, v1")
        a("v_lshl_add_u32 v24, v4, 5, v24")
        a("v_and_b32 v1, 1, v3")
        a("v_lshl_add_u32 v24, v1, 4, v24")
        a("s_lshl_b32 s79, %s, 8" % S_W)
        a("s_add_u32 s79, s79, %d" % L_RED2)
        a("v_add_u32 v24, s79, v24")
        a("v_lshlrev_b32 v25, 3, v7")
        a("v_add_u32 v25, %d, v25" % L_RED2)
        a("v_lshrrev_b32 v1, 2, v7")
        a("v_lshlrev_b32 v26, 2, v4")
        a("v_lshl_add_u32 v27, v1, 13, v26")
        a("v_lshl_add_u32 v26, v1, 10, v26")
        a("s_cmp_lg_u32 %s, 0" % S_W)
        a("s_cbranch_scc1 L_d_nox")
        a("s_add_u32 s79, s76, %d" % WS_B)
        a("s_add_u32 s80, s79, 4096")
        a("s_add_u32 s81, s76, %d" % WS_M2)
        a("s_add_u32 s82, s81, %d" % (3 * 4096))
        a("s_mov_b32 s77, 0")
        a("buffer_load_dword v42, v26, %s, s76 offen" % q4(R_X))
        a("L_d_x_retry:")
        a("buffer_load_dword v40, v26, %s, s81 offen sc1" % q4(R_WS))
        a("buffer_load_dword v41, v26, %s, s82 offen sc1" % q4(R_WS))
        for g in range(8):
            a("buffer_load_dword v%d, v27, %s, %s offen offset:%d sc1" % (32 + g, q4(R_WS), "s79" if g < 4 else "s80", (g & 3) * 1024))
        a("s_waitcnt vmcnt(0)")
        self.unpack(48, 32, 8, MASK)
        for st in (8, 4, 2):
            for j in range(0, st, 2):
                a("v_pk_add_f32 v[%d:%d], v[%d:%d], v[%d:%d]" % (48 + j, 49 + j, 48 + j, 49 + j, 48 + st + j, 49 + st + j))
        self.unpack(50, 40, 3, MASK)
        a("v_pk_fma_f32 v[48:49], v[48:49], v[50:51], v[54:55]")
        a("v_pk_add_f32 v[50:51], v[48:49], v[52:53]")
        a("v_cmp_u_f32 vcc, v50, v51")
        a("s_cbranch_vccz L_d_nox")
        self.spin_tail("L_d_x_retry", "s77")
        a("L_d_nox:")
        a("s_waitcnt vmcnt(0)")
        for e in range(7):
            for rd in range(2):
                a("ds_read_b64_tr_b16 %s, v22 offset:%d" % (vr(96 + 4 * e + 2 * rd, 2), e * 1024 + rd * 512))
        a("s_mov_b32 s77, 0")
        self.stamp(9)
        a("L_d_retry:")
        for u in range(4):
            a("buffer_load_dwordx4 %s, v21, %s, s78 offen offset:%d sc1" % (vr(64 + 4 * u), q4(R_WS), u * 1024))
        a("s_waitcnt lgkmcnt(0)")
        for e in range(7):
            if e & 1 == 0:
                a("s_waitcnt vmcnt(%d)" % (3 - (e >> 1)))
            acc = 32 + 4 * (e & 1)
            a("v_mfma_f32_16x16x32_bf16 %s, %s, %s, %s" % (vr(acc), vr(96 + 4 * e), vr(64 + 4 * (e >> 1)), "0" if e < 2 else vr(acc)))
        for r in range(4):
            a("v_add_f32_dpp v%d, v%d, v%d row_shl:8 row_mask:0xf bank_mask:0xf" % (44 + r, 36 + r, 32 + r))
        a("v_cmp_u_f32 vcc, v44, v44")
        a("s_and_b32 vcc_lo, vcc_lo, 0x000f000f")
        a("s_and_b32 vcc_hi, vcc_hi, 0x00f000f0")
        a("s_or_b32 s79, vcc_lo, vcc_hi")
        a("s_cbranch_scc0 L_d_ok")
        self.spin_tail("L_d_retry", "s77")
        a("L_d_ok:")
        a("s_mov_b32 exec_lo, 0x000f000f")
        a("s_mov_b32 exec_hi, 0x00f000f0")
        a("ds_write_b128 v24, %s" % vr(44))
        a("s_mov_b64 exec, -1")
        a("s_waitcnt lgkmcnt(0)")
        a("s_barrier")
        self.stamp(10)
        a("s_cmp_lg_u32 %s, 0" % S_W)
        a("s_cbranch_scc1 L_done")
        for p in range(8):
            a("ds_read_b64 %s, v25 offset:%d" % (vr(64 + 2 * p, 2), p * 128))
        for j in range(4):
            a("s_waitcnt lgkmcnt(%d)" % (6 - 2 * j))
            a("v_pk_add_f32 v[%d:%d], v[%d:%d], v[%d:%d]" % (64 + 4 * j, 65 + 4 * j, 64 + 4 * j, 65 + 4 * j, 66 + 4 * j, 67 + 4 * j))
        a("v_pk_add_f32 v[64:65], v[64:65], v[68:69]")
        a("v_pk_add_f32 v[72:73], v[72:73], v[76:77]")
        a("v_pk_add_f32 v[64:65], v[64:65], v[72:73]")
        a("v_pk_fma_f32 v[64:65], v[64:65], v[52:53], v[48:49]")
        a("v_cvt_pk_bf16_f32 v64, v64, v65")
        a("s_mov_b64 exec, 0xffff")
        a("buffer_store_dword v64, v26, %s, s76 offen" % q4(R_OUT))
        a("s_mov_b64 exec, -1")
        self.stamp(11)
        a("L_done:")
        self.finish()

    def role_g(self):
        a = self.a
        MASK = "s83"
        a("L_role_g:")
        a("s_cmp_eq_u32 %s, 7" % S_G)
        a("s_cbranch_scc1 L_done")
        a("s_and_b32 s76, %s, 3" % S_I)
        for ph in range(1, 4):
            a("s_add_u32 s76, s76, 1")
            a("s_cmp_eq_u32 s76, 4")
            a("s_cselect_b32 s78, -3, 1")
            a("s_lshl_b32 s77, s78, 12")
            a("s_mul_i32 s78, s78, %d" % (128 * 3584))
            a("s_add_u32 s80, s80, s77")
            a("s_add_u32 s79, s79, s78")
            a("s_mov_b32 m0, s80")
            a("s_add_u32 s77, s80, 16384")
            a("buffer_load_dwordx4 v10, %s, s79 offen %s lds" % (q4(R_TA), self.nt))
            a("s_mov_b32 m0, s77")
            a("buffer_load_dwordx4 v11, %s, s79 offen %s lds" % (q4(R_TB), self.nt))
        a("s_lshl_b32 s76, %s, 10" % S_W)
        a("s_add_u32 s76, s76, %d" % WS_M2)
        a("s_add_u32 s77, s76, 4096")
        a("s_add_u32 s78, s76, 8192")
        a("s_mov_b32 s79, 0")
        a("L_g_m_retry:")
        for k, so in enumerate(("s76", "s77", "s78")):
            a("buffer_load_dwordx2 %s, v12, %s, %s offen sc1" % (vr(28 + 4 * k, 2), q4(R_WS), so))
            a("buffer_load_dwordx2 %s, v12, %s, %s offen offset:512 sc1" % (vr(30 + 4 * k, 2), q4(R_WS), so))
        a("v_lshrrev_b32 v1, 3, v7")
        a("v_lshrrev_b32 v2, 1, v3")
        a("v_cmp_eq_u32 vcc, v1, v2")
        a("v_and_b32 v1, 1, v0")
        a("v_lshlrev_b32 v1, 4, v1")
        a("v_mov_b32 v2, 0x3f80")
        a("v_lshlrev_b32 v1, v1, v2")
        a("v_cndmask_b32 v1, 0, v1, vcc")
        a("v_bfe_u32 v2, v0, 1, 2")
        for j in range(4):
            a("v_cmp_eq_u32 vcc, %d, v2" % j)
            a("v_cndmask_b32 v%d, 0, v1, vcc" % (44 + j))
        a("v_and_b32 v1, 1, v3")
        a("v_lshrrev_b32 v2, 1, v3")
        a("v_lshl_add_u32 v2, v2, 4, v7")
        a("v_lshlrev_b32 v21, 4, v2")
        a("v_lshl_add_u32 v21, v1, 10, v21")
        a("v_lshlrev_b32 v22, 6, v2")
        a("v_lshl_add_u32 v22, v1, 3, v22")
        a("s_lshl_b32 s80, %s, 4" % S_W)
        a("s_add_u32 s80, s80, %d" % L_H2)
        a("v_add_u32 v22, s80, v22")
        a("v_lshlrev_b32 v23, 6, v3")
        a("v_lshl_add_u32 v23, v4, 4, v23")
        a("v_add_u32 v23, %d, v23" % L_H2)
        a("v_bfe_u32 v1, v0, 1, 1")
        a("v_lshrrev_b32 v20, 2, v0")
        a("v_lshlrev_b32 v20, 5, v20")
        a("v_lshl_add_u32 v20, v1, 14, v20")
        a("v_xor_b32 v1, %s, v1" % S_W)
        a("v_and_b32 v1, 1, v1")
        a("v_lshl_add_u32 v20, v1, 4, v20")
        a("v_and_b32 v1, 1, v0")
        a("v_lshl_add_u32 v20, v1, 3, v20")
        a("v_add_u32 v20, %d, v20" % L_T1)
        a("v_and_b32 v1, 1, v3")
        a("v_lshlrev_b32 v19, 4, v4")
        a("v_lshl_add_u32 v19, v1, 3, v19")
        a("v_lshrrev_b32 v1, 1, v3")
        a("v_lshl_add_u32 v19, v1, 2, v19")
        a("s_lshl_b32 s82, %s, 4" % S_G)
        a("s_add_u32 s82, s82, %s" % S_I)
        a("s_sub_u32 s82, s82, 16")
        a("s_lshl_b32 s82, s82, 1")
        a("s_add_u32 s82, s82, %s" % S_W)
        a("s_lshl_b32 s82, s82, 6")
        a("s_add_u32 s82, s82, %d" % WS_C)
        a("s_waitcnt vmcnt(0)")
        self.unpack(192, 24, 16, MASK)
        for j in range(0, 8, 2):
            a("v_pk_add_f32 v[%d:%d], v[%d:%d], 1.0 op_sel_hi:[1,0]" % (216 + j, 217 + j, 216 + j, 217 + j))
        a("v_max3_u32 v1, v28, v29, v30")
        for j in range(31, 39, 2):
            a("v_max3_u32 v1, v1, v%d, v%d" % (j, j + 1))
        a("v_max_u32 v1, v1, v39")
        a("v_cmp_eq_u32 vcc, -1, v1")
        a("s_cbranch_vccz L_g_m_ok")
        self.spin_tail("L_g_m_retry", "s79")
        a("L_g_m_ok:")
        a("s_barrier")
        self.stamp(7)
        a("s_lshl_b32 s76, %s, 13" % S_W)
        a("s_add_u32 s76, s76, %d" % WS_B)
        a("s_add_u32 s77, s76, 4096")
        a("s_mov_b32 s79, 0")

        def loads():
            for e in range(8):
                gp, ac = e >> 1, e & 1
                a("buffer_load_dwordx4 %s, v21, %s, %s offen offset:%d sc1" % (vr(64 + 4 * e), q4(R_WS), "s76" if gp < 2 else "s77", (gp & 1) * 2048 + ac * 512))
        loads()
        for t in range(16):
            for rd in range(2):
                a("ds_read_b64_tr_b16 %s, v20 offset:%d" % (vr(128 + 4 * t + 2 * rd, 2), t * 1024 + rd * 512))
            if t % 4 == 3:
                a("s_waitcnt lgkmcnt(4)")
        a("s_branch L_g_in")
        a("L_g_retry:")
        loads()
        a("L_g_in:")
        for e in range(8):
            a("s_waitcnt vmcnt(%d)" % (7 - e))
            acc = 32 + 4 * (e & 1)
            a("v_mfma_f32_16x16x32_bf16 %s, %s, %s, %s" % (vr(acc), vr(44), vr(64 + 4 * e), "0" if e < 2 else vr(acc)))
        a("v_cmp_u_f32 vcc, v32, v36")
        a("s_cbranch_vccz L_g_ok")
        self.spin_tail("L_g_retry", "s79")
        a("L_g_ok:")
        self.stamp(8)
        for j in range(0, 8, 2):
            a("v_pk_fma_f32 v[%d:%d], v[%d:%d], v[%d:%d], v[%d:%d]" % (32 + j, 33 + j, 32 + j, 33 + j, 200 + j, 201 + j, 192 + j, 193 + j))
        a("v_readfirstlane_b32 s78, v32")
        for j in range(8):
            a("v_subrev_f32 v%d, s78, v%d" % (32 + j, 32 + j))
        a("v_pk_add_f32 v[40:41], v[32:33], v[34:35]")
        a("v_pk_mul_f32 v[42:43], v[32:33], v[32:33]")
        a("v_pk_add_f32 v[48:49], v[36:37], v[38:39]")
        a("v_pk_fma_f32 v[42:43], v[34:35], v[34:35], v[42:43]")
        a("v_pk_add_f32 v[40:41], v[40:41], v[48:49]")
        a("v_pk_fma_f32 v[42:43], v[36:37], v[36:37], v[42:43]")
        a("v_add_f32 v40, v40, v41")
        a("v_pk_fma_f32 v[42:43], v[38:39], v[38:39], v[42:43]")
        a("v_add_f32 v41, v42, v43")
        self.allreduce("v_add_f32", [40, 41], [42, 43])
        a("v_mul_f32 v40, 0x3b000000, v40")
        a("v_mul_f32 v41, 0x3b000000, v41")
        a("v_fma_f32 v41, -v40, v40, v41")
        a("v_max_f32 v41, 0, v41")
        a("v_add_f32 v41, 0x%x, v41" % EPS)
        a("v_rsq_f32 v42, v41")
        a("v_mul_f32 v40, -v40, v42")
        for j in range(0, 8, 2):
            a("v_pk_fma_f32 v[%d:%d], v[%d:%d], v[42:43], v[40:41] op_sel_hi:[1,0,0]" % (32 + j, 33 + j, 32 + j, 33 + j))
        for j in range(0, 8, 2):
            a("v_pk_fma_f32 v[%d:%d], v[%d:%d], v[%d:%d], v[%d:%d]" % (32 + j, 33 + j, 32 + j, 33 + j, 216 + j, 217 + j, 208 + j, 209 + j))
        self.pack(40, 32, 4)
        a("ds_write_b64 v22, v[40:41]")
        a("ds_write_b64 v22, v[42:43] offset:2048")
        a("s_waitcnt lgkmcnt(0)")
        a("s_barrier")
        self.stamp(9)
        a("s_cmp_ge_u32 %s, 2" % S_W)
        a("s_cbranch_scc1 L_done")
        for t in range(12):
            a("ds_read_b128 %s, v23 offset:%d" % (vr(64 + 4 * t), t * 256))
        for t in range(16):
            if t < 4:
                a("s_waitcnt lgkmcnt(11)")
                a("ds_read_b128 %s, v23 offset:%d" % (vr(64 + 4 * (12 + t)), (12 + t) * 256))
            else:
                a("s_waitcnt lgkmcnt(%d)" % (15 - t))
            a("v_mfma_f32_16x16x32_bf16 %s, %s, %s, %s" % (vr(32), vr(128 + 4 * t), vr(64 + 4 * t), "0" if t == 0 else vr(32)))
        a("v_permlane32_swap_b32 v32, v34")
        a("v_permlane32_swap_b32 v33, v35")
        a("v_mul_f32 v32, 0x%x, v32" % NLOG2E)
        a("v_mul_f32 v33, 0x%x, v33" % NLOG2E)
        a("v_exp_f32 v32, v32")
        a("v_exp_f32 v33, v33")
        a("v_add_f32 v32, 1.0, v32")
        a("v_add_f32 v33, 1.0, v33")
        a("v_rcp_f32 v32, v32")
        a("v_rcp_f32 v33, v33")
        a("v_mul_f32 v32, v32, v34")
        a("v_mul_f32 v33, v33, v35")
        a("s_mov_b32 exec_lo, 0x000f000f")
        a("s_mov_b32 exec_hi, 0x000f000f")
        a("v_cvt_pk_bf16_f32 v32, v32, v33")
        a("buffer_store_dword v32, v19, %s, s82 offen sc1" % q4(R_WS))
        a("s_mov_b64 exec, -1")
        self.stamp(10)
        self.finish()

    def mprep(self):
        a = self.a
        MASK = "s83"
        a("L_mprep:")
        self.mksrd(R_C, P_C, KSIZE['c'])
        self.mksrd(R_DBG, P_DBG, KSIZE['dbg'])
        a("s_lshl_b32 s77, %s, 10" % S_W)
        a("buffer_load_dwordx4 %s, v8, %s, s77 offen" % (vr(24), q4(R_C)))
        a("buffer_load_dwordx4 %s, v8, %s, s77 offen" % (vr(28), q4(R_X)))
        a("s_cmp_lg_u32 %s, %d" % (S_G, self.mg_h))
        a("s_cbranch_scc1 L_mp_noclr")
        a("s_cmp_lg_u32 %s, 0" % S_W)
        a("s_cbranch_scc1 L_mp_noclr")
        for j in range(4):
            a("v_mov_b32 v%d, -1" % (32 + j))
        a("s_lshl_b32 s78, %s, 12" % S_I)
        for j in range(4):
            a("buffer_store_dwordx4 %s, v8, %s, s78 offen offset:%d sc1" % (vr(32), q4(R_WS), j * 1024))
        a("s_lshl_b32 s78, %s, 3" % S_I)
        a("s_waitcnt vmcnt(0)")
        a("s_mov_b64 exec, 1")
        a("buffer_store_dword v32, v8, %s, s78 offen sc1" % q4(R_DBG))
        a("s_mov_b64 exec, -1")
        a("s_branch L_mp_go")
        a("L_mp_noclr:")
        a("s_waitcnt vmcnt(0)")
        a("L_mp_go:")
        self.unpack(40, 24, 4, MASK)
        for j in range(8):
            a("v_mul_f32 v%d, 0x%x, v%d" % (48 + j, NLOG2E, 40 + j))
        for j in range(8):
            a("v_exp_f32 v%d, v%d" % (48 + j, 48 + j))
        for j in range(8):
            a("v_add_f32 v%d, 1.0, v%d" % (48 + j, 48 + j))
        for j in range(8):
            a("v_rcp_f32 v%d, v%d" % (48 + j, 48 + j))
        for j in range(8):
            a("v_mul_f32 v%d, v%d, v%d" % (48 + j, 48 + j, 40 + j))
        self.pack(24, 48, 4)
        a("s_lshl_b32 s78, %s, 4" % S_W)
        a("s_add_u32 s78, s78, %d" % L_SC)
        a("v_lshlrev_b32 v1, 6, v0")
        a("v_add_u32 v1, s78, v1")
        a("ds_write_b128 v1, %s" % vr(24))
        self.unpack(40, 28, 4, MASK)
        a("v_pk_add_f32 v[48:49], v[40:41], v[42:43]")
        a("v_pk_add_f32 v[50:51], v[44:45], v[46:47]")
        a("v_pk_add_f32 v[48:49], v[48:49], v[50:51]")
        a("v_add_f32 v48, v48, v49")
        self.allreduce("v_add_f32", [48], [49])
        a("v_mul_f32 v48, 0x3b000000, v48")
        for j in range(8):
            a("v_sub_f32 v%d, v%d, v48" % (52 + j, 40 + j))
        a("v_mul_f32 v49, v52, v52")
        for j in range(1, 8):
            a("v_fmac_f32 v49, v%d, v%d" % (52 + j, 52 + j))
        self.allreduce("v_add_f32", [49], [50])
        a("v_mul_f32 v49, 0x3b000000, v49")
        self.rnd(48, 1, 50, MASK)
        a("v_add_f32 v49, 0x%x, v49" % EPS)
        self.rnd(48, 1, 50, MASK)
        a("v_sqrt_f32 v49, v49")
        self.rnd(48, 1, 50, MASK)
        a("v_rcp_f32 v49, v49")
        for j in range(8):
            a("v_sub_f32 v%d, v%d, v48" % (40 + j, 40 + j))
        self.rnd(40, 4, 52, MASK)
        for j in range(8):
            a("v_mul_f32 v%d, v%d, v49" % (40 + j, 40 + j))
        self.pack(28, 40, 4)
        a("s_add_u32 s77, s77, %d" % L_N)
        a("v_add_u32 v1, s77, v8")
        a("ds_write_b128 v1, %s" % vr(28))
        a("s_waitcnt lgkmcnt(0)")
        a("s_barrier")
        a("s_branch L_stream")

    def front_wave(self):
        a = self.a
        MASK = "s83"
        a("L_front:")
        a("s_setprio 3")
        a("v_lshrrev_b32 v3, 4, v0")
        a("v_and_b32 v4, 3, v0")
        a("v_and_b32 v7, 15, v0")
        a("v_lshlrev_b32 v8, 4, v0")
        self.sigma_voff(10, 6144, 1, 2)
        self.sigma_voff(11, 8192, 1, 2)
        a("v_bfe_u32 v1, v0, 2, 2")
        a("v_lshlrev_b32 v12, 13, v3")
        a("v_lshl_add_u32 v12, v1, 11, v12")
        a("v_lshl_add_u32 v12, v4, 8, v12")
        self.a_slot("s82", "s77")
        for j in range(4):
            a("v_mov_b32 v%d, -1" % (32 + j))
        a("v_and_b32 v13, 31, v0")
        a("v_lshlrev_b32 v13, 3, v13")
        a("v_lshlrev_b32 v14, 3, v0")
        a("v_add_u32 v14, %d, v14" % L_WQ)
        for up in range(4):
            a("s_add_u32 s%d, %s, %d" % (56 + up, S_I, up))
            a("s_and_b32 s%d, s%d, 3" % (56 + up, 56 + up))
        a("s_waitcnt lgkmcnt(0)")
        if self.stamps:
            a("s_mov_b32 s%d, s100" % STAMP0)
        self.mksrd(R_WS, P_WS, KSIZE['ws'])
        self.mksrd(R_WQ, P_WQ, KSIZE['wq'])
        self.mksrd(R_WMOD, P_WMOD, KSIZE['wmod'])
        self.mksrd(R_DBG, P_DBG, KSIZE['dbg'])

        def wq_loads():
            a("s_lshl_b32 s76, %s, 5" % S_G)
            a("s_add_u32 s76, s76, %s" % S_I)
            a("s_lshl_b32 s76, s76, 5")
            for up in range(4):
                a("s_mov_b32 m0, %d" % (L_WQ + up * 4096))
                a("s_lshl_b32 s77, s%d, 20" % (56 + up))
                a("s_add_u32 s77, s77, s76")
                for j in range(4):
                    a("buffer_load_dwordx4 v11, %s, s77 offen offset:%d %s lds" % (q4(R_WQ), j * 1024, self.nt))
                    if j < 3:
                        a("s_add_u32 s77, s77, %d" % (32 * 8192 - 1024))

        def flag_load():
            a("buffer_load_dword v15, v13, %s, 0 offen sc1" % q4(R_DBG))

        def flag_wait(tag, n_after):
            a("s_waitcnt vmcnt(%d)" % n_after)
            a("v_cmp_eq_u32 vcc, 0, v15")
            a("s_cbranch_vccz L_fl_ok%s" % tag)
            a("s_mov_b32 s79, 0")
            a("L_fl_retry%s:" % tag)
            flag_load()
            a("s_waitcnt vmcnt(0)")
            a("v_cmp_eq_u32 vcc, 0, v15")
            a("s_cbranch_vccz L_fl_ok%s" % tag)
            self.spin_tail("L_fl_retry%s" % tag, "s79")
            a("L_fl_ok%s:" % tag)

        a("s_cmp_eq_u32 %s, %d" % (S_G, self.mg_h))
        a("s_cbranch_scc1 L_f_m")
        a("s_cmp_eq_u32 %s, %d" % (S_G, self.mg_o))
        a("s_cbranch_scc1 L_f_m")
        flag_load()
        a("buffer_store_dwordx4 %s, v12, %s, s82 offen sc1" % (vr(32), q4(R_WS)))
        wq_loads()
        flag_wait("a", 17)
        a("s_branch L_f_q")
        a("L_f_m:")
        a("s_cmp_eq_u32 %s, %d" % (S_G, self.mg_h))
        a("s_cselect_b32 s60, 0, 2")
        a("s_cselect_b32 s61, 1, 3")
        a("s_cselect_b32 s62, 5, 4")
        a("s_lshl_b32 s76, %s, 5" % S_I)
        for k in range(3):
            a("s_lshl_b32 s%d, s%d, 10" % (60 + k, 60 + k))
            a("s_add_u32 s%d, s%d, s76" % (60 + k, 60 + k))

        def m_loads(tiles):
            for up in range(4):
                a("s_mul_i32 s76, s%d, %d" % (56 + up, 128 * 6144))
                for k in tiles:
                    a("s_mov_b32 m0, %d" % (L_M + k * 16384 + up * 4096))
                    a("s_add_u32 s77, s76, s%d" % (60 + k))
                    for j in range(4):
                        a("buffer_load_dwordx4 v10, %s, s77 offen offset:%d %s lds" % (q4(R_WMOD), j * 1024, self.nt))
                        if j < 3:
                            a("s_add_u32 s77, s77, %d" % (32 * 6144 - 1024))
        m_loads((0, 1))
        flag_load()
        a("buffer_store_dwordx4 %s, v12, %s, s82 offen sc1" % (vr(32), q4(R_WS)))
        wq_loads()
        a("s_barrier")
        self.stamp(1)
        a("v_lshlrev_b32 v16, 6, v3")
        a("v_lshl_add_u32 v16, v4, 4, v16")
        a("v_add_u32 v16, %d, v16" % L_SC)
        for up in range(4):
            a("s_lshl_b32 s77, s%d, 10" % (56 + up))
            a("v_add_u32 v17, s77, v16")
            for j in range(4):
                a("ds_read_b128 %s, v17 offset:%d" % (vr(64 + 16 * up + 4 * j), j * 256))
            a("s_waitcnt lgkmcnt(0)")
        a("v_lshlrev_b32 v18, 10, v4")
        a("v_lshl_add_u32 v18, v3, 3, v18")
        a("s_lshl_b32 s77, %s, 5" % S_I)
        a("s_add_u32 s63, s77, %d" % WS_M2)
        a("s_add_u32 s77, s77, %d" % L_N)
        a("v_add_u32 v17, s77, v18")
        a("ds_read_b64 v[20:21], v17")

        def m_compute(tiles, n_after):
            for up in range(4):
                a("s_waitcnt vmcnt(%d)" % (n_after + (3 - up) * 4 * len(tiles)))
                for x, k in enumerate(tiles):
                    for j in range(4):
                        for rd in range(2):
                            a("ds_read_b64_tr_b16 %s, v14 offset:%d" % (vr(128 + 16 * x + 4 * j + 2 * rd, 2), L_M - L_WQ + k * 16384 + up * 4096 + j * 1024 + rd * 512))
                    a("s_waitcnt lgkmcnt(0)")
                    for j in range(4):
                        acc = 36 + 4 * k
                        a("v_mfma_f32_16x16x32_bf16 %s, %s, %s, %s" % (vr(acc), vr(128 + 16 * x + 4 * j), vr(64 + 16 * up + 4 * j), "0" if up == 0 and j == 0 else vr(acc)))
        m_compute((0, 1), 18)
        flag_wait("m", 17)
        self.stamp(2)
        a("s_mov_b32 exec_lo, 0x000f000f")
        a("s_mov_b32 exec_hi, 0x000f000f")
        self.pack(24, 36, 4)
        a("s_cmp_eq_u32 %s, %d" % (S_G, self.mg_h))
        a("s_cbranch_scc1 L_f_h")
        a("s_add_u32 s77, s63, 4096")
        a("buffer_store_dwordx2 v[24:25], v18, %s, s63 offen sc1" % q4(R_WS))
        a("buffer_store_dwordx2 v[26:27], v18, %s, s77 offen sc1" % q4(R_WS))
        a("s_add_u32 s63, s63, 8192")
        a("s_branch L_f_c")
        a("L_f_h:")
        self.unpack(36, 24, 4, MASK)
        self.unpack(48, 20, 2, MASK)
        for r in range(4):
            a("v_add_f32 v%d, 1.0, v%d" % (40 + r, 40 + r))
        self.rnd(40, 2, 24, MASK)
        for r in range(4):
            a("v_mul_f32 v%d, v%d, v%d" % (40 + r, 40 + r, 48 + r))
        self.rnd(40, 2, 24, MASK)
        for r in range(4):
            a("v_add_f32 v%d, v%d, v%d" % (40 + r, 40 + r, 36 + r))
        self.pack(24, 40, 2)
        a("v_lshrrev_b32 v1, 1, v3")
        a("v_lshlrev_b32 v19, 6, v1")
        a("v_lshl_add_u32 v19, v4, 4, v19")
        a("v_and_b32 v1, 1, v3")
        a("v_lshl_add_u32 v19, v1, 3, v19")
        a("s_lshl_b32 s77, %s, 7" % S_I)
        a("s_add_u32 s77, s77, %d" % WS_H)
        a("buffer_store_dwordx2 v[24:25], v19, %s, s77 offen sc1" % q4(R_WS))
        a("s_add_u32 s63, s63, %d" % (3 * 4096))
        a("L_f_c:")
        a("s_mov_b64 exec, -1")
        self.stamp(3)
        m_loads((2,))
        m_compute((2,), 0)
        a("s_mov_b32 exec_lo, 0x000f000f")
        a("s_mov_b32 exec_hi, 0x000f000f")
        self.pack(24, 44, 2)
        a("buffer_store_dwordx2 v[24:25], v18, %s, s63 offen sc1" % q4(R_WS))
        a("s_mov_b64 exec, -1")
        a("L_f_q:")
        self.stamp(4)
        a("v_lshrrev_b32 v1, 2, v7")
        a("v_lshlrev_b32 v16, 8, v1")
        a("v_lshl_add_u32 v16, v3, 6, v16")
        a("v_lshl_add_u32 v16, v4, 4, v16")
        for up in range(4):
            a("s_lshl_b32 s%d, s%d, 10" % (56 + up, 56 + up))
            if WS_H:
                a("s_add_u32 s%d, s%d, %d" % (56 + up, 56 + up, WS_H))

        def h_loads():
            for up in range(4):
                a("buffer_load_dwordx4 %s, v16, %s, s%d offen sc1" % (vr(64 + 4 * up), q4(R_WS), 56 + up))
        h_loads()
        a("v_lshlrev_b32 v18, 10, v4")
        a("v_lshl_add_u32 v18, v3, 3, v18")
        a("s_lshl_b32 s76, %s, 12" % S_G)
        a("s_add_u32 s76, s76, %d" % WS_Q)
        a("s_lshl_b32 s77, %s, 10" % S_B)
        a("s_add_u32 s77, s77, s76")
        a("s_lshl_b32 s78, %s, 5" % S_I)
        a("s_add_u32 s76, s76, s78")
        a("s_mov_b32 s79, 0")
        a("s_waitcnt vmcnt(4)")
        for t in range(16):
            for rd in range(2):
                a("ds_read_b64_tr_b16 %s, v14 offset:%d" % (vr(128 + 4 * t + 2 * rd, 2), t * 1024 + rd * 512))
            if t % 4 == 3:
                a("s_waitcnt lgkmcnt(4)")
        a("s_branch L_h_in")
        a("L_h_retry:")
        h_loads()
        a("L_h_in:")
        a("s_waitcnt vmcnt(0) lgkmcnt(0)")
        for up in range(4):
            for tp in range(4):
                acc = 32 + 4 * tp
                a("v_mfma_f32_16x16x32_bf16 %s, %s, %s, %s" % (vr(acc), vr(128 + 16 * up + 4 * tp), vr(64 + 4 * up), "0" if up == 0 else vr(acc)))
        for tp in range(1, 4):
            for r in range(4):
                a("v_add_f32_dpp v%d, v%d, v%d row_shl:%d row_mask:0xf bank_mask:0xf" % (32 + r, 32 + 4 * tp + r, 32 + r, 4 * tp))
        a("v_cmp_u_f32 vcc, v32, v32")
        a("s_and_b32 s78, vcc_lo, 0xf")
        a("s_cbranch_scc0 L_h_ok")
        self.spin_tail("L_h_retry", "s79")
        a("L_h_ok:")
        self.stamp(5)
        a("s_mov_b32 exec_lo, 0x000f000f")
        a("s_mov_b32 exec_hi, 0x000f000f")
        self.pack(24, 32, 2)
        a("buffer_store_dwordx2 v[24:25], v18, %s, s76 offen %s" % (q4(R_WS), self.st_local))
        a("s_mov_b64 exec, -1")
        a("v_add_u32 v17, %d, v8" % L_Q)
        a("s_mov_b32 s79, 0")
        a("L_q_retry:")
        a("buffer_load_dwordx4 %s, v8, %s, s77 offen sc1" % (vr(28), q4(R_WS)))
        a("s_waitcnt vmcnt(0)")
        a("v_max3_u32 v1, v28, v29, v30")
        a("v_max_u32 v1, v1, v31")
        a("v_cmp_eq_u32 vcc, -1, v1")
        a("s_cbranch_vccz L_q_ok")
        self.spin_tail("L_q_retry", "s79")
        a("L_q_ok:")
        a("ds_write_b128 v17, %s" % vr(28))
        a("s_waitcnt lgkmcnt(0)")
        self.stamp(6)
        if self.stamps:
            a("s_barrier")
        self.finish()

    def stamps_out(self):
        a = self.a
        a("L_stamps:")
        a("s_lshl_b32 s76, s2, 3")
        a("s_add_u32 s76, s76, %s" % S_W)
        a("s_lshl_b32 s76, s76, 6")
        a("s_add_u32 s76, s76, %d" % WS_STAMP)
        for k in range(16):
            a("v_writelane_b32 v1, s%d, %d" % (STAMP0 + k, k))
        a("v_lshlrev_b32 v2, 2, v0")
        a("s_mov_b64 exec, 0xffff")
        a("buffer_store_dword v1, v2, %s, s76 offen" % q4(R_WS))
        a("s_endpgm")

    def build(self):
        a = self.a
        self.prologue()
        self.main_wave()
        self.front_wave()
        if self.stamps:
            self.stamps_out()
        a("L_exit:")
        a("s_endpgm")
        lines, n = hazard.fix(a.lines)
        sys.stderr.write("hazard pass inserted %d wait states, %d lines\n" % (n, len(lines)))
        return kernel_file("\n".join(lines) + "\n", 256, 320, LDS_BYTES, 224)


if __name__ == "__main__":
    kw = {}
    out = sys.argv[1]
    for x in sys.argv[2:]:
        k, v = x.split("=")
        kw[k] = int(v) if v.lstrip("-").isdigit() else v
    open(out, "w").write(Gen(**kw).build())
```

```python
import sys
from asmlib import *
import hazard

WS_B, WS_C, WS_M2, WS_ST = 0x0, 0x8000, 0x10000, 0x14000
WS_H, WS_E, WS_IDC, WS_IDR, WS_A, WS_QP = 0x18000, 0x1C000, 0x1D000, 0x20000, 0x40000, 0x80000
WS_GR = 0x1E000
WS_STAMP = 0x100000
L_V = 0
L_WQ = 65536
L_M = 81920
L_T1 = 65536
L_T2 = 98304
L_MISC = 131072
L_Q = L_MISC
L_SC = L_MISC + 1024
L_N = L_SC + 4096
L_H2 = L_SC
L_P = L_N + 4096
L_RED = L_P + 2048
L_RED2 = L_RED + 2048
L_MAX = L_RED2 + 1024
L_SUM = L_MAX + 64
L_LOC = L_SUM + 64
L_DUMP = L_MISC + 16384
LDS_BYTES = L_DUMP + 2048
assert L_LOC + 64 <= LDS_BYTES

LOG2E = 0x3FB8AA3B
NLOG2E = 0xBFB8AA3B
SCALE = 0x3DB504F3
EPS = 0x3727C5AC
SPIN_MAX = 0x10000

S_G, S_I, S_B, S_S, S_W = "s4", "s5", "s6", "s7", "s3"
P_X, P_WQ, P_WO, P_WG, P_WU = 8, 14, 16, 20, 22
P_WD, P_C, P_WMOD, P_OUT, P_DBG, P_WS = 24, 26, 28, 30, 32, 34
R_WS, R_K, R_V, R_TA, R_TB, R_WD, R_X, R_C, R_OUT, R_DBG = 36, 40, 44, 48, 52, 56, 60, 64, 68, 72
R_WO = R_K
R_WQ, R_WMOD = 48, 52
LCG_A, LCG_C = 1664525, 1013904223
STAMP0 = 84


def q4(n):
    return "s[%d:%d]" % (n, n + 3)


def vr(n, k=4):
    return "v[%d:%d]" % (n, n + k - 1)


class Gen:
    def __init__(self, stamps=False, win=5, winv=6, helpg=1, sent=0, warm=1, cdelay=1, st_local="sc1", nt="nt", mg_h=1, pref=1, force_remote=0, exp=0, tailfree=3, hsleep=0, qsleep=8, pwg=-1, pwave=0, pk=0):
        self.pwg, self.pwave, self.pk = pwg, pwave, pk
        self.a = Asm()
        self.stamps = stamps
        self.win = win
        self.winv = winv
        self.helpg = helpg
        self.sent = sent
        self.warm = warm
        self.cdelay = cdelay
        self.st_local = st_local
        self.nt = nt
        self.mg_h = mg_h
        self.pref = pref
        self.exp = exp
        self.tailfree = tailfree
        self.hsleep = hsleep
        self.qsleep = qsleep
        self.force_remote = force_remote

    def stamp(self, k):
        if self.stamps:
            a = self.a
            a("s_memrealtime s[100:101]")
            a("s_waitcnt lgkmcnt(0)")
            a("s_mov_b32 s%d, s100" % (STAMP0 + k))

    def finish(self):
        a = self.a
        if self.stamps:
            a("s_branch L_stamps")
        else:
            a("s_endpgm")

    def mksrd(self, d, p, size):
        a = self.a
        a("s_mov_b64 s[%d:%d], s[%d:%d]" % (d, d + 1, p, p + 1))
        a("s_mov_b32 s%d, %d" % (d + 2, size))
        a("s_mov_b32 s%d, 0x00020000" % (d + 3))

    def spin_tail(self, lab, cnt):
        a = self.a
        a("s_add_u32 %s, %s, 1" % (cnt, cnt))
        a("s_cmp_lt_u32 %s, %d" % (cnt, SPIN_MAX))
        a("s_cbranch_scc1 %s" % lab)

    def allreduce(self, op, regs, tmp, rors=(1, 2, 4, 8)):
        a = self.a
        for r in rors:
            for x in regs:
                a("%s_dpp v%d, v%d, v%d row_ror:%d row_mask:0xf bank_mask:0xf" % (op, x, x, x, r))
        for sw in ("v_permlane16_swap_b32", "v_permlane32_swap_b32"):
            for x, t in zip(regs, tmp):
                a("v_mov_b32 v%d, v%d" % (t, x))
            for x, t in zip(regs, tmp):
                a("%s v%d, v%d" % (sw, x, t))
            for x, t in zip(regs, tmp):
                a("%s v%d, v%d, v%d" % (op, x, x, t))

    def unpack(self, dst, src, n, mask):
        a = self.a
        for j in range(n):
            a("v_lshlrev_b32 v%d, 16, v%d" % (dst + 2 * j, src + j))
            a("v_and_b32 v%d, %s, v%d" % (dst + 2 * j + 1, mask, src + j))

    def pack(self, dst, src, n):
        a = self.a
        for j in range(n):
            a("v_cvt_pk_bf16_f32 v%d, v%d, v%d" % (dst + j, src + 2 * j, src + 2 * j + 1))

    def rnd(self, x, n, tmp, mask):
        self.pack(tmp, x, n)
        self.unpack(x, tmp, n, mask)

    def sigma_voff(self, dst, rowb, t1, t2):
        a = self.a
        a("v_bfe_u32 v%d, v0, 3, 2" % t1)
        a("v_lshlrev_b32 v%d, 3, v%d" % (t1, t1))
        a("v_bfe_u32 v%d, v0, 1, 2" % t2)
        a("v_add_u32 v%d, v%d, v%d" % (t1, t1, t2))
        a("v_lshrrev_b32 v%d, 5, v0" % t2)
        a("v_lshl_add_u32 v%d, v%d, 2, v%d" % (t1, t2, t1))
        a("v_mul_u32_u24 v%d, %d, v%d" % (t1, rowb, t1))
        a("v_and_b32 v%d, 1, v0" % t2)
        a("v_lshl_add_u32 v%d, v%d, 4, v%d" % (dst, t2, t1))

    def prologue(self):
        a = self.a
        a("L_start:")
        if self.stamps:
            a("s_memrealtime s[100:101]")
        a("s_load_dwordx2 s[%d:%d], s[0:1], 8" % (R_K, R_K + 1))
        a("s_load_dwordx16 s[8:23], s[0:1], 0")
        a("s_load_dwordx8 s[24:31], s[0:1], 64")
        a("s_load_dwordx4 s[32:35], s[0:1], 96")
        a("s_getpc_b64 s[70:71]")
        a("L_pc:")
        a("s_cmpk_ge_u32 s2, 256")
        a("s_cbranch_scc1 L_exit")
        a("v_lshrrev_b32 v1, 6, v0")
        a("v_and_b32 v0, 63, v0")
        a("v_readfirstlane_b32 %s, v1" % S_W)
        a("s_and_b32 %s, s2, 7" % S_G)
        a("s_lshr_b32 %s, s2, 3" % S_I)
        a("s_lshr_b32 %s, s2, 6" % S_B)
        a("s_and_b32 %s, %s, 7" % (S_S, S_I))
        a("v_and_b32 v7, 15, v0")
        a("v_lshrrev_b32 v3, 4, v0")
        a("v_and_b32 v4, 3, v0")
        a("v_lshlrev_b32 v8, 4, v0")
        a("s_mov_b32 s83, 0xffff0000")
        a("s_cmp_lg_u32 %s, 4" % S_W)
        a("s_cbranch_scc1 L_main")
        if self.pref:
            a("v_lshl_add_u32 v1, %s, 4, v7" % S_S)
            a("v_lshlrev_b32 v1, 7, v1")
            a("v_min_u32 v1, L_last-L_pc, v1")
            a("s_mov_b64 exec, 0xffff")
            a("global_load_dword v2, v1, s[70:71]")
            a("s_mov_b64 exec, -1")
        a("s_branch L_front")
        a("L_main:")

    def t_loads(self, srd, voff):
        a = self.a
        a("buffer_load_dwordx4 v%d, %s, s79 offen %s lds" % (voff, q4(srd), self.nt))
        a("s_add_u32 s77, s79, s74")
        for e in range(1, 4):
            a("buffer_load_dwordx4 v%d, %s, s77 offen offset:%d %s lds" % (voff, q4(srd), e * 1024, self.nt))
            if e < 3:
                a("s_add_u32 s77, s77, s74")

    def local_store(self, text):
        a = self.a
        l1, l2 = a.label("L_ls"), a.label("L_ls")
        a("s_cmp_eq_u32 s73, 0")
        a("s_cbranch_scc1 %s" % l1)
        a(text)
        a("%s:" % l2)
        self.deferred.append((l1, text + " sc1", l2))

    def main_wave(self):
        a = self.a
        W = self.win
        MASK = "s83"
        self.deferred = []
        a("s_cmp_lg_u32 %s, %d" % (S_G, self.mg_h))
        a("s_cbranch_scc1 L_stream")
        self.mload()
        a("L_stream:")
        a("v_and_b32 v1, 7, v0")
        a("v_lshlrev_b32 v9, 1, v3")
        a("v_xor_b32 v1, v1, v9")
        a("v_lshrrev_b32 v9, 3, v0")
        a("v_lshlrev_b32 v9, 13, v9")
        a("v_lshl_add_u32 v9, v1, 4, v9")
        a("s_lshl_b32 s79, %s, 2" % S_B)
        a("s_add_u32 s79, s79, %s" % S_W)
        a("s_lshl_b32 s79, s79, 8")
        a("s_add_u32 s79, s79, %s" % S_G)
        a("s_lshl_b32 s79, s79, 3")
        a("s_add_u32 s79, s79, %s" % S_S)
        a("s_lshl_b32 s79, s79, 7")
        a("s_lshl_b32 s98, %s, 12" % S_W)
        a("s_add_u32 m0, s98, %d" % L_WQ)
        a("s_mov_b32 s74, %d" % (65536 - 1024))
        a("s_mov_b32 s%d, %d" % (R_TB + 2, KSIZE['wq']))
        a("s_mov_b32 s%d, 0x00020000" % (R_TB + 3))
        a("s_waitcnt lgkmcnt(0)")
        a("s_mov_b64 s[%d:%d], s[%d:%d]" % (R_TB, R_TB + 1, P_WQ, P_WQ + 1))
        self.t_loads(R_TB, 9)
        if self.stamps:
            a("s_mov_b32 s%d, s100" % STAMP0)
            for k in range(1, 12):
                if self.exp == 0 or k not in (7, 8):
                    a("s_mov_b32 s%d, 0" % (STAMP0 + k))
        a("s_cmp_eq_u32 %s, %d" % (S_G, self.mg_h))
        a("s_cbranch_scc1 L_mcomp")
        a("L_stream2:")
        a("s_mov_b32 s%d, %d" % (R_K + 2, KSIZE['k']))
        a("s_mov_b32 s%d, 0x00020000" % (R_K + 3))
        a("s_lshl_b32 s76, %s, 3" % S_B)
        a("s_add_u32 s76, s76, %s" % S_G)
        a("s_lshl_b32 s76, s76, 7")
        a("s_add_u32 s76, s76, %s" % S_S)
        a("s_lshl_b32 s76, s76, 2")
        a("s_add_u32 s76, s76, %s" % S_W)
        a("s_lshl_b32 s76, s76, 12")
        a("s_add_u32 s76, s76, %d" % (6144 * 256))
        a("v_bfe_u32 v1, v0, 2, 2")
        a("v_lshlrev_b32 v1, 10, v1")
        a("v_lshl_add_u32 v1, v3, 6, v1")
        a("v_lshl_add_u32 v2, v4, 4, v1")
        for e in range(16):
            rho, j = e >> 2, e & 3
            if j == 0 and rho > 0:
                a("s_add_u32 s97, s76, %d" % (rho * 131072))
            a("buffer_load_dwordx4 %s, v2, %s, %s offen offset:%d %s" % (vr(64 + 4 * e), q4(R_K), "s76" if rho == 0 else "s97", j * 256, self.nt))
            if e in (9, 11, 13):
                self.setup_common((e - 9) // 2)
            if e + 4 >= W - 1:
                a("s_waitcnt vmcnt(%d)" % (W - 1))
            if e == W - 2:
                a("s_barrier")
        self.stamp(1)
        for e in range(16):
            step, j = e >> 2, e & 3
            if j == 0:
                a("s_add_u32 m0, s98, %d" % (L_V + step * 16384))
                a("s_add_u32 s97, s76, %d" % (step * 131072))
            a("buffer_load_dwordx4 v%d, %s, s97 offen offset:%d %s lds" % (5 + (j & 1), q4(R_V), j * 1024, self.nt))
            if e == 1:
                a("s_cmp_ge_u32 %s, 24" % S_I)
                a("s_cbranch_scc1 L_su_m")
                a("s_cmp_ge_u32 %s, 16" % S_I)
                a("s_cbranch_scc1 L_su_g")
                a("s_branch L_su_w")
                a("L_su_done:")
                self.mksrd(R_WO, P_WO, KSIZE['wo'])
                a("v_mul_lo_u32 v10, v10, s78")
                a("v_add_u32 v10, v10, v11")
                a("v_xor_b32 v11, 16, v10")
                a("s_lshl_b32 s74, s78, 4")
                a("s_sub_u32 s74, s74, 1024")
                a("s_cmp_eq_u32 s72, 0")
                a("s_cselect_b32 s77, 1, -1")
                a("s_mul_i32 s75, s75, s77")
            if e != 0 and e < 16 - self.tailfree:
                a("s_waitcnt vmcnt(%d)" % ((W if e < 8 else self.winv) - 1))
        assert 16 - self.tailfree - self.winv >= 0
        self.stamp(2)
        if self.exp in (1, 2, 3):
            a("s_waitcnt vmcnt(0)")
            self.stamp(3)
            self.finish()
        a("s_mov_b32 m0, s64")
        a("s_barrier")
        self.stamp(3)
        a("ds_read_b128 %s, v9" % vr(32))
        a("ds_read_b64 v[60:61], v14 offset:%d" % (L_LOC - L_MISC))
        NT1 = 2
        a("s_waitcnt lgkmcnt(0)")
        for e in range(16):
            a("v_mfma_f32_16x16x32_bf16 %s, %s, %s, 0" % (vr(128 + 4 * e), vr(64 + 4 * e), vr(32)))
        a("v_readfirstlane_b32 s73, v60")
        for rho in range(4):
            subs = [x for x in range(4) if x != rho]
            for k, sub in enumerate(subs):
                for rp in range(4):
                    D = 128 + 4 * (4 * rho + rp)
                    src1 = D + rho if k == 0 else 36 + rp
                    a("v_add_f32_dpp v%d, v%d, v%d row_ror:%d row_mask:0xf bank_mask:0x%x" % (36 + rp, D + sub, src1, (4 * (rho - sub)) & 15, 1 << rho))
        self.rnd(36, 2, 40, MASK)
        for r in range(4):
            a("v_mul_f32 v%d, 0x%x, v%d" % (36 + r, SCALE, 36 + r))
        self.rnd(36, 2, 40, MASK)
        a("v_max3_f32 v42, v36, v37, v38")
        a("v_max_f32 v42, v42, v39")
        self.allreduce("v_max_f32", [42], [43], rors=(4, 8))
        a("ds_write_b32 v13, v42 offset:%d" % (L_MAX - L_MISC))
        a("buffer_load_dwordx4 v228, %s, s57 offen %s lds" % (q4(R_WO), self.nt))
        a("buffer_load_dwordx4 v228, %s, s99 offen offset:1024 %s lds" % (q4(R_WO), self.nt))
        a("s_waitcnt lgkmcnt(0)")
        a("s_barrier")
        a("ds_read_b128 %s, v14 offset:%d" % (vr(44), L_MAX - L_MISC))
        a("s_waitcnt lgkmcnt(0)")
        a("v_max3_f32 v42, v44, v45, v46")
        a("v_max_f32 v42, v42, v47")
        for r in range(4):
            a("v_sub_f32 v%d, v%d, v42" % (36 + r, 36 + r))
        for r in range(4):
            a("v_mul_f32 v%d, 0x%x, v%d" % (36 + r, LOG2E, 36 + r))
        for r in range(4):
            a("v_exp_f32 v%d, v%d" % (36 + r, 36 + r))
        self.pack(40, 36, 2)
        a("ds_write_b64 v15, %s" % vr(40, 2))
        a("v_add_f32 v36, v36, v37")
        a("v_add_f32 v38, v38, v39")
        a("v_add_f32 v36, v36, v38")
        self.allreduce("v_add_f32", [36], [37], rors=(4, 8))
        a("ds_write_b32 v13, v36 offset:%d" % (L_SUM - L_MISC))
        a("s_waitcnt vmcnt(%d) lgkmcnt(0)" % (4 + NT1))
        a("s_barrier")
        self.stamp(4)
        a("ds_read_b128 %s, v14 offset:%d" % (vr(44), L_SUM - L_MISC))
        for kg in range(8):
            a("ds_read_b128 %s, v16 offset:%d" % (vr(64 + 4 * kg), kg * 256))

        def vreads(kg):
            step, u = kg >> 1, kg & 1
            T0 = step * 4 + 2 * u
            for d in range(2):
                base = 128 + 8 * kg + 4 * d
                a("ds_read_b64_tr_b16 %s, v%d offset:%d" % (vr(base, 2), 17 + d, T0 * 4096))
                a("ds_read_b64_tr_b16 %s, v%d offset:%d" % (vr(base + 2, 2), 17 + d, (T0 + 1) * 4096))

        def vmfma(kg):
            for d in range(2):
                a("v_mfma_f32_16x16x32_bf16 %s, %s, %s, %s" % (vr(48 + 4 * d), vr(128 + 8 * kg + 4 * d), vr(64 + 4 * kg), "0" if kg == 0 else vr(48 + 4 * d)))
        a("s_waitcnt lgkmcnt(8)")
        a("v_add_f32 v44, v44, v45")
        a("v_add_f32 v46, v46, v47")
        a("v_add_f32 v43, v44, v46")
        a("s_lshl_b64 exec, 1, %s" % S_W)
        self.local_store("buffer_store_dwordx2 %s, v19, %s, s81 offen" % (vr(42, 2), q4(R_WS)))
        a("s_mov_b64 exec, -1")
        a("s_waitcnt lgkmcnt(0)")
        for kg in range(3):
            vreads(kg)
        a("s_waitcnt lgkmcnt(0)")
        for kg in range(3, 6):
            vreads(kg)
        for kg in range(3):
            vmfma(kg)
        a("s_waitcnt lgkmcnt(0)")
        for kg in range(3, 6):
            vmfma(kg)
        a("s_waitcnt vmcnt(%d)" % (NT1 + 1))
        a("s_barrier")
        self.stamp(5)
        vreads(6)
        vreads(7)
        a("s_waitcnt lgkmcnt(4)")
        vmfma(6)
        a("s_waitcnt lgkmcnt(0)")
        vmfma(7)
        a("s_mov_b32 exec_lo, 0x000f000f")
        a("s_mov_b32 exec_hi, 0x000f000f")
        self.pack(56, 48, 4)
        self.local_store("buffer_store_dwordx4 %s, v20, %s, s82 offen" % (vr(56), q4(R_WS)))
        a("s_mov_b64 exec, -1")
        a("s_barrier")
        self.stamp(6)
        a("s_cmp_lg_u32 s96, 0")
        a("s_cbranch_scc1 L_role_gm")
        self.role_w()
        self.setup_g()
        self.role_g()
        self.setup_wm()
        self.role_m()
        for l1, text, l2 in self.deferred:
            a("%s:" % l1)
            a(text)
            a("s_branch %s" % l2)
        self.mprep()

    def setup_common(self, part):
        a = self.a
        if part == 0:
            self.mksrd(R_V, 12, KSIZE['v'])
            self.mksrd(R_WS, P_WS, KSIZE['ws'])
            self.mksrd(R_X, P_X, KSIZE['x'])
            a("v_lshlrev_b32 v1, 1, v3")
            a("v_xor_b32 v1, v1, v7")
            a("v_lshlrev_b32 v1, 4, v1")
            a("v_lshl_add_u32 v5, v3, 8, v1")
            a("v_xor_b32 v6, 0x80, v5")
            a("v_bfe_u32 v1, v0, 2, 2")
            a("v_lshlrev_b32 v9, 8, v4")
            a("v_lshl_add_u32 v9, v3, 6, v9")
            a("v_lshl_add_u32 v9, v1, 4, v9")
            a("v_add_u32 v9, %d, v9" % L_Q)
            a("v_lshlrev_b32 v14, 4, v4")
            a("v_add_u32 v14, %d, v14" % L_MISC)
            a("s_lshl_b32 s77, %s, 2" % S_W)
            a("v_add_u32 v13, s77, v14")
            a("v_lshl_add_u32 v16, v3, 6, v14")
            a("v_add_u32 v16, %d, v16" % (L_P - L_MISC))
            a("v_lshl_add_u32 v15, v1, 9, v16")
            a("s_lshr_b32 s77, %s, 1" % S_W)
            a("s_lshl_b32 s77, s77, 8")
            a("s_and_b32 s78, %s, 1" % S_W)
            a("s_lshl_b32 s78, s78, 3")
            a("s_add_u32 s77, s77, s78")
            a("v_add_u32 v15, s77, v15")
        elif part == 1:
            a("v_lshrrev_b32 v17, 2, v0")
            a("v_and_b32 v18, 7, v17")
            a("s_lshl_b32 s77, %s, 1" % S_W)
            a("v_xor_b32 v18, s77, v18")
            a("v_lshlrev_b32 v18, 5, v18")
            a("v_lshl_add_u32 v17, v17, 8, v18")
            a("v_lshl_add_u32 v17, v4, 3, v17")
            a("v_xor_b32 v18, 32, v17")
            a("v_lshlrev_b32 v19, 8, v4")
            a("s_lshl_b32 s81, %s, 10" % S_G)
            a("s_lshl_b32 s77, %s, 3" % S_I)
            a("s_add_u32 s81, s81, s77")
            a("s_add_u32 s81, s81, %d" % WS_ST)
        else:
            a("v_lshlrev_b32 v20, 13, v4")
            a("v_lshl_add_u32 v20, v3, 8, v20")
            a("s_lshl_b32 s82, %s, 15" % S_G)
            a("s_lshr_b32 s77, %s, 2" % S_S)
            a("s_lshl_b32 s77, s77, 10")
            a("s_add_u32 s82, s82, s77")
            a("s_lshl_b32 s77, %s, 6" % S_B)
            a("s_add_u32 s82, s82, s77")
            a("s_and_b32 s77, %s, 3" % S_S)
            a("s_lshl_b32 s77, s77, 4")
            a("s_add_u32 s82, s82, s77")
            a("s_lshl_b32 s77, %s, 11" % S_W)
            a("s_add_u32 s82, s82, s77")
            a("s_add_u32 s82, s82, %d" % WS_A)
            a("v_and_b32 v12, 1, v3")
            a("v_lshlrev_b32 v1, 1, v12")
            a("v_xor_b32 v1, v1, v4")
            a("v_lshlrev_b32 v11, 4, v1")
            a("v_lshrrev_b32 v10, 2, v0")
            a("s_and_b32 s72, %s, 1" % S_I)
            a("v_lshlrev_b32 v228, 7, v10")
            a("v_lshl_add_u32 v228, v4, 4, v228")
            a("s_lshl_b32 s57, %s, 2" % S_G)
            a("s_add_u32 s57, s57, %s" % S_W)
            a("s_lshl_b32 s57, s57, 5")
            a("s_add_u32 s57, s57, %s" % S_I)
            a("s_lshl_b32 s57, s57, 12")
            a("s_add_u32 s99, s57, 1024")
            a("s_mov_b32 s64, %d" % L_DUMP)

    def setup_wm(self):
        a = self.a
        a("L_su_w:")
        a("s_mov_b32 s96, 0")
        self.mksrd(R_TA, P_WO, KSIZE['wo'])
        self.mksrd(R_TB, P_WD, KSIZE['wd'])
        self.mksrd(R_OUT, P_OUT, KSIZE['out'])
        a("s_mov_b32 s78, 1024")
        a("s_lshl_b32 s79, %s, 19" % S_G)
        a("s_lshl_b32 s77, %s, 6" % S_I)
        a("s_add_u32 s79, s79, s77")
        a("v_lshl_add_u32 v228, v10, 10, v11")
        a("s_lshl_b32 s77, %s, 2" % S_W)
        a("s_add_u32 s77, s77, s72")
        a("s_lshl_b32 s64, s77, 11")
        a("s_add_u32 s64, s64, %d" % L_T1)
        a("s_lshl_b32 s57, s77, 15")
        a("s_add_u32 s57, s57, s79")
        a("s_add_u32 s99, s57, 15360")
        a("s_mov_b32 s72, 1")
        a("v_min_u32 v195, 55, v0")
        a("v_lshlrev_b32 v195, 10, v195")
        a("s_lshl_b32 s56, %s, 4" % S_G)
        a("s_add_u32 s56, s56, %s" % S_I)
        a("s_lshl_b32 s56, s56, 8")
        a("s_add_u32 s56, s56, %d" % WS_B)
        a("s_lshl_b32 s66, %s, 2" % S_G)
        a("s_add_u32 s66, s66, %s" % S_W)
        a("s_lshl_b32 s65, s66, 8")
        a("s_add_u32 s65, s65, %d" % WS_ST)
        a("s_lshl_b32 s66, s66, 13")
        a("s_add_u32 s66, s66, %d" % WS_A)
        a("s_add_u32 s67, s66, 4096")
        a("v_and_b32 v1, 7, v0")
        a("v_lshlrev_b32 v1, 3, v1")
        a("v_lshl_add_u32 v21, v3, 6, v1")
        a("v_bfe_u32 v1, v0, 3, 2")
        a("v_lshlrev_b32 v27, 3, v1")
        a("v_bfe_u32 v1, v0, 1, 2")
        a("v_add_u32 v27, v27, v1")
        a("v_lshrrev_b32 v1, 5, v0")
        a("v_lshl_add_u32 v27, v1, 2, v27")
        a("v_and_b32 v1, 1, v0")
        a("v_lshl_add_u32 v27, v1, 5, v27")
        a("v_lshlrev_b32 v27, 10, v27")
        a("s_mul_i32 s58, %s, %d" % (S_W, 7 * 1024))
        a("s_add_u32 s77, s58, %d" % L_T2)
        a("v_lshlrev_b32 v28, 3, v0")
        a("v_add_u32 v28, s77, v28")
        a("s_add_u32 s58, s58, %d" % WS_C)
        a("s_add_u32 s59, s58, 4096")
        a("v_lshrrev_b32 v1, 2, v7")
        a("v_lshlrev_b32 v29, 9, v1")
        a("v_lshl_add_u32 v29, v3, 7, v29")
        a("v_lshl_add_u32 v29, v4, 4, v29")
        a("v_lshlrev_b32 v193, 2, v4")
        a("v_lshl_add_u32 v192, v1, 10, v193")
        a("v_lshl_add_u32 v193, v1, 6, v193")
        a("v_lshl_add_u32 v194, v3, 12, v193")
        a("v_lshrrev_b32 v1, 1, v3")
        a("v_lshlrev_b32 v30, 7, v1")
        a("v_lshl_add_u32 v30, v4, 5, v30")
        a("v_lshl_add_u32 v30, v12, 4, v30")
        a("s_lshl_b32 s77, %s, 8" % S_W)
        a("s_add_u32 s77, s77, %d" % L_RED2)
        a("v_add_u32 v30, s77, v30")
        a("v_lshlrev_b32 v31, 3, v7")
        a("v_add_u32 v31, %d, v31" % L_RED2)
        a("s_branch L_su_wm")
        a("L_su_m:")
        a("s_mov_b32 s96, 2")
        self.mksrd(R_TA, P_WMOD, KSIZE['wmod'])
        a("s_mov_b32 s78, 6144")
        a("s_lshl_b32 s77, %s, 3" % S_G)
        a("s_add_u32 s77, s77, %s" % S_I)
        a("s_sub_u32 s77, s77, 24")
        a("s_lshl_b32 s79, s77, 6")
        a("s_add_u32 s79, s79, 2048")
        a("s_lshl_b32 s56, s77, 8")
        a("s_add_u32 s56, s56, %d" % WS_M2)
        self.mksrd(R_TB, P_WU, KSIZE['wu'])
        a("s_cmp_eq_u32 %s, %d" % (S_G, self.mg_h))
        a("s_cselect_b32 s%d, 0, %d" % (R_TB + 2, KSIZE['wu']))
        a("s_cmp_gt_u32 %s, %d" % (S_G, self.mg_h))
        a("s_cselect_b32 s77, 1, 0")
        a("s_sub_u32 s65, %s, s77" % S_G)
        a("s_lshl_b32 s65, s65, 9")
        a("s_lshl_b32 s77, %s, 3" % S_S)
        a("s_add_u32 s77, s77, %s" % S_W)
        a("s_add_u32 s77, s77, 4")
        a("s_mul_i32 s77, s77, %d" % (8 * 3584))
        a("s_add_u32 s65, s65, s77")
        a("v_lshrrev_b32 v27, 3, v0")
        a("v_mul_u32_u24 v27, 3584, v27")
        a("v_and_b32 v1, 7, v0")
        a("v_lshl_add_u32 v27, v1, 6, v27")
        a("v_lshrrev_b32 v1, 2, v7")
        a("v_lshlrev_b32 v21, 10, v1")
        a("v_lshl_add_u32 v21, v3, 3, v21")
        a("s_lshl_b32 s77, %s, 8" % S_W)
        a("s_add_u32 s77, s77, %d" % L_SC)
        a("v_add_u32 v21, s77, v21")
        a("L_su_wm:")
        a("s_lshl_b32 s77, %s, 1" % S_W)
        a("s_add_u32 s77, s77, s72")
        a("s_lshl_b32 s80, s77, 12")
        a("s_add_u32 s80, s80, %d" % L_T1)
        a("s_lshl_b32 s75, s78, 6")
        a("s_mul_i32 s77, s77, s75")
        a("s_add_u32 s79, s79, s77")
        a("v_lshlrev_b32 v22, 6, v10")
        a("v_lshl_add_u32 v22, v12, 5, v22")
        a("v_lshl_add_u32 v22, v4, 3, v22")
        a("s_lshl_b32 s77, %s, 13" % S_W)
        a("s_add_u32 s77, s77, %d" % L_T1)
        a("v_add_u32 v22, s77, v22")
        a("v_xor_b32 v23, 32, v22")
        a("v_lshlrev_b32 v24, 2, v7")
        a("v_lshl_add_u32 v24, v3, 7, v24")
        a("s_lshl_b32 s77, %s, 9" % S_W)
        a("s_add_u32 s77, s77, %d" % L_RED)
        a("v_add_u32 v24, s77, v24")
        a("v_lshlrev_b32 v25, 3, v0")
        a("v_add_u32 v25, %d, v25" % L_RED)
        a("v_lshlrev_b32 v26, 2, v0")
        a("s_branch L_su_done")

    def setup_g(self):
        a = self.a
        a("L_su_g:")
        a("s_mov_b32 s96, 1")
        self.mksrd(R_TA, P_WG, KSIZE['wg'])
        self.mksrd(R_TB, P_WU, KSIZE['wu'])
        a("s_mov_b32 s78, 3584")
        a("s_cmp_gt_u32 %s, %d" % (S_G, self.mg_h))
        a("s_cselect_b32 s77, 1, 0")
        a("s_sub_u32 s77, %s, s77" % S_G)
        a("s_lshl_b32 s77, s77, 3")
        a("s_add_u32 s77, s77, %s" % S_I)
        a("s_sub_u32 s77, s77, 16")
        a("s_lshl_b32 s79, s77, 6")
        a("s_lshl_b32 s56, s77, 2")
        a("s_add_u32 s56, s56, %s" % S_W)
        a("s_lshl_b32 s56, s56, 7")
        a("s_add_u32 s56, s56, %d" % WS_C)
        a("s_lshl_b32 s77, s72, 2")
        a("s_add_u32 s77, s77, %s" % S_W)
        a("s_lshl_b32 s80, s77, 12")
        a("s_add_u32 s80, s80, %d" % L_T1)
        a("s_mul_i32 s77, s77, %d" % (64 * 3584))
        a("s_add_u32 s79, s79, s77")
        a("s_mov_b32 s75, %d" % (256 * 3584))
        a("v_lshrrev_b32 v1, 3, v7")
        a("v_lshrrev_b32 v21, 1, v3")
        a("v_cmp_eq_u32 vcc, v1, v21")
        a("v_and_b32 v1, 1, v0")
        a("v_lshlrev_b32 v1, 4, v1")
        a("v_mov_b32 v22, 0x3f80")
        a("v_lshlrev_b32 v1, v1, v22")
        a("v_cndmask_b32 v1, 0, v1, vcc")
        a("v_bfe_u32 v22, v0, 1, 2")
        for j in range(4):
            a("v_cmp_eq_u32 vcc, %d, v22" % j)
            a("v_cndmask_b32 v%d, 0, v1, vcc" % (224 + j))
        a("v_lshlrev_b32 v26, 4, v4")
        a("v_lshl_add_u32 v26, v12, 3, v26")
        a("v_lshl_add_u32 v26, v21, 2, v26")
        a("v_lshl_add_u32 v1, v21, 4, v7")
        a("v_lshlrev_b32 v27, 4, v1")
        a("v_lshl_add_u32 v27, v12, 3, v27")
        a("v_lshrrev_b32 v1, 2, v1")
        a("v_lshlrev_b32 v25, 8, v1")
        a("v_and_b32 v22, 1, v0")
        a("v_lshl_add_u32 v22, v22, 1, v12")
        a("v_lshl_add_u32 v22, v22, 6, v25")
        a("v_bfe_u32 v1, v0, 1, 1")
        a("v_lshl_add_u32 v22, v1, 3, v22")
        a("s_lshl_b32 s77, %s, 4" % S_W)
        a("s_add_u32 s77, s77, %d" % L_H2)
        a("v_add_u32 v22, s77, v22")
        a("v_lshl_add_u32 v25, v4, 4, v25")
        a("v_lshl_add_u32 v21, v12, 12, v25")
        a("v_lshl_add_u32 v25, v12, 3, v25")
        a("v_lshlrev_b32 v23, 6, v3")
        a("v_lshl_add_u32 v23, v4, 4, v23")
        a("v_add_u32 v23, %d, v23" % L_H2)
        a("v_lshlrev_b32 v24, 6, v10")
        a("v_lshl_add_u32 v24, v1, 15, v24")
        a("v_lshl_add_u32 v1, v12, 1, v1")
        a("v_xor_b32 v1, %s, v1" % S_W)
        a("v_lshl_add_u32 v24, v1, 4, v24")
        a("v_and_b32 v1, 1, v0")
        a("v_lshl_add_u32 v24, v1, 3, v24")
        a("v_add_u32 v24, %d, v24" % L_T1)
        a("s_lshl_b32 s77, %s, 6" % S_W)
        a("s_add_u32 s65, s77, %d" % WS_M2)
        a("s_add_u32 s66, s65, 4096")
        a("s_add_u32 s67, s65, 8192")
        for gp in range(4):
            a("s_add_u32 s%d, s77, %d" % (68 + gp, WS_B + gp * 8192))
        a("s_branch L_su_done")

    def gr_wait(self, t):
        a = self.a
        a("v_readfirstlane_b32 s97, v61")
        a("v_and_b32 v2, 7, v0")
        a("v_lshlrev_b32 v2, 7, v2")
        a("s_mov_b32 s98, %d" % WS_GR)
        a("s_mov_b32 s77, 0")
        a("L_gr_retry_%s:" % t)
        a("buffer_load_dword v62, v2, %s, s98 offen sc1" % q4(R_WS))
        a("s_waitcnt vmcnt(0)")
        a("v_cmp_ne_u32 vcc, s97, v62")
        a("s_cbranch_vccz L_gr_ok_%s" % t)
        self.spin_tail("L_gr_retry_%s" % t, "s77")
        a("L_gr_ok_%s:" % t)

    def wm_tr_reads(self, base=96):
        a = self.a
        for tau in range(2):
            for kk in range(4):
                for rd in range(2):
                    a("ds_read_b64_tr_b16 %s, v%d offset:%d" % (vr(base + 16 * tau + 4 * kk + 2 * rd, 2), 22 + tau, (2 * kk + rd) * 1024))
            if tau == 0:
                a("s_waitcnt lgkmcnt(4)")

    def wm_publish(self, r0, r1, done):
        a = self.a
        a("ds_write_b32 v24, v%d" % r0)
        a("ds_write_b32 v24, v%d offset:64" % r1)
        a("s_waitcnt lgkmcnt(0)")
        a("s_barrier")
        self.stamp(7)
        a("s_cmp_lg_u32 %s, 0" % S_W)
        a("s_cbranch_scc1 %s" % done)
        for h in range(4):
            a("ds_read_b64 %s, v25 offset:%d" % (vr(32 + 2 * h, 2), h * 512))
        a("s_waitcnt lgkmcnt(2)")
        a("v_pk_add_f32 v[32:33], v[32:33], v[34:35]")
        a("s_waitcnt lgkmcnt(0)")
        a("v_pk_add_f32 v[36:37], v[36:37], v[38:39]")
        a("v_pk_add_f32 v[32:33], v[32:33], v[36:37]")
        a("v_cvt_pk_bf16_f32 v32, v32, v33")
        a("buffer_store_dword v32, v26, %s, s56 offen sc1" % q4(R_WS))

    def role_w(self):
        a = self.a
        a("s_xor_b32 m0, s64, 0x800")
        a("s_xor_b32 s57, s57, 0x8000")
        a("s_add_u32 s99, s57, 15360")
        a("buffer_load_dwordx4 v10, %s, s57 offen %s lds" % (q4(R_TA), self.nt))
        a("buffer_load_dwordx4 v10, %s, s99 offen offset:1024 %s lds" % (q4(R_TA), self.nt))
        a("s_mov_b32 m0, s80")
        a("s_mov_b32 s78, 0")
        self.t_loads(R_TA, 10)

        def loads():
            a("buffer_load_dwordx2 %s, v21, %s, s65 offen sc1" % (vr(50, 2), q4(R_WS)))
            for e in range(8):
                a("buffer_load_dwordx4 %s, v8, %s, %s offen offset:%d sc1" % (vr(64 + 4 * e), q4(R_WS), "s66" if e < 4 else "s67", (e & 3) * 1024))
        loads()
        a("s_waitcnt vmcnt(9)")
        self.wm_tr_reads()
        a("s_branch L_w_in")
        a("L_w_retry:")
        loads()
        a("L_w_in:")
        a("s_waitcnt vmcnt(8)")
        a("v_max_f32_dpp v52, v50, v50 quad_perm:[1,0,3,2] row_mask:0xf bank_mask:0xf")
        a("v_max_f32_dpp v52, v52, v52 quad_perm:[2,3,0,1] row_mask:0xf bank_mask:0xf")
        a("v_max_f32_dpp v52, v52, v52 row_ror:4 row_mask:0xf bank_mask:0xf")
        a("v_sub_f32 v52, v50, v52")
        a("v_mul_f32 v52, 0x%x, v52" % LOG2E)
        a("v_exp_f32 v52, v52")
        a("v_mul_f32 v53, v52, v51")
        a("v_add_f32_dpp v53, v53, v53 quad_perm:[1,0,3,2] row_mask:0xf bank_mask:0xf")
        a("v_add_f32_dpp v53, v53, v53 quad_perm:[2,3,0,1] row_mask:0xf bank_mask:0xf")
        a("v_add_f32_dpp v53, v53, v53 row_ror:4 row_mask:0xf bank_mask:0xf")
        a("v_rcp_f32 v53, v53")
        a("v_mul_f32 v52, v52, v53")
        a("s_waitcnt lgkmcnt(0)")
        for e in range(8):
            kk, rg = e >> 1, e & 1
            a("s_waitcnt vmcnt(%d)" % (7 - e))
            for tau in range(2):
                acc = 32 + 8 * tau + 4 * rg
                a("v_mfma_f32_16x16x32_bf16 %s, %s, %s, %s" % (vr(acc), vr(64 + 4 * e), vr(96 + 16 * tau + 4 * kk), "0" if kk == 0 else vr(acc)))
        for s in range(8):
            for tau in range(2):
                a("%s v%d, v52, v%d row_newbcast:%d row_mask:0xf bank_mask:0xf" % ("v_mul_f32_dpp" if s == 0 else "v_fmac_f32_dpp", 48 + tau, 32 + 8 * tau + s, s))
        a("v_cmp_u_f32 vcc, v48, v49")
        a("s_cbranch_vccz L_w_ok")
        self.spin_tail("L_w_retry", "s78")
        a("L_w_ok:")
        self.wm_publish(48, 49, "L_w_pub_done")
        a("L_w_pub_done:")
        a("s_barrier")
        self.stamp(8)
        a("s_lshl_b32 s77, %s, 1" % S_I)
        a("s_and_b32 s78, %s, 1" % S_W)
        a("s_add_u32 s77, s77, s78")
        a("s_mul_i32 s77, s77, %d" % (56 * 1024))
        a("s_lshl_b32 s78, %s, 7" % S_G)
        a("s_add_u32 s77, s77, s78")
        a("s_cmp_lt_u32 %s, 2" % S_W)
        a("s_cbranch_scc1 L_w_notouch")
        a("buffer_load_dword v1, v195, %s, s77 offen %s" % (q4(R_TB), self.nt))
        a("L_w_notouch:")
        a("s_cmp_ge_u32 %s, 8" % S_I)
        a("s_cbranch_scc1 L_done")
        self.role_d()

    def role_d(self):
        a = self.a
        MASK = "s83"
        a("s_lshl_b32 s76, %s, 3" % S_G)
        a("s_add_u32 s76, s76, %s" % S_I)
        a("s_lshl_b32 s76, s76, 4")
        a("s_mul_i32 s78, %s, 7" % S_W)
        a("s_mov_b32 s77, %s" % S_I)
        a("s_barrier")
        for k in range(7):
            a("s_cmp_ge_u32 s77, 7")
            a("s_cselect_b32 s77, 0, s77")
            a("s_add_u32 s79, s78, s77")
            a("s_lshl_b32 s80, s79, 10")
            a("s_add_u32 m0, s80, %d" % L_T2)
            a("s_lshl_b32 s79, s79, 16")
            a("s_add_u32 s79, s79, s76")
            a("buffer_load_dwordx4 v27, %s, s79 offen %s lds" % (q4(R_TB), self.nt))
            a("s_add_u32 s77, s77, 1")
        a("s_cmp_lg_u32 %s, 0" % S_W)
        a("s_cbranch_scc1 L_d_nox")
        a("s_lshr_b32 s78, s76, 6")
        a("s_lshl_b32 s78, s78, 8")
        a("s_and_b32 s77, s76, 63")
        a("s_add_u32 s78, s78, s77")
        a("s_add_u32 s79, s78, %d" % WS_B)
        a("s_add_u32 s80, s79, 16384")
        a("s_add_u32 s81, s78, %d" % WS_M2)
        a("s_add_u32 s82, s81, %d" % (3 * 4096))
        a("buffer_load_dword v42, v192, %s, s76 offen" % q4(R_X))
        self.gr_wait("d")
        a("s_mov_b32 s77, 0")
        a("L_d_x_retry:")
        a("buffer_load_dword v40, v193, %s, s81 offen sc1" % q4(R_WS))
        a("buffer_load_dword v41, v193, %s, s82 offen sc1" % q4(R_WS))
        a("buffer_load_dword v32, v194, %s, s79 offen sc1" % q4(R_WS))
        a("buffer_load_dword v33, v194, %s, s80 offen sc1" % q4(R_WS))
        a("s_waitcnt vmcnt(0)")
        self.unpack(48, 32, 2, MASK)
        a("v_pk_add_f32 v[48:49], v[48:49], v[50:51]")
        self.allreduce("v_add_f32", [48, 49], [50, 51], rors=())
        self.unpack(50, 40, 3, MASK)
        a("v_pk_fma_f32 v[48:49], v[48:49], v[50:51], v[54:55]")
        a("v_pk_add_f32 v[50:51], v[48:49], v[52:53]")
        a("v_cmp_u_f32 vcc, v50, v51")
        a("s_cbranch_vccz L_d_nox")
        self.spin_tail("L_d_x_retry", "s77")
        a("L_d_nox:")
        a("s_waitcnt vmcnt(0)")
        for e in range(7):
            for rd in range(2):
                a("ds_read_b64_tr_b16 %s, v28 offset:%d" % (vr(96 + 4 * e + 2 * rd, 2), e * 1024 + rd * 512))
        a("s_mov_b32 s77, 0")
        a("s_barrier")
        self.stamp(9)
        a("L_d_retry:")
        for u in range(4):
            a("buffer_load_dwordx4 %s, v29, %s, %s offen offset:%d sc1" % (vr(64 + 4 * u), q4(R_WS), "s58" if u < 2 else "s59", (u & 1) * 2048))
        a("s_waitcnt lgkmcnt(0)")
        for e in range(7):
            if e & 1 == 0:
                a("s_waitcnt vmcnt(%d)" % (3 - (e >> 1)))
            acc = 32 + 4 * (e & 1)
            a("v_mfma_f32_16x16x32_bf16 %s, %s, %s, %s" % (vr(acc), vr(96 + 4 * e), vr(64 + 4 * (e >> 1)), "0" if e < 2 else vr(acc)))
        for r in range(4):
            a("v_add_f32_dpp v%d, v%d, v%d row_shl:8 row_mask:0xf bank_mask:0xf" % (44 + r, 36 + r, 32 + r))
        a("v_cmp_u_f32 vcc, v44, v44")
        a("s_and_b32 vcc_lo, vcc_lo, 0x000f000f")
        a("s_and_b32 vcc_hi, vcc_hi, 0x00f000f0")
        a("s_or_b32 s79, vcc_lo, vcc_hi")
        a("s_cbranch_scc0 L_d_ok")
        self.spin_tail("L_d_retry", "s77")
        a("L_d_ok:")
        a("s_mov_b32 exec_lo, 0x000f000f")
        a("s_mov_b32 exec_hi, 0x00f000f0")
        a("ds_write_b128 v30, %s" % vr(44))
        a("s_mov_b64 exec, -1")
        a("s_waitcnt lgkmcnt(0)")
        a("s_barrier")
        self.stamp(10)
        a("s_cmp_lg_u32 %s, 0" % S_W)
        a("s_cbranch_scc1 L_d_epoch")
        for p in range(8):
            a("ds_read_b64 %s, v31 offset:%d" % (vr(64 + 2 * p, 2), p * 128))
        for j in range(4):
            a("s_waitcnt lgkmcnt(%d)" % (6 - 2 * j))
            a("v_pk_add_f32 v[%d:%d], v[%d:%d], v[%d:%d]" % (64 + 4 * j, 65 + 4 * j, 64 + 4 * j, 65 + 4 * j, 66 + 4 * j, 67 + 4 * j))
        a("v_pk_add_f32 v[64:65], v[64:65], v[68:69]")
        a("v_pk_add_f32 v[72:73], v[72:73], v[76:77]")
        a("v_pk_add_f32 v[64:65], v[64:65], v[72:73]")
        a("v_pk_fma_f32 v[64:65], v[64:65], v[52:53], v[48:49]")
        a("v_cvt_pk_bf16_f32 v64, v64, v65")
        a("s_mov_b64 exec, 0xffff")
        a("buffer_store_dword v64, v192, %s, s76 offen" % q4(R_OUT))
        a("s_mov_b64 exec, -1")
        self.stamp(11)
        a("L_done:")
        self.finish()
        a("L_d_epoch:")
        a("s_lshl_b32 s77, s2, 2")
        a("s_add_u32 s77, s77, %s" % S_W)
        a("s_cmp_lg_u32 s77, 1")
        a("s_cbranch_scc1 L_done")
        a("s_mov_b32 s77, %d" % WS_E)
        a("s_mov_b64 exec, 1")
        a("buffer_store_dword v61, v8, %s, s77 offen sc1" % q4(R_WS))
        a("s_mov_b64 exec, -1")
        a("s_branch L_done")

    def role_g(self):
        a = self.a
        MASK = "s83"
        a("L_role_gm:")
        a("s_cmp_eq_u32 s96, 2")
        a("s_cbranch_scc1 L_role_m")
        a("s_cmp_eq_u32 %s, %d" % (S_G, self.mg_h))
        a("s_cbranch_scc1 L_done")
        a("s_mov_b32 m0, s80")
        self.t_loads(R_TA, 10)
        a("s_add_u32 m0, s80, 32768")
        a("s_xor_b32 s80, s80, 16384")
        a("s_barrier")
        self.t_loads(R_TB, 11)
        a("s_barrier")
        a("s_mov_b32 m0, s80")
        a("s_add_u32 s79, s79, s75")
        self.t_loads(R_TA, 10)
        a("s_add_u32 m0, s80, 32768")
        a("s_lshl_b32 s76, %s, 10" % S_W)
        self.t_loads(R_TB, 11)
        a("buffer_load_dwordx2 %s, v27, %s, s76 offen" % (vr(32, 2), q4(R_X)))
        a("buffer_load_dwordx2 %s, v27, %s, s76 offen offset:512" % (vr(34, 2), q4(R_X)))
        self.gr_wait("g")
        a("s_mov_b32 s79, 0")
        a("s_barrier")
        self.stamp(7)

        def mloads():
            for k, so in enumerate(("s65", "s66", "s67")):
                a("buffer_load_dwordx2 %s, v25, %s, %s offen sc1" % (vr(36 + 4 * k, 2), q4(R_WS), so))
                a("buffer_load_dwordx2 %s, v25, %s, %s offen offset:2048 sc1" % (vr(38 + 4 * k, 2), q4(R_WS), so))
        mloads()
        for t in range(16):
            for rd in range(2):
                a("ds_read_b64_tr_b16 %s, v24 offset:%d" % (vr(128 + 4 * t + 2 * rd, 2), (2 * t + rd) * 1024))
            if t % 4 == 3:
                a("s_waitcnt lgkmcnt(4)")
        a("s_branch L_g_m_in")
        a("L_g_m_retry:")
        mloads()
        a("L_g_m_in:")
        a("s_waitcnt vmcnt(0)")
        a("v_max3_u32 v1, v36, v37, v38")
        for j in range(39, 47, 2):
            a("v_max3_u32 v1, v1, v%d, v%d" % (j, j + 1))
        a("v_max_u32 v1, v1, v47")
        a("v_cmp_eq_u32 vcc, -1, v1")
        a("s_cbranch_vccz L_g_m_ok")
        self.spin_tail("L_g_m_retry", "s79")
        a("L_g_m_ok:")
        self.stamp(11)
        a("s_mov_b32 s79, 0")

        def loads():
            for e in range(8):
                gp, ac = e >> 1, e & 1
                a("buffer_load_dwordx4 %s, v21, %s, s%d offen offset:%d sc1" % (vr(64 + 4 * e), q4(R_WS), 68 + gp, ac * 2048))
        loads()
        self.unpack(192, 32, 16, MASK)
        for j in range(0, 8, 2):
            a("v_pk_add_f32 v[%d:%d], v[%d:%d], 1.0 op_sel_hi:[1,0]" % (216 + j, 217 + j, 216 + j, 217 + j))
        a("s_branch L_g_in")
        a("L_g_retry:")
        loads()
        a("L_g_in:")
        for e in range(8):
            a("s_waitcnt vmcnt(%d)" % (7 - e))
            acc = 32 + 4 * (e & 1)
            a("v_mfma_f32_16x16x32_bf16 %s, %s, %s, %s" % (vr(acc), vr(224), vr(64 + 4 * e), "0" if e < 2 else vr(acc)))
        a("v_cmp_u_f32 vcc, v32, v36")
        a("s_cbranch_vccz L_g_ok")
        self.spin_tail("L_g_retry", "s79")
        a("L_g_ok:")
        self.stamp(8)
        for j in range(0, 8, 2):
            a("v_pk_fma_f32 v[%d:%d], v[%d:%d], v[%d:%d], v[%d:%d]" % (32 + j, 33 + j, 32 + j, 33 + j, 200 + j, 201 + j, 192 + j, 193 + j))
        a("v_readfirstlane_b32 s78, v32")
        for j in range(8):
            a("v_subrev_f32 v%d, s78, v%d" % (32 + j, 32 + j))
        a("v_pk_add_f32 v[40:41], v[32:33], v[34:35]")
        a("v_pk_mul_f32 v[42:43], v[32:33], v[32:33]")
        a("v_pk_add_f32 v[48:49], v[36:37], v[38:39]")
        a("v_pk_fma_f32 v[42:43], v[34:35], v[34:35], v[42:43]")
        a("v_pk_add_f32 v[40:41], v[40:41], v[48:49]")
        a("v_pk_fma_f32 v[42:43], v[36:37], v[36:37], v[42:43]")
        a("v_add_f32 v40, v40, v41")
        a("v_pk_fma_f32 v[42:43], v[38:39], v[38:39], v[42:43]")
        a("v_add_f32 v41, v42, v43")
        self.allreduce("v_add_f32", [40, 41], [42, 43])
        a("v_mul_f32 v40, 0x3b000000, v40")
        a("v_mul_f32 v41, 0x3b000000, v41")
        a("v_fma_f32 v41, -v40, v40, v41")
        a("v_max_f32 v41, 0, v41")
        a("v_add_f32 v41, 0x%x, v41" % EPS)
        a("v_rsq_f32 v42, v41")
        a("v_mul_f32 v40, -v40, v42")
        for j in range(0, 8, 2):
            a("v_pk_fma_f32 v[%d:%d], v[%d:%d], v[42:43], v[40:41] op_sel_hi:[1,0,0]" % (32 + j, 33 + j, 32 + j, 33 + j))
        for j in range(0, 8, 2):
            a("v_pk_fma_f32 v[%d:%d], v[%d:%d], v[%d:%d], v[%d:%d]" % (32 + j, 33 + j, 32 + j, 33 + j, 216 + j, 217 + j, 208 + j, 209 + j))
        self.pack(40, 32, 4)
        a("ds_write_b64 v22, v[40:41]")
        a("ds_write_b64 v22, v[42:43] offset:2048")
        a("s_waitcnt lgkmcnt(0)")
        a("s_barrier")
        self.stamp(9)
        for t in range(12):
            a("ds_read_b128 %s, v23 offset:%d" % (vr(64 + 4 * t), t * 256))
        for t in range(16):
            if t < 4:
                a("s_waitcnt lgkmcnt(11)")
                a("ds_read_b128 %s, v23 offset:%d" % (vr(64 + 4 * (12 + t)), (12 + t) * 256))
            else:
                a("s_waitcnt lgkmcnt(%d)" % (15 - t))
            a("v_mfma_f32_16x16x32_bf16 %s, %s, %s, %s" % (vr(32), vr(128 + 4 * t), vr(64 + 4 * t), "0" if t == 0 else vr(32)))
        a("v_permlane32_swap_b32 v32, v34")
        a("v_permlane32_swap_b32 v33, v35")
        a("v_mul_f32 v32, 0x%x, v32" % NLOG2E)
        a("v_mul_f32 v33, 0x%x, v33" % NLOG2E)
        a("v_exp_f32 v32, v32")
        a("v_exp_f32 v33, v33")
        a("v_add_f32 v32, 1.0, v32")
        a("v_add_f32 v33, 1.0, v33")
        a("v_rcp_f32 v32, v32")
        a("v_rcp_f32 v33, v33")
        a("v_mul_f32 v32, v32, v34")
        a("v_mul_f32 v33, v33, v35")
        a("s_mov_b32 exec_lo, 0x000f000f")
        a("s_mov_b32 exec_hi, 0x000f000f")
        a("v_cvt_pk_bf16_f32 v32, v32, v33")
        a("buffer_store_dword v32, v26, %s, s56 offen sc1" % q4(R_WS))
        a("s_mov_b64 exec, -1")
        self.stamp(10)
        self.finish()

    def role_m(self):
        a = self.a
        a("L_role_m:")
        a("s_mov_b32 m0, s80")
        self.t_loads(R_TA, 10)
        a("s_add_u32 s79, s79, s75")
        a("s_xor_b32 m0, s80, 0x1000")
        a("s_barrier")
        self.t_loads(R_TA, 10)
        if self.helpg:
            a("s_barrier")
            a("buffer_load_dword v1, v27, %s, s65 offen %s" % (q4(R_TB), self.nt))
        for kk in range(4):
            a("ds_read2_b64 %s, v21 offset0:%d offset1:%d" % (vr(64 + 4 * kk), 8 * kk, 8 * kk + 4))
        a("s_waitcnt vmcnt(%d) lgkmcnt(0)" % (1 if self.helpg else 0))
        self.wm_tr_reads()
        a("s_waitcnt lgkmcnt(0)")
        for kk in range(4):
            for tau in range(2):
                acc = 32 + 4 * tau
                a("v_mfma_f32_16x16x32_bf16 %s, %s, %s, %s" % (vr(acc), vr(64 + 4 * kk), vr(96 + 16 * tau + 4 * kk), "0" if kk == 0 else vr(acc)))
        self.wm_publish(32, 36, "L_done")
        self.stamp(8)
        self.finish()

    def silu8(self, src, dst):
        a = self.a
        self.unpack(40, src, 4, "s83")
        for j in range(8):
            a("v_mul_f32 v%d, 0x%x, v%d" % (48 + j, NLOG2E, 40 + j))
        for j in range(8):
            a("v_exp_f32 v%d, v%d" % (48 + j, 48 + j))
        for j in range(8):
            a("v_add_f32 v%d, 1.0, v%d" % (48 + j, 48 + j))
        for j in range(8):
            a("v_rcp_f32 v%d, v%d" % (48 + j, 48 + j))
        for j in range(8):
            a("v_mul_f32 v%d, v%d, v%d" % (48 + j, 48 + j, 40 + j))
        self.pack(dst, 48, 4)

    def mload(self):
        a = self.a
        a("s_lshl_b32 s82, %s, 10" % S_W)
        a("v_and_b32 v12, 1, v3")
        a("v_lshlrev_b32 v1, 1, v12")
        a("v_xor_b32 v1, v1, v4")
        a("v_lshrrev_b32 v11, 2, v0")
        a("v_mul_u32_u24 v10, 6144, v11")
        a("v_lshl_add_u32 v10, v1, 4, v10")
        a("s_and_b32 s72, %s, 1" % S_I)
        a("s_lshl_b32 s77, %s, 1" % S_W)
        a("s_add_u32 s77, s77, s72")
        a("s_lshl_b32 s80, s77, 12")
        a("s_add_u32 m0, s80, %d" % L_M)
        a("s_mul_i32 s79, s77, %d" % (64 * 6144))
        a("s_lshl_b32 s78, %s, 6" % S_I)
        a("s_add_u32 s79, s79, s78")
        a("s_mov_b32 s74, %d" % (16 * 6144 - 1024))
        for d, nm in ((R_C, 'c'), (R_X, 'x'), (R_TA, 'wmod')):
            a("s_mov_b32 s%d, %d" % (d + 2, KSIZE[nm]))
            a("s_mov_b32 s%d, 0x00020000" % (d + 3))
        a("s_waitcnt lgkmcnt(0)")
        for d, p in ((R_C, P_C), (R_X, P_X), (R_TA, P_WMOD)):
            a("s_mov_b64 s[%d:%d], s[%d:%d]" % (d, d + 1, p, p + 1))
        a("buffer_load_dwordx4 %s, v8, %s, s82 offen" % (vr(24), q4(R_C)))
        a("buffer_load_dwordx4 %s, v8, %s, s82 offen" % (vr(28), q4(R_X)))
        if self.cdelay:
            a("s_sleep %d" % self.cdelay)
        self.t_loads(R_TA, 10)
        a("s_xor_b32 s80, s80, 0x1000")
        a("s_add_u32 m0, s80, %d" % L_M)
        a("s_lshr_b32 s77, s80, 12")
        a("s_mul_i32 s79, s77, %d" % (64 * 6144))
        a("s_add_u32 s79, s79, s78")
        a("s_add_u32 s82, s82, %d" % L_SC)
        a("v_add_u32 v13, s82, v8")
        a("s_waitcnt vmcnt(5)")
        self.silu8(24, 24)
        a("ds_write_b128 v13, %s" % vr(24))
        self.t_loads(R_TA, 10)
        MASK = "s83"
        if self.stamps:
            a("s_mov_b32 s%d, s100" % STAMP0)
        self.stamp(7)
        a("s_waitcnt vmcnt(8)")
        self.unpack(40, 28, 4, MASK)
        a("v_pk_add_f32 v[48:49], v[40:41], v[42:43]")
        a("v_pk_add_f32 v[50:51], v[44:45], v[46:47]")
        a("v_pk_add_f32 v[48:49], v[48:49], v[50:51]")
        a("v_add_f32 v48, v48, v49")
        self.allreduce("v_add_f32", [48], [49])
        a("v_mul_f32 v48, 0x3b000000, v48")
        for j in range(8):
            a("v_sub_f32 v%d, v%d, v48" % (52 + j, 40 + j))
        a("v_mul_f32 v49, v52, v52")
        for j in range(1, 8):
            a("v_fmac_f32 v49, v%d, v%d" % (52 + j, 52 + j))
        self.allreduce("v_add_f32", [49], [50])
        a("v_mul_f32 v49, 0x3b000000, v49")
        self.rnd(48, 1, 50, MASK)
        a("v_add_f32 v49, 0x%x, v49" % EPS)
        self.rnd(48, 1, 50, MASK)
        a("v_sqrt_f32 v49, v49")
        self.rnd(48, 1, 50, MASK)
        a("v_rcp_f32 v49, v49")
        for j in range(8):
            a("v_sub_f32 v%d, v%d, v48" % (40 + j, 40 + j))
        self.rnd(40, 4, 52, MASK)
        for j in range(8):
            a("v_mul_f32 v%d, v%d, v49" % (40 + j, 40 + j))
        self.pack(28, 40, 4)
        a("ds_write_b128 v13, %s offset:%d" % (vr(28), L_N - L_SC))
        a("v_lshrrev_b32 v1, 2, v7")
        a("v_lshlrev_b32 v21, 10, v1")
        a("v_lshl_add_u32 v21, v3, 3, v21")
        a("s_lshl_b32 s77, %s, 8" % S_W)
        a("s_add_u32 s77, s77, %d" % L_SC)
        a("v_add_u32 v21, s77, v21")
        a("v_lshlrev_b32 v22, 6, v11")
        a("v_lshl_add_u32 v22, v12, 5, v22")
        a("v_lshl_add_u32 v22, v4, 3, v22")
        a("s_lshl_b32 s77, %s, 13" % S_W)
        a("s_add_u32 s77, s77, %d" % L_M)
        a("v_add_u32 v22, s77, v22")
        a("v_xor_b32 v23, 32, v22")
        a("v_lshlrev_b32 v20, 2, v7")
        a("v_lshl_add_u32 v20, v3, 7, v20")
        a("s_lshl_b32 s77, %s, 9" % S_W)
        a("s_add_u32 s77, s77, %d" % L_RED)
        a("v_add_u32 v20, s77, v20")
        a("s_waitcnt lgkmcnt(0)")
        self.stamp(8)
        a("s_barrier")
        if self.stamps:
            a("s_mov_b32 s100, s%d" % STAMP0)

    def mprep(self):
        a = self.a
        a("L_mcomp:")
        for kk in range(4):
            a("ds_read2_b64 %s, v21 offset0:%d offset1:%d" % (vr(40 + 4 * kk), 8 * kk, 8 * kk + 4))
        self.stamp(9)
        a("s_waitcnt vmcnt(4) lgkmcnt(0)")
        self.stamp(10)
        self.wm_tr_reads(128)
        for tau in range(2):
            a("s_waitcnt lgkmcnt(%d)" % (8 - 8 * tau))
            for kk in range(4):
                acc = 32 + 4 * tau
                a("v_mfma_f32_16x16x32_bf16 %s, %s, %s, %s" % (vr(acc), vr(40 + 4 * kk), vr(128 + 16 * tau + 4 * kk), "0" if kk == 0 else vr(acc)))
        a("ds_write_b32 v20, v32")
        a("ds_write_b32 v20, v36 offset:64")
        a("s_waitcnt lgkmcnt(0)")
        self.stamp(11)
        a("s_barrier")
        a("s_branch L_stream2")

    def front_wave(self):
        a = self.a
        MASK = "s83"
        a("L_front:")
        a("s_setprio 3")
        for j in range(4):
            a("v_mov_b32 v%d, -1" % (32 + j))
        a("v_mov_b32 v13, 0")
        a("v_lshlrev_b32 v12, 4, v7")
        a("v_lshl_add_u32 v12, v3, 13, v12")
        a("s_lshl_b32 s76, %s, 5" % S_G)
        a("s_add_u32 s76, s76, %s" % S_I)
        a("s_lshl_b32 s82, s76, 10")
        a("s_add_u32 s82, s82, %d" % WS_A)
        a("s_lshl_b32 s81, %s, 15" % S_G)
        a("s_lshl_b32 s77, %s, 8" % S_I)
        a("s_add_u32 s81, s81, s77")
        a("s_add_u32 s81, s81, %d" % WS_QP)
        a("s_mov_b32 s80, %d" % WS_E)
        a("s_lshl_b32 s77, %s, 10" % S_I)
        a("s_lshl_b32 s56, %s, 12" % S_G)
        a("s_add_u32 s78, s56, %d" % WS_B)
        a("s_add_u32 s56, s56, %d" % (WS_C - 4096))
        a("s_cmp_ge_u32 %s, 4" % S_I)
        a("s_cselect_b32 s78, s56, s78")
        a("s_lshl_b32 s56, %s, 11" % S_G)
        a("s_add_u32 s56, s56, %d" % (WS_M2 - 8192))
        a("s_cmp_ge_u32 %s, 8" % S_I)
        a("s_cselect_b32 s78, s56, s78")
        a("s_lshl_b32 s56, %s, 10" % S_G)
        a("s_add_u32 s56, s56, %d" % (WS_ST - 10240))
        a("s_cmp_ge_u32 %s, 10" % S_I)
        a("s_cselect_b32 s78, s56, s78")
        a("s_cmp_ge_u32 %s, 11" % S_I)
        a("s_cselect_b32 s78, 0x40000000, s78")
        a("s_add_u32 s78, s78, s77")
        for d, nm in ((R_WS, 'ws'), (R_C, 'c')):
            a("s_mov_b32 s%d, %d" % (d + 2, KSIZE[nm]))
            a("s_mov_b32 s%d, 0x00020000" % (d + 3))
        a("s_waitcnt lgkmcnt(0)")
        for d, p in ((R_WS, P_WS), (R_C, P_C)):
            a("s_mov_b64 s[%d:%d], s[%d:%d]" % (d, d + 1, p, p + 1))
        a("buffer_load_dword v15, v13, %s, s80 offen sc1" % q4(R_WS))
        if self.stamps:
            a("s_mov_b32 s%d, s100" % STAMP0)
            for k in range(1, 12):
                a("s_mov_b32 s%d, 0" % (STAMP0 + k))

        def make_tag():
            a("v_readfirstlane_b32 s73, v15")
            a("s_mul_i32 s73, s73, %d" % LCG_A)
            a("s_add_u32 s73, s73, %d" % LCG_C)

        def post_ids():
            a("s_getreg_b32 s72, hwreg(HW_REG_XCC_ID, 0, 4)")
            if self.force_remote:
                a("s_and_b32 s72, %s, 15" % S_I)
            a("s_lshl_b32 s60, %s, 8" % S_G)
            a("s_add_u32 s60, s60, %d" % WS_IDC)
            a("s_lshl_b32 s77, %s, 2" % S_I)
            a("s_add_u32 s77, s77, s60")
            a("s_lshl_b32 s76, s76, 7")
            a("s_add_u32 s76, s76, %d" % WS_IDR)
            a("s_waitcnt vmcnt(0)")
            make_tag()
            a("s_xor_b32 s72, s72, s73")
            a("v_mov_b32 v22, s72")
            a("s_mov_b64 exec, 1")
            a("buffer_store_dword v22, v13, %s, s77 offen" % q4(R_WS))
            a("buffer_store_dword v22, v13, %s, s76 offen sc1" % q4(R_WS))
            if self.warm:
                a("s_mov_b32 exec_lo, 0x01010101")
                a("s_mov_b32 exec_hi, 0x01010101")
                a("buffer_load_dword v14, v8, %s, s82 offen sc1" % q4(R_WS))
                a("buffer_load_dword v14, v12, %s, s81 offen sc1" % q4(R_WS))
                a("s_cmp_eq_u32 %s, 10" % S_I)
                a("s_cselect_b32 s78, s78, 0x40000000")
                a("buffer_load_dword v14, v8, %s, s78 offen sc1" % q4(R_WS))
            a("s_mov_b64 exec, -1")

        a("s_cmp_eq_u32 %s, %d" % (S_G, self.mg_h))
        a("s_cbranch_scc1 L_f_m")
        a("s_cmp_lt_u32 %s, 24" % S_I)
        a("s_cbranch_scc1 L_f_q")
        for b in range(4):
            a("buffer_load_dwordx4 %s, v8, %s, 0 offen offset:%d" % (vr(208 + 4 * b), q4(R_C), b * 1024))
        a("L_f_q:")
        a("buffer_store_dwordx4 %s, v8, %s, s82 offen sc1" % (vr(32), q4(R_WS)))
        a("buffer_store_dwordx4 %s, v12, %s, s81 offen sc1" % (vr(32), q4(R_WS)))
        a("buffer_store_dwordx4 %s, v8, %s, s78 offen sc1" % (vr(32), q4(R_WS)))
        a("s_barrier")
        post_ids()
        a("L_f_q2:")
        self.stamp(4)
        a("v_lshrrev_b32 v1, 2, v7")
        a("v_lshlrev_b32 v16, 9, v1")
        a("v_lshl_add_u32 v16, v3, 6, v16")
        a("v_lshl_add_u32 v16, v4, 4, v16")
        a("s_lshl_b32 s61, %s, 11" % S_B)
        a("s_add_u32 s61, s61, %d" % WS_H)
        a("s_add_u32 s57, s61, 8192")
        a("v_and_b32 v19, 31, v0")
        a("v_lshlrev_b32 v20, 7, v19")
        a("v_lshlrev_b32 v19, 2, v19")

        def h_loads():
            for e in range(4):
                a("buffer_load_dwordx4 %s, v16, %s, %s offen offset:%d sc1" % (vr(40 + 4 * e), q4(R_WS), "s61" if e < 2 else "s57", (e & 1) * 256))
            a("buffer_load_dword v23, v19, %s, s60 offen sc1" % q4(R_WS))
        a("v_lshlrev_b32 v18, 13, v4")
        a("v_lshl_add_u32 v18, v1, 6, v18")
        a("v_lshl_add_u32 v18, v3, 4, v18")
        a("s_lshl_b32 s62, %s, 2" % S_G)
        a("s_add_u32 s62, s62, %s" % S_B)
        a("s_lshl_b32 s62, s62, 13")
        a("s_add_u32 s62, s62, %d" % WS_QP)
        a("s_add_u32 s63, s62, 4096")
        a("s_lshl_b32 s59, %s, 12" % S_G)
        a("s_add_u32 s59, s59, %d" % WS_IDR)
        a("v_lshrrev_b32 v36, 2, v0")
        a("v_lshlrev_b32 v36, 7, v36")
        a("v_bfe_u32 v1, v0, 3, 2")
        a("v_lshl_add_u32 v36, v1, 5, v36")
        a("v_lshl_add_u32 v36, v4, 3, v36")
        a("v_add_u32 v36, %d, v36" % L_WQ)
        for tau in range(1, 4):
            a("v_xor_b32 v%d, %d, v36" % (36 + tau, 32 * tau))
        a("v_lshlrev_b32 v17, 3, v0")
        a("v_add_u32 v17, %d, v17" % L_Q)
        a("s_mov_b32 s79, 0")
        for tau in range(4):
            for kk in range(4):
                for rd in range(2):
                    a("ds_read_b64_tr_b16 %s, v%d offset:%d" % (vr(128 + 16 * tau + 4 * kk + 2 * rd, 2), 36 + tau, kk * 4096 + rd * 2048))
            a("s_waitcnt lgkmcnt(4)")
        if self.sent:
            a("s_lshl_b32 s77, %s, 6" % S_G)
            a("s_add_u32 s77, s77, s61")
            a("s_add_u32 s68, s%d, s77" % P_WS)
            a("s_addc_u32 s69, s%d, 0" % (P_WS + 1))
            a("L_sent:")
            for e in range(8):
                a("s_load_dword s%d, s[68:69], %d glc" % (44 + e, (e >> 2) * 8192 + (e & 3) * 512 + 4))
            a("s_waitcnt lgkmcnt(0)")
            for e in range(8):
                a("s_xor_b32 s%d, s%d, s73" % (44 + e, 44 + e))
            a("s_or_b64 s[44:45], s[44:45], s[46:47]")
            a("s_or_b64 s[48:49], s[48:49], s[50:51]")
            a("s_or_b64 s[44:45], s[44:45], s[48:49]")
            a("s_cbranch_scc0 L_sent_ok")
            self.spin_tail("L_sent", "s79")
            a("L_sent_ok:")
            self.stamp(7)
            a("s_mov_b32 s79, 0")
        a("L_h_retry:")
        h_loads()
        a("s_waitcnt vmcnt(0) lgkmcnt(0)")
        a("v_min3_u32 v1, v41, v43, v45")
        a("v_max3_u32 v2, v41, v43, v45")
        a("v_min3_u32 v1, v1, v47, v49")
        a("v_max3_u32 v2, v2, v47, v49")
        a("v_min3_u32 v1, v1, v51, v53")
        a("v_max3_u32 v2, v2, v51, v53")
        a("v_min3_u32 v1, v1, v55, s73")
        a("v_max3_u32 v2, v2, v55, s73")
        a("v_cmp_ne_u32 vcc, v1, v2")
        a("s_cbranch_vccz L_h_ok")
        self.spin_tail("L_h_retry", "s79")
        a("L_h_ok:")
        self.stamp(5)
        for j in range(8):
            a("v_and_b32 v%d, %s, v%d" % (41 + 2 * j, MASK, 40 + 2 * j))
            a("v_lshlrev_b32 v%d, 16, v%d" % (40 + 2 * j, 40 + 2 * j))
        for j in range(0, 8, 2):
            a("v_pk_add_f32 v[%d:%d], v[%d:%d], v[%d:%d]" % (40 + j, 41 + j, 40 + j, 41 + j, 48 + j, 49 + j))
        self.pack(26, 40, 4)
        for tau in range(4):
            for kk in range(4):
                a("v_mfma_f32_16x16x32_bf16 %s, %s, %s, 0" % (vr(64 + 16 * tau + 4 * kk), vr(128 + 16 * tau + 4 * kk), vr(26)))
        a("v_cmp_ne_u32 vcc, s72, v23")
        a("s_mov_b32 s58, 1")
        a("s_cbranch_vccnz L_id_slow")
        a("L_id_ok:")
        for tau in range(4):
            kks = [x for x in range(4) if x != tau]
            for k, kk in enumerate(kks):
                for r in range(4):
                    src1 = 64 + 16 * tau + 4 * tau + r if k == 0 else 32 + r
                    a("v_add_f32_dpp v%d, v%d, v%d row_ror:%d row_mask:0xf bank_mask:0x%x" % (32 + r, 64 + 16 * tau + 4 * kk + r, src1, (4 * (tau - kk)) & 15, 1 << tau))
        a("s_cmp_eq_u32 s58, 0")
        a("s_cbranch_scc1 L_qp_remote")
        a("buffer_store_dwordx4 %s, v18, %s, s81 offen" % (vr(32), q4(R_WS)))
        a("L_qp_done:")
        self.stamp(3)
        a("s_cmp_lg_u32 %s, 0" % S_I)
        a("s_cbranch_scc1 L_f_nogr")
        a("s_lshl_b32 s77, %s, 7" % S_G)
        a("s_add_u32 s77, s77, %d" % WS_GR)
        a("v_mov_b32 v22, s73")
        a("s_mov_b64 exec, 1")
        a("buffer_store_dword v22, v13, %s, s77 offen sc1" % q4(R_WS))
        a("s_mov_b64 exec, -1")
        a("L_f_nogr:")
        a("s_cmp_eq_u32 %s, %d" % (S_G, self.mg_h))
        a("s_cbranch_scc1 L_f_nos2")
        a("s_cmp_ge_u32 %s, 24" % S_I)
        a("s_cbranch_scc1 L_f_silu")
        a("L_f_nos2:")
        if self.qsleep:
            a("s_sleep %d" % self.qsleep)
        a("L_f_gather:")
        a("s_mov_b32 s79, 0")
        a("L_q_retry:")
        for e in range(8):
            a("buffer_load_dwordx4 %s, v8, %s, %s offen offset:%d sc1" % (vr(64 + 4 * e), q4(R_WS), "s62" if e < 4 else "s63", (e & 3) * 1024))
        a("s_waitcnt vmcnt(0)")
        for st in (16, 8):
            for j in range(0, st, 2):
                a("v_pk_add_f32 v[%d:%d], v[%d:%d], v[%d:%d]" % (64 + j, 65 + j, 64 + j, 65 + j, 64 + st + j, 65 + st + j))
        a("v_pk_add_f32 v[72:73], v[64:65], v[66:67]")
        a("v_pk_add_f32 v[74:75], v[68:69], v[70:71]")
        a("v_pk_add_f32 v[72:73], v[72:73], v[74:75]")
        a("v_cmp_u_f32 vcc, v72, v73")
        a("s_cbranch_vccz L_q_ok")
        self.spin_tail("L_q_retry", "s79")
        a("L_q_ok:")
        self.pack(28, 64, 4)
        a("ds_write_b64 v17, v[28:29]")
        a("ds_write_b64 v17, v[30:31] offset:512")
        a("v_mov_b32 v24, s58")
        a("v_mov_b32 v25, s73")
        a("v_mov_b32 v1, %d" % L_LOC)
        a("ds_write_b64 v1, v[24:25]")
        a("s_waitcnt lgkmcnt(0)")
        self.stamp(6)
        if self.stamps:
            a("s_barrier")
        self.finish()
        a("L_qp_remote:")
        a("buffer_store_dwordx4 %s, v18, %s, s81 offen sc1" % (vr(32), q4(R_WS)))
        a("s_branch L_qp_done")
        a("L_id_slow:")
        a("s_mov_b32 s79, 0")
        a("L_id_again:")
        a("buffer_load_dword v23, v19, %s, s60 offen sc1" % q4(R_WS))
        a("s_waitcnt vmcnt(0)")
        a("v_cmp_ne_u32 vcc, s72, v23")
        a("s_cbranch_vccz L_id_ok")
        a("s_add_u32 s79, s79, 1")
        a("s_cmp_lt_u32 s79, 3")
        a("s_cbranch_scc1 L_id_again")
        a("L_id_retry:")
        a("buffer_load_dword v23, v20, %s, s59 offen sc1" % q4(R_WS))
        a("s_waitcnt vmcnt(0)")
        a("v_xor_b32 v1, s73, v23")
        a("v_cmp_lt_u32 vcc, 15, v1")
        a("s_cbranch_vccz L_id_all")
        self.spin_tail("L_id_retry", "s79")
        a("L_id_all:")
        a("v_cmp_ne_u32 vcc, s72, v23")
        a("s_cbranch_vccz L_id_ok")
        a("s_mov_b32 s58, 0")
        a("s_branch L_id_ok")
        a("L_f_silu:")
        a("v_add_u32 v21, %d, v8" % L_SC)
        a("s_mov_b32 s77, 0")
        a("L_f_silu_l:")
        self.silu8(208, 24)
        a("ds_write_b128 v21, %s" % vr(24))
        for j in range(12):
            a("v_mov_b32 v%d, v%d" % (208 + j, 212 + j))
        a("v_add_u32 v21, 1024, v21")
        a("s_add_u32 s77, s77, 1")
        a("s_cmp_lt_u32 s77, 4")
        a("s_cbranch_scc1 L_f_silu_l")
        a("s_branch L_f_gather")
        a("L_f_m:")
        a("v_lshrrev_b32 v1, 3, v0")
        a("v_and_b32 v18, 1, v0")
        a("v_lshl_add_u32 v1, v1, 1, v18")
        a("v_bfe_u32 v19, v0, 1, 2")
        a("v_lshlrev_b32 v16, 3, v1")
        a("v_lshl_add_u32 v16, v19, 7, v16")
        a("v_add_u32 v16, %d, v16" % L_RED)
        a("v_lshlrev_b32 v18, 2, v1")
        a("v_lshl_add_u32 v18, v19, 10, v18")
        a("s_and_b32 s77, %s, 15" % S_I)
        a("s_lshl_b32 s77, s77, 6")
        a("s_add_u32 s77, s77, %d" % L_N)
        a("v_add_u32 v18, s77, v18")
        a("v_lshlrev_b32 v19, 3, v0")
        a("s_lshl_b32 s62, %s, 9" % S_I)
        a("s_add_u32 s62, s62, %d" % WS_H)
        a("s_barrier")
        a("ds_read_b32 v20, v18")
        a("buffer_store_dwordx4 %s, v8, %s, s82 offen sc1" % (vr(32), q4(R_WS)))
        a("buffer_store_dwordx4 %s, v12, %s, s81 offen sc1" % (vr(32), q4(R_WS)))
        a("buffer_store_dwordx4 %s, v8, %s, s78 offen sc1" % (vr(32), q4(R_WS)))
        a("s_waitcnt vmcnt(3)")
        make_tag()
        a("v_mov_b32 v25, s73")
        a("s_waitcnt lgkmcnt(0)")
        self.unpack(48, 20, 1, MASK)
        self.stamp(1)
        a("s_cmp_lt_u32 %s, 16" % S_I)
        a("s_barrier")
        for h in range(4):
            a("ds_read_b64 %s, v16 offset:%d" % (vr(64 + 2 * h, 2), h * 512))
        a("s_waitcnt lgkmcnt(2)")
        a("v_pk_add_f32 v[64:65], v[64:65], v[66:67]")
        a("s_waitcnt lgkmcnt(0)")
        a("v_pk_add_f32 v[68:69], v[68:69], v[70:71]")
        a("v_pk_add_f32 v[64:65], v[64:65], v[68:69]")
        a("s_cbranch_scc1 L_f_h_sa")
        self.rnd(64, 1, 40, MASK)
        a("v_pk_add_f32 v[64:65], v[64:65], 1.0 op_sel_hi:[1,0]")
        self.rnd(64, 1, 40, MASK)
        a("v_pk_mul_f32 v[64:65], v[64:65], v[48:49]")
        a("L_f_h_sa:")
        a("v_cvt_pk_bf16_f32 v24, v64, v65")
        a("buffer_store_dwordx2 v[24:25], v19, %s, s62 offen sc1" % q4(R_WS))
        self.stamp(2)
        a("s_barrier")
        post_ids()
        a("s_branch L_f_q2")

    def stamps_out(self):
        a = self.a
        a("L_stamps:")
        a("s_waitcnt vmcnt(0)")
        if self.pwg >= 0:
            a("s_cmp_lg_u32 s2, %d" % self.pwg)
            a("s_cbranch_scc1 L_exit")
            a("s_cmp_lg_u32 %s, %d" % (S_W, self.pwave))
            a("s_cbranch_scc1 L_exit")
            a("s_sub_u32 s76, s%d, s%d" % (STAMP0 + self.pk, STAMP0))
            a("s_mul_i32 s76, s76, 10")
            a("s_min_u32 s76, s76, 100000")
            a("s_add_u32 s76, s76, 10000")
            if self.pwave == 4:
                for _ in range(5):
                    a("s_barrier")
            a("L_pspin:")
            a("s_memrealtime s[100:101]")
            a("s_waitcnt lgkmcnt(0)")
            a("s_sub_u32 s77, s100, s%d" % STAMP0)
            a("s_cmp_lt_u32 s77, s76")
            a("s_cbranch_scc1 L_pspin")
            a("s_endpgm")
        a("s_lshl_b32 s76, s2, 3")
        a("s_add_u32 s76, s76, %s" % S_W)
        a("s_lshl_b32 s76, s76, 6")
        a("s_add_u32 s76, s76, %d" % WS_STAMP)
        a("v_mov_b32 v1, 0")
        for k in range(12):
            a("v_writelane_b32 v1, s%d, %d" % (STAMP0 + k, k))
        a("v_lshlrev_b32 v2, 2, v0")
        a("s_mov_b64 exec, 0xffff")
        a("buffer_store_dword v1, v2, %s, s76 offen" % q4(R_WS))
        a("s_endpgm")

    def build(self):
        a = self.a
        self.prologue()
        self.main_wave()
        self.front_wave()
        if self.stamps:
            self.stamps_out()
        a("L_exit:")
        a("L_last:")
        a("s_endpgm")
        lines, n = hazard.fix(a.lines)
        sys.stderr.write("hazard pass inserted %d wait states, %d lines\n" % (n, len(lines)))
        return kernel_file("\n".join(lines) + "\n", 256, 320, LDS_BYTES, 232)


if __name__ == "__main__":
    kw = {}
    out = sys.argv[1]
    for x in sys.argv[2:]:
        k, v = x.split("=")
        kw[k] = int(v) if v.lstrip("-").isdigit() else v
    open(out, "w").write(Gen(**kw).build())
```

```python
import sys
from asmlib import *
import hazard

WS_B, WS_C, WS_M2, WS_ST = 0x0, 0x8000, 0x10000, 0x14000
WS_H, WS_E, WS_IDC, WS_IDR, WS_A, WS_QP = 0x18000, 0x1C000, 0x1D000, 0x20000, 0x40000, 0x80000
WS_GR = 0x1E000
WS_STAMP = 0x100000
L_V = 0
L_WQ = 65536
L_M = 81920
L_T1 = 65536
L_T2 = 98304
L_MISC = 131072
L_Q = L_MISC
L_SC = L_MISC + 1024
L_N = L_SC + 4096
L_H2 = L_SC
L_P = L_N + 4096
L_RED = L_P + 2048
L_RED2 = L_RED + 2048
L_MAX = L_RED2 + 1024
L_SUM = L_MAX + 64
L_LOC = L_SUM + 64
L_DUMP = L_MISC + 16384
LDS_BYTES = L_DUMP + 2048
assert L_LOC + 64 <= LDS_BYTES

LOG2E = 0x3FB8AA3B
NLOG2E = 0xBFB8AA3B
SCALE = 0x3DB504F3
EPS = 0x3727C5AC
SPIN_MAX = 0x10000

S_G, S_I, S_B, S_S, S_W = "s4", "s5", "s6", "s7", "s3"
P_X, P_WQ, P_WO, P_WG, P_WU = 8, 14, 16, 20, 22
P_WD, P_C, P_WMOD, P_OUT, P_DBG, P_WS = 24, 26, 28, 30, 32, 34
R_WS, R_K, R_V, R_TA, R_TB, R_WD, R_X, R_C, R_OUT, R_DBG = 36, 40, 44, 48, 52, 56, 60, 64, 68, 72
R_WO = R_K
R_WQ, R_WMOD = 48, 52
LCG_A, LCG_C = 1664525, 1013904223
STAMP0 = 84


def q4(n):
    return "s[%d:%d]" % (n, n + 3)


def vr(n, k=4):
    return "v[%d:%d]" % (n, n + k - 1)


class Gen:
    def __init__(self, stamps=False, win=5, hdeep=2, qdeep=2, half=16, winv=6, helpg=1, sent=0, ntw="", warm=1, cdelay=3, st_local="sc1", nt="nt", mg_h=1, pref=1, force_remote=0, exp=0, tailfree=3, hsleep=0, qsleep=8, pwg=-1, pwave=0, pk=0):
        self.pwg, self.pwave, self.pk = pwg, pwave, pk
        self.a = Asm()
        self.stamps = stamps
        self.win = win
        self.winv = winv
        self.helpg = helpg
        self.sent = sent
        self.hdeep, self.qdeep, self.half = hdeep, qdeep, half
        self.ntw = ntw
        self.warm = warm
        self.cdelay = cdelay
        self.st_local = st_local
        self.nt = nt
        self.mg_h = mg_h
        self.pref = pref
        self.exp = exp
        self.tailfree = tailfree
        self.hsleep = hsleep
        self.qsleep = qsleep
        self.force_remote = force_remote

    def stamp(self, k):
        if self.stamps:
            a = self.a
            a("s_memrealtime s[100:101]")
            a("s_waitcnt lgkmcnt(0)")
            a("s_mov_b32 s%d, s100" % (STAMP0 + k))

    def count(self, k, reg):
        if self.stamps:
            self.a("s_mul_i32 s%d, %s, 100" % (STAMP0 + k, reg))
            self.a("s_add_u32 s%d, s%d, s%d" % (STAMP0 + k, STAMP0 + k, STAMP0))

    def finish(self):
        a = self.a
        if self.stamps:
            a("s_branch L_stamps")
        else:
            a("s_endpgm")

    def mksrd(self, d, p, size):
        a = self.a
        a("s_mov_b64 s[%d:%d], s[%d:%d]" % (d, d + 1, p, p + 1))
        a("s_mov_b32 s%d, %d" % (d + 2, size))
        a("s_mov_b32 s%d, 0x00020000" % (d + 3))

    def spin_tail(self, lab, cnt):
        a = self.a
        a("s_add_u32 %s, %s, 1" % (cnt, cnt))
        a("s_cmp_lt_u32 %s, %d" % (cnt, SPIN_MAX))
        a("s_cbranch_scc1 %s" % lab)

    def allreduce(self, op, regs, tmp, rors=(1, 2, 4, 8)):
        a = self.a
        for r in rors:
            for x in regs:
                a("%s_dpp v%d, v%d, v%d row_ror:%d row_mask:0xf bank_mask:0xf" % (op, x, x, x, r))
        for sw in ("v_permlane16_swap_b32", "v_permlane32_swap_b32"):
            for x, t in zip(regs, tmp):
                a("v_mov_b32 v%d, v%d" % (t, x))
            for x, t in zip(regs, tmp):
                a("%s v%d, v%d" % (sw, x, t))
            for x, t in zip(regs, tmp):
                a("%s v%d, v%d, v%d" % (op, x, x, t))

    def unpack(self, dst, src, n, mask):
        a = self.a
        for j in range(n):
            a("v_lshlrev_b32 v%d, 16, v%d" % (dst + 2 * j, src + j))
            a("v_and_b32 v%d, %s, v%d" % (dst + 2 * j + 1, mask, src + j))

    def pack(self, dst, src, n):
        a = self.a
        for j in range(n):
            a("v_cvt_pk_bf16_f32 v%d, v%d, v%d" % (dst + j, src + 2 * j, src + 2 * j + 1))

    def rnd(self, x, n, tmp, mask):
        self.pack(tmp, x, n)
        self.unpack(x, tmp, n, mask)

    def sigma_voff(self, dst, rowb, t1, t2):
        a = self.a
        a("v_bfe_u32 v%d, v0, 3, 2" % t1)
        a("v_lshlrev_b32 v%d, 3, v%d" % (t1, t1))
        a("v_bfe_u32 v%d, v0, 1, 2" % t2)
        a("v_add_u32 v%d, v%d, v%d" % (t1, t1, t2))
        a("v_lshrrev_b32 v%d, 5, v0" % t2)
        a("v_lshl_add_u32 v%d, v%d, 2, v%d" % (t1, t2, t1))
        a("v_mul_u32_u24 v%d, %d, v%d" % (t1, rowb, t1))
        a("v_and_b32 v%d, 1, v0" % t2)
        a("v_lshl_add_u32 v%d, v%d, 4, v%d" % (dst, t2, t1))

    def prologue(self):
        a = self.a
        a("L_start:")
        if self.stamps:
            a("s_memrealtime s[100:101]")
        a("s_load_dwordx2 s[%d:%d], s[0:1], 8" % (R_K, R_K + 1))
        a("s_load_dwordx16 s[8:23], s[0:1], 0")
        a("s_load_dwordx8 s[24:31], s[0:1], 64")
        a("s_load_dwordx4 s[32:35], s[0:1], 96")
        a("s_getpc_b64 s[70:71]")
        a("L_pc:")
        a("s_cmpk_ge_u32 s2, 256")
        a("s_cbranch_scc1 L_exit")
        a("v_lshrrev_b32 v1, 6, v0")
        a("v_and_b32 v0, 63, v0")
        a("v_readfirstlane_b32 %s, v1" % S_W)
        a("s_and_b32 %s, s2, 7" % S_G)
        a("s_lshr_b32 %s, s2, 3" % S_I)
        a("s_lshr_b32 %s, s2, 6" % S_B)
        a("s_and_b32 %s, %s, 7" % (S_S, S_I))
        a("v_and_b32 v7, 15, v0")
        a("v_lshrrev_b32 v3, 4, v0")
        a("v_and_b32 v4, 3, v0")
        a("v_lshlrev_b32 v8, 4, v0")
        a("s_mov_b32 s83, 0xffff0000")
        a("s_cmp_lg_u32 %s, 4" % S_W)
        a("s_cbranch_scc1 L_main")
        if self.pref:
            a("v_lshl_add_u32 v1, %s, 4, v7" % S_S)
            a("v_lshlrev_b32 v1, 7, v1")
            a("v_min_u32 v1, L_last-L_pc, v1")
            a("s_mov_b64 exec, 0xffff")
            a("global_load_dword v2, v1, s[70:71]")
            a("s_mov_b64 exec, -1")
        a("s_branch L_front")
        a("L_main:")

    def t_loads(self, srd, voff, pol=None):
        a = self.a
        pol = self.ntw if pol is None else pol
        a("buffer_load_dwordx4 v%d, %s, s79 offen %s lds" % (voff, q4(srd), pol))
        a("s_add_u32 s77, s79, s74")
        for e in range(1, 4):
            a("buffer_load_dwordx4 v%d, %s, s77 offen offset:%d %s lds" % (voff, q4(srd), e * 1024, pol))
            if e < 3:
                a("s_add_u32 s77, s77, s74")

    def local_store(self, text):
        a = self.a
        l1, l2 = a.label("L_ls"), a.label("L_ls")
        a("s_cmp_eq_u32 s73, 0")
        a("s_cbranch_scc1 %s" % l1)
        a(text)
        a("%s:" % l2)
        self.deferred.append((l1, text + " sc1", l2))

    def main_wave(self):
        a = self.a
        W = self.win
        MASK = "s83"
        self.deferred = []
        a("s_cmp_lg_u32 %s, %d" % (S_G, self.mg_h))
        a("s_cbranch_scc1 L_stream")
        self.mload()
        a("L_stream:")
        a("v_and_b32 v1, 7, v0")
        a("v_lshlrev_b32 v9, 1, v3")
        a("v_xor_b32 v1, v1, v9")
        a("v_lshrrev_b32 v9, 3, v0")
        a("v_lshlrev_b32 v9, 13, v9")
        a("v_lshl_add_u32 v9, v1, 4, v9")
        a("s_lshl_b32 s79, %s, 2" % S_B)
        a("s_add_u32 s79, s79, %s" % S_W)
        a("s_lshl_b32 s79, s79, 8")
        a("s_add_u32 s79, s79, %s" % S_G)
        a("s_lshl_b32 s79, s79, 3")
        a("s_add_u32 s79, s79, %s" % S_S)
        a("s_lshl_b32 s79, s79, 7")
        a("s_lshl_b32 s98, %s, 12" % S_W)
        a("s_add_u32 m0, s98, %d" % L_WQ)
        a("s_mov_b32 s74, %d" % (65536 - 1024))
        a("s_mov_b32 s%d, %d" % (R_TB + 2, KSIZE['wq']))
        a("s_mov_b32 s%d, 0x00020000" % (R_TB + 3))
        a("s_waitcnt lgkmcnt(0)")
        a("s_mov_b64 s[%d:%d], s[%d:%d]" % (R_TB, R_TB + 1, P_WQ, P_WQ + 1))
        self.t_loads(R_TB, 9, self.nt)
        if self.stamps:
            a("s_mov_b32 s%d, s100" % STAMP0)
            for k in range(1, 12):
                if self.exp == 0 or k not in (7, 8):
                    a("s_mov_b32 s%d, 0" % (STAMP0 + k))
        a("s_cmp_eq_u32 %s, %d" % (S_G, self.mg_h))
        a("s_cbranch_scc1 L_mcomp")
        a("L_stream2:")
        a("s_mov_b32 s%d, %d" % (R_K + 2, KSIZE['k']))
        a("s_mov_b32 s%d, 0x00020000" % (R_K + 3))
        a("s_lshl_b32 s76, %s, 3" % S_B)
        a("s_add_u32 s76, s76, %s" % S_G)
        a("s_lshl_b32 s76, s76, 7")
        a("s_add_u32 s76, s76, %s" % S_S)
        a("s_lshl_b32 s76, s76, 2")
        a("s_add_u32 s76, s76, %s" % S_W)
        a("s_lshl_b32 s76, s76, 12")
        a("s_add_u32 s76, s76, %d" % (6144 * 256))
        a("v_bfe_u32 v1, v0, 2, 2")
        a("v_lshlrev_b32 v1, 10, v1")
        a("v_lshl_add_u32 v1, v3, 6, v1")
        a("v_lshl_add_u32 v2, v4, 4, v1")
        for e in range(16):
            rho, j = e >> 2, e & 3
            if j == 0 and rho > 0:
                a("s_add_u32 s97, s76, %d" % (rho * 131072))
            a("buffer_load_dwordx4 %s, v2, %s, %s offen offset:%d %s" % (vr(64 + 4 * e), q4(R_K), "s76" if rho == 0 else "s97", j * 256, self.nt))
            if e in (9, 11, 13):
                self.setup_common((e - 9) // 2)
            if e + 4 >= W - 1:
                a("s_waitcnt vmcnt(%d)" % (W - 1))
            if e == W - 2:
                a("s_barrier")
        self.stamp(1)
        for e in range(16):
            step, j = e >> 2, e & 3
            if j == 0:
                a("s_add_u32 m0, s98, %d" % (L_V + step * 16384))
                a("s_add_u32 s97, s76, %d" % (step * 131072))
            a("buffer_load_dwordx4 v%d, %s, s97 offen offset:%d %s lds" % (5 + (j & 1), q4(R_V), j * 1024, self.nt))
            if e == 1:
                a("s_cmp_ge_u32 %s, 24" % S_I)
                a("s_cbranch_scc1 L_su_m")
                a("s_cmp_ge_u32 %s, 16" % S_I)
                a("s_cbranch_scc1 L_su_g")
                a("s_branch L_su_w")
                a("L_su_done:")
                self.mksrd(R_WO, P_WO, KSIZE['wo'])
                a("v_mul_lo_u32 v10, v10, s78")
                a("v_add_u32 v10, v10, v11")
                a("v_xor_b32 v11, 16, v10")
                a("s_lshl_b32 s74, s78, 4")
                a("s_sub_u32 s74, s74, 1024")
                a("s_cmp_eq_u32 s72, 0")
                a("s_cselect_b32 s77, 1, -1")
                a("s_mul_i32 s75, s75, s77")
            if e != 0 and e < 16 - self.tailfree:
                a("s_waitcnt vmcnt(%d)" % ((W if e < 8 else self.winv) - 1))
        assert 16 - self.tailfree - self.winv >= 0
        self.stamp(2)
        if self.exp:
            a("s_waitcnt vmcnt(0)")
            self.stamp(3)
            self.finish()
        a("s_mov_b32 m0, s64")
        a("s_barrier")
        self.stamp(3)
        a("ds_read_b128 %s, v9" % vr(32))
        a("ds_read_b64 v[60:61], v14 offset:%d" % (L_LOC - L_MISC))
        NT1 = 2
        a("s_waitcnt lgkmcnt(0)")
        for e in range(16):
            a("v_mfma_f32_16x16x32_bf16 %s, %s, %s, 0" % (vr(128 + 4 * e), vr(64 + 4 * e), vr(32)))
        a("v_readfirstlane_b32 s73, v60")
        for rho in range(4):
            subs = [x for x in range(4) if x != rho]
            for k, sub in enumerate(subs):
                for rp in range(4):
                    D = 128 + 4 * (4 * rho + rp)
                    src1 = D + rho if k == 0 else 36 + rp
                    a("v_add_f32_dpp v%d, v%d, v%d row_ror:%d row_mask:0xf bank_mask:0x%x" % (36 + rp, D + sub, src1, (4 * (rho - sub)) & 15, 1 << rho))
        self.rnd(36, 2, 40, MASK)
        for r in range(4):
            a("v_mul_f32 v%d, 0x%x, v%d" % (36 + r, SCALE, 36 + r))
        self.rnd(36, 2, 40, MASK)
        a("v_max3_f32 v42, v36, v37, v38")
        a("v_max_f32 v42, v42, v39")
        self.allreduce("v_max_f32", [42], [43], rors=(4, 8))
        a("ds_write_b32 v13, v42 offset:%d" % (L_MAX - L_MISC))
        a("buffer_load_dwordx4 v228, %s, s57 offen %s lds" % (q4(R_WO), self.ntw))
        a("buffer_load_dwordx4 v228, %s, s99 offen offset:1024 %s lds" % (q4(R_WO), self.ntw))
        a("s_waitcnt lgkmcnt(0)")
        a("s_barrier")
        a("ds_read_b128 %s, v14 offset:%d" % (vr(44), L_MAX - L_MISC))
        a("s_waitcnt lgkmcnt(0)")
        a("v_max3_f32 v42, v44, v45, v46")
        a("v_max_f32 v42, v42, v47")
        for r in range(4):
            a("v_sub_f32 v%d, v%d, v42" % (36 + r, 36 + r))
        for r in range(4):
            a("v_mul_f32 v%d, 0x%x, v%d" % (36 + r, LOG2E, 36 + r))
        for r in range(4):
            a("v_exp_f32 v%d, v%d" % (36 + r, 36 + r))
        self.pack(40, 36, 2)
        a("ds_write_b64 v15, %s" % vr(40, 2))
        a("v_add_f32 v36, v36, v37")
        a("v_add_f32 v38, v38, v39")
        a("v_add_f32 v36, v36, v38")
        self.allreduce("v_add_f32", [36], [37], rors=(4, 8))
        a("ds_write_b32 v13, v36 offset:%d" % (L_SUM - L_MISC))
        a("s_waitcnt vmcnt(%d) lgkmcnt(0)" % (4 + NT1))
        a("s_barrier")
        self.stamp(4)
        a("ds_read_b128 %s, v14 offset:%d" % (vr(44), L_SUM - L_MISC))
        for kg in range(8):
            a("ds_read_b128 %s, v16 offset:%d" % (vr(64 + 4 * kg), kg * 256))

        def vreads(kg):
            step, u = kg >> 1, kg & 1
            T0 = step * 4 + 2 * u
            for d in range(2):
                base = 128 + 8 * kg + 4 * d
                a("ds_read_b64_tr_b16 %s, v%d offset:%d" % (vr(base, 2), 17 + d, T0 * 4096))
                a("ds_read_b64_tr_b16 %s, v%d offset:%d" % (vr(base + 2, 2), 17 + d, (T0 + 1) * 4096))

        def vmfma(kg):
            for d in range(2):
                a("v_mfma_f32_16x16x32_bf16 %s, %s, %s, %s" % (vr(48 + 4 * d), vr(128 + 8 * kg + 4 * d), vr(64 + 4 * kg), "0" if kg == 0 else vr(48 + 4 * d)))
        a("s_waitcnt lgkmcnt(8)")
        a("v_add_f32 v44, v44, v45")
        a("v_add_f32 v46, v46, v47")
        a("v_add_f32 v43, v44, v46")
        a("s_lshl_b64 exec, 1, %s" % S_W)
        self.local_store("buffer_store_dwordx2 %s, v19, %s, s81 offen" % (vr(42, 2), q4(R_WS)))
        a("s_mov_b64 exec, -1")
        a("s_waitcnt lgkmcnt(0)")
        for kg in range(3):
            vreads(kg)
        a("s_waitcnt lgkmcnt(0)")
        for kg in range(3, 6):
            vreads(kg)
        for kg in range(3):
            vmfma(kg)
        a("s_waitcnt lgkmcnt(0)")
        for kg in range(3, 6):
            vmfma(kg)
        a("s_waitcnt vmcnt(%d)" % (NT1 + 1))
        a("s_barrier")
        self.stamp(5)
        vreads(6)
        vreads(7)
        a("s_waitcnt lgkmcnt(4)")
        vmfma(6)
        a("s_waitcnt lgkmcnt(0)")
        vmfma(7)
        a("s_mov_b32 exec_lo, 0x000f000f")
        a("s_mov_b32 exec_hi, 0x000f000f")
        self.pack(56, 48, 4)
        self.local_store("buffer_store_dwordx4 %s, v20, %s, s82 offen" % (vr(56), q4(R_WS)))
        a("s_mov_b64 exec, -1")
        a("s_barrier")
        self.stamp(6)
        a("s_cmp_lg_u32 s96, 0")
        a("s_cbranch_scc1 L_role_gm")
        self.role_w()
        self.setup_g()
        self.role_g()
        self.setup_wm()
        self.role_m()
        for l1, text, l2 in self.deferred:
            a("%s:" % l1)
            a(text)
            a("s_branch %s" % l2)
        self.mprep()

    def setup_common(self, part):
        a = self.a
        if part == 0:
            self.mksrd(R_V, 12, KSIZE['v'])
            self.mksrd(R_WS, P_WS, KSIZE['ws'])
            self.mksrd(R_X, P_X, KSIZE['x'])
            a("v_lshlrev_b32 v1, 1, v3")
            a("v_xor_b32 v1, v1, v7")
            a("v_lshlrev_b32 v1, 4, v1")
            a("v_lshl_add_u32 v5, v3, 8, v1")
            a("v_xor_b32 v6, 0x80, v5")
            a("v_bfe_u32 v1, v0, 2, 2")
            a("v_lshlrev_b32 v9, 8, v4")
            a("v_lshl_add_u32 v9, v3, 6, v9")
            a("v_lshl_add_u32 v9, v1, 4, v9")
            a("v_add_u32 v9, %d, v9" % L_Q)
            a("v_lshlrev_b32 v14, 4, v4")
            a("v_add_u32 v14, %d, v14" % L_MISC)
            a("s_lshl_b32 s77, %s, 2" % S_W)
            a("v_add_u32 v13, s77, v14")
            a("v_lshl_add_u32 v16, v3, 6, v14")
            a("v_add_u32 v16, %d, v16" % (L_P - L_MISC))
            a("v_lshl_add_u32 v15, v1, 9, v16")
            a("s_lshr_b32 s77, %s, 1" % S_W)
            a("s_lshl_b32 s77, s77, 8")
            a("s_and_b32 s78, %s, 1" % S_W)
            a("s_lshl_b32 s78, s78, 3")
            a("s_add_u32 s77, s77, s78")
            a("v_add_u32 v15, s77, v15")
        elif part == 1:
            a("v_lshrrev_b32 v17, 2, v0")
            a("v_and_b32 v18, 7, v17")
            a("s_lshl_b32 s77, %s, 1" % S_W)
            a("v_xor_b32 v18, s77, v18")
            a("v_lshlrev_b32 v18, 5, v18")
            a("v_lshl_add_u32 v17, v17, 8, v18")
            a("v_lshl_add_u32 v17, v4, 3, v17")
            a("v_xor_b32 v18, 32, v17")
            a("v_lshlrev_b32 v19, 8, v4")
            a("s_lshl_b32 s81, %s, 10" % S_G)
            a("s_lshl_b32 s77, %s, 3" % S_I)
            a("s_add_u32 s81, s81, s77")
            a("s_add_u32 s81, s81, %d" % WS_ST)
        else:
            a("v_lshlrev_b32 v20, 13, v4")
            a("v_lshl_add_u32 v20, v3, 8, v20")
            a("s_lshl_b32 s82, %s, 15" % S_G)
            a("s_lshr_b32 s77, %s, 2" % S_S)
            a("s_lshl_b32 s77, s77, 10")
            a("s_add_u32 s82, s82, s77")
            a("s_lshl_b32 s77, %s, 6" % S_B)
            a("s_add_u32 s82, s82, s77")
            a("s_and_b32 s77, %s, 3" % S_S)
            a("s_lshl_b32 s77, s77, 4")
            a("s_add_u32 s82, s82, s77")
            a("s_lshl_b32 s77, %s, 11" % S_W)
            a("s_add_u32 s82, s82, s77")
            a("s_add_u32 s82, s82, %d" % WS_A)
            a("v_and_b32 v12, 1, v3")
            a("v_lshlrev_b32 v1, 1, v12")
            a("v_xor_b32 v1, v1, v4")
            a("v_lshlrev_b32 v11, 4, v1")
            a("v_lshrrev_b32 v10, 2, v0")
            a("s_and_b32 s72, %s, 1" % S_I)
            a("v_lshlrev_b32 v228, 7, v10")
            a("v_lshl_add_u32 v228, v4, 4, v228")
            a("s_lshl_b32 s57, %s, 2" % S_G)
            a("s_add_u32 s57, s57, %s" % S_W)
            a("s_lshl_b32 s57, s57, 5")
            a("s_add_u32 s57, s57, %s" % S_I)
            a("s_lshl_b32 s57, s57, 12")
            a("s_add_u32 s99, s57, 1024")
            a("s_mov_b32 s64, %d" % L_DUMP)

    def setup_wm(self):
        a = self.a
        a("L_su_w:")
        a("s_mov_b32 s96, 0")
        self.mksrd(R_TA, P_WO, KSIZE['wo'])
        self.mksrd(R_TB, P_WD, KSIZE['wd'])
        self.mksrd(R_OUT, P_OUT, KSIZE['out'])
        a("s_mov_b32 s78, 1024")
        a("s_lshl_b32 s79, %s, 19" % S_G)
        a("s_lshl_b32 s77, %s, 6" % S_I)
        a("s_add_u32 s79, s79, s77")
        a("v_lshl_add_u32 v228, v10, 10, v11")
        a("s_lshl_b32 s77, %s, 2" % S_W)
        a("s_add_u32 s77, s77, s72")
        a("s_lshl_b32 s64, s77, 11")
        a("s_add_u32 s64, s64, %d" % L_T1)
        a("s_lshl_b32 s57, s77, 15")
        a("s_add_u32 s57, s57, s79")
        a("s_add_u32 s99, s57, 15360")
        a("s_mov_b32 s72, 1")
        a("v_min_u32 v195, 55, v0")
        a("v_lshlrev_b32 v195, 10, v195")
        a("s_lshl_b32 s56, %s, 4" % S_G)
        a("s_add_u32 s56, s56, %s" % S_I)
        a("s_lshl_b32 s56, s56, 8")
        a("s_add_u32 s56, s56, %d" % WS_B)
        a("s_lshl_b32 s66, %s, 2" % S_G)
        a("s_add_u32 s66, s66, %s" % S_W)
        a("s_lshl_b32 s65, s66, 8")
        a("s_add_u32 s65, s65, %d" % WS_ST)
        a("s_lshl_b32 s66, s66, 13")
        a("s_add_u32 s66, s66, %d" % WS_A)
        a("s_add_u32 s67, s66, 4096")
        a("v_and_b32 v1, 7, v0")
        a("v_lshlrev_b32 v1, 3, v1")
        a("v_lshl_add_u32 v21, v3, 6, v1")
        a("v_bfe_u32 v1, v0, 3, 2")
        a("v_lshlrev_b32 v27, 3, v1")
        a("v_bfe_u32 v1, v0, 1, 2")
        a("v_add_u32 v27, v27, v1")
        a("v_lshrrev_b32 v1, 5, v0")
        a("v_lshl_add_u32 v27, v1, 2, v27")
        a("v_and_b32 v1, 1, v0")
        a("v_lshl_add_u32 v27, v1, 5, v27")
        a("v_lshlrev_b32 v27, 10, v27")
        a("s_mul_i32 s58, %s, %d" % (S_W, 7 * 1024))
        a("s_add_u32 s77, s58, %d" % L_T2)
        a("v_lshlrev_b32 v28, 3, v0")
        a("v_add_u32 v28, s77, v28")
        a("s_add_u32 s58, s58, %d" % WS_C)
        a("s_add_u32 s59, s58, 4096")
        a("v_lshrrev_b32 v1, 2, v7")
        a("v_lshlrev_b32 v29, 9, v1")
        a("v_lshl_add_u32 v29, v3, 7, v29")
        a("v_lshl_add_u32 v29, v4, 4, v29")
        a("v_lshlrev_b32 v193, 2, v4")
        a("v_lshl_add_u32 v192, v1, 10, v193")
        a("v_lshl_add_u32 v193, v1, 6, v193")
        a("v_lshl_add_u32 v194, v3, 12, v193")
        a("v_lshrrev_b32 v1, 1, v3")
        a("v_lshlrev_b32 v30, 7, v1")
        a("v_lshl_add_u32 v30, v4, 5, v30")
        a("v_lshl_add_u32 v30, v12, 4, v30")
        a("s_lshl_b32 s77, %s, 8" % S_W)
        a("s_add_u32 s77, s77, %d" % L_RED2)
        a("v_add_u32 v30, s77, v30")
        a("v_lshlrev_b32 v31, 3, v7")
        a("v_add_u32 v31, %d, v31" % L_RED2)
        a("s_branch L_su_wm")
        a("L_su_m:")
        a("s_mov_b32 s96, 2")
        self.mksrd(R_TA, P_WMOD, KSIZE['wmod'])
        a("s_mov_b32 s78, 6144")
        a("s_lshl_b32 s77, %s, 3" % S_G)
        a("s_add_u32 s77, s77, %s" % S_I)
        a("s_sub_u32 s77, s77, 24")
        a("s_lshl_b32 s79, s77, 6")
        a("s_add_u32 s79, s79, 2048")
        a("s_lshl_b32 s56, s77, 8")
        a("s_add_u32 s56, s56, %d" % WS_M2)
        self.mksrd(R_TB, P_WU, KSIZE['wu'])
        a("s_cmp_eq_u32 %s, %d" % (S_G, self.mg_h))
        a("s_cselect_b32 s%d, 0, %d" % (R_TB + 2, KSIZE['wu']))
        a("s_cmp_gt_u32 %s, %d" % (S_G, self.mg_h))
        a("s_cselect_b32 s77, 1, 0")
        a("s_sub_u32 s65, %s, s77" % S_G)
        a("s_lshl_b32 s65, s65, 9")
        a("s_lshl_b32 s77, %s, 3" % S_S)
        a("s_add_u32 s77, s77, %s" % S_W)
        a("s_add_u32 s77, s77, 4")
        a("s_mul_i32 s77, s77, %d" % (8 * 3584))
        a("s_add_u32 s65, s65, s77")
        a("v_lshrrev_b32 v27, 3, v0")
        a("v_mul_u32_u24 v27, 3584, v27")
        a("v_and_b32 v1, 7, v0")
        a("v_lshl_add_u32 v27, v1, 6, v27")
        a("v_lshrrev_b32 v1, 2, v7")
        a("v_lshlrev_b32 v21, 10, v1")
        a("v_lshl_add_u32 v21, v3, 3, v21")
        a("s_lshl_b32 s77, %s, 8" % S_W)
        a("s_add_u32 s77, s77, %d" % L_SC)
        a("v_add_u32 v21, s77, v21")
        a("L_su_wm:")
        a("s_lshl_b32 s77, %s, 1" % S_W)
        a("s_add_u32 s77, s77, s72")
        a("s_lshl_b32 s80, s77, 12")
        a("s_add_u32 s80, s80, %d" % L_T1)
        a("s_lshl_b32 s75, s78, 6")
        a("s_mul_i32 s77, s77, s75")
        a("s_add_u32 s79, s79, s77")
        a("v_lshlrev_b32 v22, 6, v10")
        a("v_lshl_add_u32 v22, v12, 5, v22")
        a("v_lshl_add_u32 v22, v4, 3, v22")
        a("s_lshl_b32 s77, %s, 13" % S_W)
        a("s_add_u32 s77, s77, %d" % L_T1)
        a("v_add_u32 v22, s77, v22")
        a("v_xor_b32 v23, 32, v22")
        a("v_lshlrev_b32 v24, 2, v7")
        a("v_lshl_add_u32 v24, v3, 7, v24")
        a("s_lshl_b32 s77, %s, 9" % S_W)
        a("s_add_u32 s77, s77, %d" % L_RED)
        a("v_add_u32 v24, s77, v24")
        a("v_lshlrev_b32 v25, 3, v0")
        a("v_add_u32 v25, %d, v25" % L_RED)
        a("v_lshlrev_b32 v26, 2, v0")
        a("s_branch L_su_done")

    def setup_g(self):
        a = self.a
        a("L_su_g:")
        a("s_mov_b32 s96, 1")
        self.mksrd(R_TA, P_WG, KSIZE['wg'])
        self.mksrd(R_TB, P_WU, KSIZE['wu'])
        a("s_mov_b32 s78, 3584")
        a("s_cmp_gt_u32 %s, %d" % (S_G, self.mg_h))
        a("s_cselect_b32 s77, 1, 0")
        a("s_sub_u32 s77, %s, s77" % S_G)
        a("s_lshl_b32 s77, s77, 3")
        a("s_add_u32 s77, s77, %s" % S_I)
        a("s_sub_u32 s77, s77, 16")
        a("s_lshl_b32 s79, s77, 6")
        a("s_lshl_b32 s56, s77, 2")
        a("s_add_u32 s56, s56, %s" % S_W)
        a("s_lshl_b32 s56, s56, 7")
        a("s_add_u32 s56, s56, %d" % WS_C)
        a("s_lshl_b32 s77, s72, 2")
        a("s_add_u32 s77, s77, %s" % S_W)
        a("s_lshl_b32 s80, s77, 12")
        a("s_add_u32 s80, s80, %d" % L_T1)
        a("s_mul_i32 s77, s77, %d" % (64 * 3584))
        a("s_add_u32 s79, s79, s77")
        a("s_mov_b32 s75, %d" % (256 * 3584))
        a("v_lshrrev_b32 v1, 3, v7")
        a("v_lshrrev_b32 v21, 1, v3")
        a("v_cmp_eq_u32 vcc, v1, v21")
        a("v_and_b32 v1, 1, v0")
        a("v_lshlrev_b32 v1, 4, v1")
        a("v_mov_b32 v22, 0x3f80")
        a("v_lshlrev_b32 v1, v1, v22")
        a("v_cndmask_b32 v1, 0, v1, vcc")
        a("v_bfe_u32 v22, v0, 1, 2")
        for j in range(4):
            a("v_cmp_eq_u32 vcc, %d, v22" % j)
            a("v_cndmask_b32 v%d, 0, v1, vcc" % (224 + j))
        a("v_lshlrev_b32 v26, 4, v4")
        a("v_lshl_add_u32 v26, v12, 3, v26")
        a("v_lshl_add_u32 v26, v21, 2, v26")
        a("v_lshl_add_u32 v1, v21, 4, v7")
        a("v_lshlrev_b32 v27, 4, v1")
        a("v_lshl_add_u32 v27, v12, 3, v27")
        a("v_lshrrev_b32 v1, 2, v1")
        a("v_lshlrev_b32 v25, 8, v1")
        a("v_and_b32 v22, 1, v0")
        a("v_lshl_add_u32 v22, v22, 1, v12")
        a("v_lshl_add_u32 v22, v22, 6, v25")
        a("v_bfe_u32 v1, v0, 1, 1")
        a("v_lshl_add_u32 v22, v1, 3, v22")
        a("s_lshl_b32 s77, %s, 4" % S_W)
        a("s_add_u32 s77, s77, %d" % L_H2)
        a("v_add_u32 v22, s77, v22")
        a("v_lshl_add_u32 v25, v4, 4, v25")
        a("v_lshl_add_u32 v21, v12, 12, v25")
        a("v_lshl_add_u32 v25, v12, 3, v25")
        a("v_lshlrev_b32 v23, 6, v3")
        a("v_lshl_add_u32 v23, v4, 4, v23")
        a("v_add_u32 v23, %d, v23" % L_H2)
        a("v_lshlrev_b32 v24, 6, v10")
        a("v_lshl_add_u32 v24, v1, 15, v24")
        a("v_lshl_add_u32 v1, v12, 1, v1")
        a("v_xor_b32 v1, %s, v1" % S_W)
        a("v_lshl_add_u32 v24, v1, 4, v24")
        a("v_and_b32 v1, 1, v0")
        a("v_lshl_add_u32 v24, v1, 3, v24")
        a("v_add_u32 v24, %d, v24" % L_T1)
        a("s_lshl_b32 s77, %s, 6" % S_W)
        a("s_add_u32 s65, s77, %d" % WS_M2)
        a("s_add_u32 s66, s65, 4096")
        a("s_add_u32 s67, s65, 8192")
        for gp in range(4):
            a("s_add_u32 s%d, s77, %d" % (68 + gp, WS_B + gp * 8192))
        a("s_branch L_su_done")

    def gr_wait(self, t):
        a = self.a
        a("v_readfirstlane_b32 s97, v61")
        a("v_and_b32 v2, 7, v0")
        a("v_lshlrev_b32 v2, 7, v2")
        a("s_mov_b32 s98, %d" % WS_GR)
        a("s_mov_b32 s77, 0")
        a("L_gr_retry_%s:" % t)
        a("buffer_load_dword v62, v2, %s, s98 offen sc1" % q4(R_WS))
        a("s_waitcnt vmcnt(0)")
        a("v_cmp_ne_u32 vcc, s97, v62")
        a("s_cbranch_vccz L_gr_ok_%s" % t)
        self.spin_tail("L_gr_retry_%s" % t, "s77")
        a("L_gr_ok_%s:" % t)

    def wm_tr_reads(self, base=96):
        a = self.a
        for tau in range(2):
            for kk in range(4):
                for rd in range(2):
                    a("ds_read_b64_tr_b16 %s, v%d offset:%d" % (vr(base + 16 * tau + 4 * kk + 2 * rd, 2), 22 + tau, (2 * kk + rd) * 1024))
            if tau == 0:
                a("s_waitcnt lgkmcnt(4)")

    def wm_publish(self, r0, r1, done):
        a = self.a
        a("ds_write_b32 v24, v%d" % r0)
        a("ds_write_b32 v24, v%d offset:64" % r1)
        a("s_waitcnt lgkmcnt(0)")
        a("s_barrier")
        self.stamp(7)
        a("s_cmp_lg_u32 %s, 0" % S_W)
        a("s_cbranch_scc1 %s" % done)
        for h in range(4):
            a("ds_read_b64 %s, v25 offset:%d" % (vr(32 + 2 * h, 2), h * 512))
        a("s_waitcnt lgkmcnt(2)")
        a("v_pk_add_f32 v[32:33], v[32:33], v[34:35]")
        a("s_waitcnt lgkmcnt(0)")
        a("v_pk_add_f32 v[36:37], v[36:37], v[38:39]")
        a("v_pk_add_f32 v[32:33], v[32:33], v[36:37]")
        a("v_cvt_pk_bf16_f32 v32, v32, v33")
        a("buffer_store_dword v32, v26, %s, s56 offen sc1" % q4(R_WS))

    def role_w(self):
        a = self.a
        a("s_xor_b32 m0, s64, 0x800")
        a("s_xor_b32 s57, s57, 0x8000")
        a("s_add_u32 s99, s57, 15360")
        a("buffer_load_dwordx4 v10, %s, s57 offen %s lds" % (q4(R_TA), self.ntw))
        a("buffer_load_dwordx4 v10, %s, s99 offen offset:1024 %s lds" % (q4(R_TA), self.ntw))
        a("s_mov_b32 m0, s80")
        a("s_mov_b32 s78, 0")
        self.t_loads(R_TA, 10)

        def loads():
            a("buffer_load_dwordx2 %s, v21, %s, s65 offen sc1" % (vr(50, 2), q4(R_WS)))
            for e in range(8):
                a("buffer_load_dwordx4 %s, v8, %s, %s offen offset:%d sc1" % (vr(64 + 4 * e), q4(R_WS), "s66" if e < 4 else "s67", (e & 3) * 1024))
        loads()
        a("s_waitcnt vmcnt(9)")
        self.wm_tr_reads()
        a("s_branch L_w_in")
        a("L_w_retry:")
        loads()
        a("L_w_in:")
        a("s_waitcnt vmcnt(8)")
        a("v_max_f32_dpp v52, v50, v50 quad_perm:[1,0,3,2] row_mask:0xf bank_mask:0xf")
        a("v_max_f32_dpp v52, v52, v52 quad_perm:[2,3,0,1] row_mask:0xf bank_mask:0xf")
        a("v_max_f32_dpp v52, v52, v52 row_ror:4 row_mask:0xf bank_mask:0xf")
        a("v_sub_f32 v52, v50, v52")
        a("v_mul_f32 v52, 0x%x, v52" % LOG2E)
        a("v_exp_f32 v52, v52")
        a("v_mul_f32 v53, v52, v51")
        a("v_add_f32_dpp v53, v53, v53 quad_perm:[1,0,3,2] row_mask:0xf bank_mask:0xf")
        a("v_add_f32_dpp v53, v53, v53 quad_perm:[2,3,0,1] row_mask:0xf bank_mask:0xf")
        a("v_add_f32_dpp v53, v53, v53 row_ror:4 row_mask:0xf bank_mask:0xf")
        a("v_rcp_f32 v53, v53")
        a("v_mul_f32 v52, v52, v53")
        a("s_waitcnt lgkmcnt(0)")
        for e in range(8):
            kk, rg = e >> 1, e & 1
            a("s_waitcnt vmcnt(%d)" % (7 - e))
            for tau in range(2):
                acc = 32 + 8 * tau + 4 * rg
                a("v_mfma_f32_16x16x32_bf16 %s, %s, %s, %s" % (vr(acc), vr(64 + 4 * e), vr(96 + 16 * tau + 4 * kk), "0" if kk == 0 else vr(acc)))
        for s in range(8):
            for tau in range(2):
                a("%s v%d, v52, v%d row_newbcast:%d row_mask:0xf bank_mask:0xf" % ("v_mul_f32_dpp" if s == 0 else "v_fmac_f32_dpp", 48 + tau, 32 + 8 * tau + s, s))
        a("v_cmp_u_f32 vcc, v48, v49")
        a("s_cbranch_vccz L_w_ok")
        self.spin_tail("L_w_retry", "s78")
        a("L_w_ok:")
        self.wm_publish(48, 49, "L_w_pub_done")
        a("L_w_pub_done:")
        a("s_barrier")
        self.stamp(8)
        a("s_lshl_b32 s77, %s, 1" % S_I)
        a("s_and_b32 s78, %s, 1" % S_W)
        a("s_add_u32 s77, s77, s78")
        a("s_mul_i32 s77, s77, %d" % (56 * 1024))
        a("s_lshl_b32 s78, %s, 7" % S_G)
        a("s_add_u32 s77, s77, s78")
        a("s_cmp_lt_u32 %s, 2" % S_W)
        a("s_cbranch_scc1 L_w_notouch")
        a("buffer_load_dword v1, v195, %s, s77 offen %s" % (q4(R_TB), self.ntw))
        a("L_w_notouch:")
        a("s_cmp_ge_u32 %s, 8" % S_I)
        a("s_cbranch_scc1 L_done")
        self.role_d()

    def role_d(self):
        a = self.a
        MASK = "s83"
        a("s_lshl_b32 s76, %s, 3" % S_G)
        a("s_add_u32 s76, s76, %s" % S_I)
        a("s_lshl_b32 s76, s76, 4")
        a("s_mul_i32 s78, %s, 7" % S_W)
        a("s_mov_b32 s77, %s" % S_I)
        a("s_barrier")
        for k in range(7):
            a("s_cmp_ge_u32 s77, 7")
            a("s_cselect_b32 s77, 0, s77")
            a("s_add_u32 s79, s78, s77")
            a("s_lshl_b32 s80, s79, 10")
            a("s_add_u32 m0, s80, %d" % L_T2)
            a("s_lshl_b32 s79, s79, 16")
            a("s_add_u32 s79, s79, s76")
            a("buffer_load_dwordx4 v27, %s, s79 offen %s lds" % (q4(R_TB), self.ntw))
            a("s_add_u32 s77, s77, 1")
        a("s_cmp_lg_u32 %s, 0" % S_W)
        a("s_cbranch_scc1 L_d_nox")
        a("s_lshr_b32 s78, s76, 6")
        a("s_lshl_b32 s78, s78, 8")
        a("s_and_b32 s77, s76, 63")
        a("s_add_u32 s78, s78, s77")
        a("s_add_u32 s79, s78, %d" % WS_B)
        a("s_add_u32 s80, s79, 16384")
        a("s_add_u32 s81, s78, %d" % WS_M2)
        a("s_add_u32 s82, s81, %d" % (3 * 4096))
        a("buffer_load_dword v42, v192, %s, s76 offen" % q4(R_X))
        self.gr_wait("d")
        a("s_mov_b32 s77, 0")
        a("L_d_x_retry:")
        a("buffer_load_dword v40, v193, %s, s81 offen sc1" % q4(R_WS))
        a("buffer_load_dword v41, v193, %s, s82 offen sc1" % q4(R_WS))
        a("buffer_load_dword v32, v194, %s, s79 offen sc1" % q4(R_WS))
        a("buffer_load_dword v33, v194, %s, s80 offen sc1" % q4(R_WS))
        a("s_waitcnt vmcnt(0)")
        self.unpack(48, 32, 2, MASK)
        a("v_pk_add_f32 v[48:49], v[48:49], v[50:51]")
        self.allreduce("v_add_f32", [48, 49], [50, 51], rors=())
        self.unpack(50, 40, 3, MASK)
        a("v_pk_fma_f32 v[48:49], v[48:49], v[50:51], v[54:55]")
        a("v_pk_add_f32 v[50:51], v[48:49], v[52:53]")
        a("v_cmp_u_f32 vcc, v50, v51")
        a("s_cbranch_vccz L_d_nox")
        self.spin_tail("L_d_x_retry", "s77")
        a("L_d_nox:")
        a("s_waitcnt vmcnt(0)")
        for e in range(7):
            for rd in range(2):
                a("ds_read_b64_tr_b16 %s, v28 offset:%d" % (vr(96 + 4 * e + 2 * rd, 2), e * 1024 + rd * 512))
        a("s_mov_b32 s77, 0")
        a("s_barrier")
        self.stamp(9)
        a("L_d_retry:")
        for u in range(4):
            a("buffer_load_dwordx4 %s, v29, %s, %s offen offset:%d sc1" % (vr(64 + 4 * u), q4(R_WS), "s58" if u < 2 else "s59", (u & 1) * 2048))
        a("s_waitcnt lgkmcnt(0)")
        for e in range(7):
            if e & 1 == 0:
                a("s_waitcnt vmcnt(%d)" % (3 - (e >> 1)))
            acc = 32 + 4 * (e & 1)
            a("v_mfma_f32_16x16x32_bf16 %s, %s, %s, %s" % (vr(acc), vr(96 + 4 * e), vr(64 + 4 * (e >> 1)), "0" if e < 2 else vr(acc)))
        for r in range(4):
            a("v_add_f32_dpp v%d, v%d, v%d row_shl:8 row_mask:0xf bank_mask:0xf" % (44 + r, 36 + r, 32 + r))
        a("v_cmp_u_f32 vcc, v44, v44")
        a("s_and_b32 vcc_lo, vcc_lo, 0x000f000f")
        a("s_and_b32 vcc_hi, vcc_hi, 0x00f000f0")
        a("s_or_b32 s79, vcc_lo, vcc_hi")
        a("s_cbranch_scc0 L_d_ok")
        self.spin_tail("L_d_retry", "s77")
        a("L_d_ok:")
        a("s_mov_b32 exec_lo, 0x000f000f")
        a("s_mov_b32 exec_hi, 0x00f000f0")
        a("ds_write_b128 v30, %s" % vr(44))
        a("s_mov_b64 exec, -1")
        a("s_waitcnt lgkmcnt(0)")
        a("s_barrier")
        self.stamp(10)
        a("s_cmp_lg_u32 %s, 0" % S_W)
        a("s_cbranch_scc1 L_d_epoch")
        for p in range(8):
            a("ds_read_b64 %s, v31 offset:%d" % (vr(64 + 2 * p, 2), p * 128))
        for j in range(4):
            a("s_waitcnt lgkmcnt(%d)" % (6 - 2 * j))
            a("v_pk_add_f32 v[%d:%d], v[%d:%d], v[%d:%d]" % (64 + 4 * j, 65 + 4 * j, 64 + 4 * j, 65 + 4 * j, 66 + 4 * j, 67 + 4 * j))
        a("v_pk_add_f32 v[64:65], v[64:65], v[68:69]")
        a("v_pk_add_f32 v[72:73], v[72:73], v[76:77]")
        a("v_pk_add_f32 v[64:65], v[64:65], v[72:73]")
        a("v_pk_fma_f32 v[64:65], v[64:65], v[52:53], v[48:49]")
        a("v_cvt_pk_bf16_f32 v64, v64, v65")
        a("s_mov_b64 exec, 0xffff")
        a("buffer_store_dword v64, v192, %s, s76 offen" % q4(R_OUT))
        a("s_mov_b64 exec, -1")
        self.stamp(11)
        a("L_done:")
        self.finish()
        a("L_d_epoch:")
        a("s_lshl_b32 s77, s2, 2")
        a("s_add_u32 s77, s77, %s" % S_W)
        a("s_cmp_lg_u32 s77, 1")
        a("s_cbranch_scc1 L_done")
        a("s_mov_b32 s77, %d" % WS_E)
        a("s_mov_b64 exec, 1")
        a("buffer_store_dword v61, v8, %s, s77 offen sc1" % q4(R_WS))
        a("s_mov_b64 exec, -1")
        a("s_branch L_done")

    def role_g(self):
        a = self.a
        MASK = "s83"
        a("L_role_gm:")
        a("s_cmp_eq_u32 s96, 2")
        a("s_cbranch_scc1 L_role_m")
        a("s_cmp_eq_u32 %s, %d" % (S_G, self.mg_h))
        a("s_cbranch_scc1 L_done")
        a("s_mov_b32 m0, s80")
        self.t_loads(R_TA, 10)
        a("s_add_u32 m0, s80, 32768")
        a("s_xor_b32 s80, s80, 16384")
        a("s_barrier")
        self.t_loads(R_TB, 11)
        a("s_barrier")
        a("s_mov_b32 m0, s80")
        a("s_add_u32 s79, s79, s75")
        self.t_loads(R_TA, 10)
        a("s_add_u32 m0, s80, 32768")
        a("s_lshl_b32 s76, %s, 10" % S_W)
        self.t_loads(R_TB, 11)
        a("buffer_load_dwordx2 %s, v27, %s, s76 offen" % (vr(32, 2), q4(R_X)))
        a("buffer_load_dwordx2 %s, v27, %s, s76 offen offset:512" % (vr(34, 2), q4(R_X)))
        self.gr_wait("g")
        a("s_mov_b32 s79, 0")
        a("s_barrier")
        self.stamp(7)

        def mloads():
            for k, so in enumerate(("s65", "s66", "s67")):
                a("buffer_load_dwordx2 %s, v25, %s, %s offen sc1" % (vr(36 + 4 * k, 2), q4(R_WS), so))
                a("buffer_load_dwordx2 %s, v25, %s, %s offen offset:2048 sc1" % (vr(38 + 4 * k, 2), q4(R_WS), so))
        mloads()
        for t in range(16):
            for rd in range(2):
                a("ds_read_b64_tr_b16 %s, v24 offset:%d" % (vr(128 + 4 * t + 2 * rd, 2), (2 * t + rd) * 1024))
            if t % 4 == 3:
                a("s_waitcnt lgkmcnt(4)")
        a("s_branch L_g_m_in")
        a("L_g_m_retry:")
        mloads()
        a("L_g_m_in:")
        a("s_waitcnt vmcnt(0)")
        a("v_max3_u32 v1, v36, v37, v38")
        for j in range(39, 47, 2):
            a("v_max3_u32 v1, v1, v%d, v%d" % (j, j + 1))
        a("v_max_u32 v1, v1, v47")
        a("v_cmp_eq_u32 vcc, -1, v1")
        a("s_cbranch_vccz L_g_m_ok")
        self.spin_tail("L_g_m_retry", "s79")
        a("L_g_m_ok:")
        self.stamp(11)
        a("s_mov_b32 s79, 0")

        def loads():
            for e in range(8):
                gp, ac = e >> 1, e & 1
                a("buffer_load_dwordx4 %s, v21, %s, s%d offen offset:%d sc1" % (vr(64 + 4 * e), q4(R_WS), 68 + gp, ac * 2048))
        loads()
        self.unpack(192, 32, 16, MASK)
        for j in range(0, 8, 2):
            a("v_pk_add_f32 v[%d:%d], v[%d:%d], 1.0 op_sel_hi:[1,0]" % (216 + j, 217 + j, 216 + j, 217 + j))
        a("s_branch L_g_in")
        a("L_g_retry:")
        loads()
        a("L_g_in:")
        for e in range(8):
            a("s_waitcnt vmcnt(%d)" % (7 - e))
            acc = 32 + 4 * (e & 1)
            a("v_mfma_f32_16x16x32_bf16 %s, %s, %s, %s" % (vr(acc), vr(224), vr(64 + 4 * e), "0" if e < 2 else vr(acc)))
        a("v_cmp_u_f32 vcc, v32, v36")
        a("s_cbranch_vccz L_g_ok")
        self.spin_tail("L_g_retry", "s79")
        a("L_g_ok:")
        self.stamp(8)
        for j in range(0, 8, 2):
            a("v_pk_fma_f32 v[%d:%d], v[%d:%d], v[%d:%d], v[%d:%d]" % (32 + j, 33 + j, 32 + j, 33 + j, 200 + j, 201 + j, 192 + j, 193 + j))
        a("v_readfirstlane_b32 s78, v32")
        for j in range(8):
            a("v_subrev_f32 v%d, s78, v%d" % (32 + j, 32 + j))
        a("v_pk_add_f32 v[40:41], v[32:33], v[34:35]")
        a("v_pk_mul_f32 v[42:43], v[32:33], v[32:33]")
        a("v_pk_add_f32 v[48:49], v[36:37], v[38:39]")
        a("v_pk_fma_f32 v[42:43], v[34:35], v[34:35], v[42:43]")
        a("v_pk_add_f32 v[40:41], v[40:41], v[48:49]")
        a("v_pk_fma_f32 v[42:43], v[36:37], v[36:37], v[42:43]")
        a("v_add_f32 v40, v40, v41")
        a("v_pk_fma_f32 v[42:43], v[38:39], v[38:39], v[42:43]")
        a("v_add_f32 v41, v42, v43")
        self.allreduce("v_add_f32", [40, 41], [42, 43])
        a("v_mul_f32 v40, 0x3b000000, v40")
        a("v_mul_f32 v41, 0x3b000000, v41")
        a("v_fma_f32 v41, -v40, v40, v41")
        a("v_max_f32 v41, 0, v41")
        a("v_add_f32 v41, 0x%x, v41" % EPS)
        a("v_rsq_f32 v42, v41")
        a("v_mul_f32 v40, -v40, v42")
        for j in range(0, 8, 2):
            a("v_pk_fma_f32 v[%d:%d], v[%d:%d], v[42:43], v[40:41] op_sel_hi:[1,0,0]" % (32 + j, 33 + j, 32 + j, 33 + j))
        for j in range(0, 8, 2):
            a("v_pk_fma_f32 v[%d:%d], v[%d:%d], v[%d:%d], v[%d:%d]" % (32 + j, 33 + j, 32 + j, 33 + j, 216 + j, 217 + j, 208 + j, 209 + j))
        self.pack(40, 32, 4)
        a("ds_write_b64 v22, v[40:41]")
        a("ds_write_b64 v22, v[42:43] offset:2048")
        a("s_waitcnt lgkmcnt(0)")
        a("s_barrier")
        self.stamp(9)
        for t in range(12):
            a("ds_read_b128 %s, v23 offset:%d" % (vr(64 + 4 * t), t * 256))
        for t in range(16):
            if t < 4:
                a("s_waitcnt lgkmcnt(11)")
                a("ds_read_b128 %s, v23 offset:%d" % (vr(64 + 4 * (12 + t)), (12 + t) * 256))
            else:
                a("s_waitcnt lgkmcnt(%d)" % (15 - t))
            a("v_mfma_f32_16x16x32_bf16 %s, %s, %s, %s" % (vr(32), vr(128 + 4 * t), vr(64 + 4 * t), "0" if t == 0 else vr(32)))
        a("v_permlane32_swap_b32 v32, v34")
        a("v_permlane32_swap_b32 v33, v35")
        a("v_mul_f32 v32, 0x%x, v32" % NLOG2E)
        a("v_mul_f32 v33, 0x%x, v33" % NLOG2E)
        a("v_exp_f32 v32, v32")
        a("v_exp_f32 v33, v33")
        a("v_add_f32 v32, 1.0, v32")
        a("v_add_f32 v33, 1.0, v33")
        a("v_rcp_f32 v32, v32")
        a("v_rcp_f32 v33, v33")
        a("v_mul_f32 v32, v32, v34")
        a("v_mul_f32 v33, v33, v35")
        a("s_mov_b32 exec_lo, 0x000f000f")
        a("s_mov_b32 exec_hi, 0x000f000f")
        a("v_cvt_pk_bf16_f32 v32, v32, v33")
        a("buffer_store_dword v32, v26, %s, s56 offen sc1" % q4(R_WS))
        a("s_mov_b64 exec, -1")
        self.stamp(10)
        self.finish()

    def role_m(self):
        a = self.a
        a("L_role_m:")
        a("s_mov_b32 m0, s80")
        self.t_loads(R_TA, 10)
        a("s_add_u32 s79, s79, s75")
        a("s_xor_b32 m0, s80, 0x1000")
        a("s_barrier")
        self.t_loads(R_TA, 10)
        if self.helpg:
            a("s_barrier")
            a("buffer_load_dword v1, v27, %s, s65 offen %s" % (q4(R_TB), self.ntw))
        for kk in range(4):
            a("ds_read2_b64 %s, v21 offset0:%d offset1:%d" % (vr(64 + 4 * kk), 8 * kk, 8 * kk + 4))
        a("s_waitcnt vmcnt(%d) lgkmcnt(0)" % (1 if self.helpg else 0))
        self.wm_tr_reads()
        a("s_waitcnt lgkmcnt(0)")
        for kk in range(4):
            for tau in range(2):
                acc = 32 + 4 * tau
                a("v_mfma_f32_16x16x32_bf16 %s, %s, %s, %s" % (vr(acc), vr(64 + 4 * kk), vr(96 + 16 * tau + 4 * kk), "0" if kk == 0 else vr(acc)))
        self.wm_publish(32, 36, "L_done")
        self.stamp(8)
        self.finish()

    def silu8(self, src, dst):
        a = self.a
        self.unpack(40, src, 4, "s83")
        for j in range(8):
            a("v_mul_f32 v%d, 0x%x, v%d" % (48 + j, NLOG2E, 40 + j))
        for j in range(8):
            a("v_exp_f32 v%d, v%d" % (48 + j, 48 + j))
        for j in range(8):
            a("v_add_f32 v%d, 1.0, v%d" % (48 + j, 48 + j))
        for j in range(8):
            a("v_rcp_f32 v%d, v%d" % (48 + j, 48 + j))
        for j in range(8):
            a("v_mul_f32 v%d, v%d, v%d" % (48 + j, 48 + j, 40 + j))
        self.pack(dst, 48, 4)

    def mload(self):
        a = self.a
        a("s_lshl_b32 s82, %s, 10" % S_W)
        a("v_and_b32 v12, 1, v3")
        a("v_lshlrev_b32 v1, 1, v12")
        a("v_xor_b32 v1, v1, v4")
        a("v_lshrrev_b32 v11, 2, v0")
        a("v_mul_u32_u24 v10, 6144, v11")
        a("v_lshl_add_u32 v10, v1, 4, v10")
        a("s_and_b32 s72, %s, 1" % S_I)
        a("s_lshl_b32 s77, %s, 1" % S_W)
        a("s_add_u32 s77, s77, s72")
        a("s_lshl_b32 s80, s77, 12")
        a("s_add_u32 m0, s80, %d" % L_M)
        a("s_mul_i32 s79, s77, %d" % (64 * 6144))
        a("s_lshl_b32 s78, %s, 6" % S_I)
        a("s_add_u32 s79, s79, s78")
        a("s_mov_b32 s74, %d" % (16 * 6144 - 1024))
        for d, nm in ((R_C, 'c'), (R_X, 'x'), (R_TA, 'wmod')):
            a("s_mov_b32 s%d, %d" % (d + 2, KSIZE[nm]))
            a("s_mov_b32 s%d, 0x00020000" % (d + 3))
        a("s_waitcnt lgkmcnt(0)")
        for d, p in ((R_C, P_C), (R_X, P_X), (R_TA, P_WMOD)):
            a("s_mov_b64 s[%d:%d], s[%d:%d]" % (d, d + 1, p, p + 1))
        a("buffer_load_dwordx4 %s, v8, %s, s82 offen" % (vr(24), q4(R_C)))
        a("buffer_load_dwordx4 %s, v8, %s, s82 offen" % (vr(28), q4(R_X)))
        if self.cdelay:
            a("s_sleep %d" % self.cdelay)
        self.t_loads(R_TA, 10)
        a("s_xor_b32 s80, s80, 0x1000")
        a("s_add_u32 m0, s80, %d" % L_M)
        a("s_lshr_b32 s77, s80, 12")
        a("s_mul_i32 s79, s77, %d" % (64 * 6144))
        a("s_add_u32 s79, s79, s78")
        a("s_add_u32 s82, s82, %d" % L_SC)
        a("v_add_u32 v13, s82, v8")
        a("s_waitcnt vmcnt(5)")
        self.silu8(24, 24)
        a("ds_write_b128 v13, %s" % vr(24))
        self.t_loads(R_TA, 10)
        MASK = "s83"
        if self.stamps:
            a("s_mov_b32 s%d, s100" % STAMP0)
        self.stamp(7)
        a("s_waitcnt vmcnt(8)")
        self.unpack(40, 28, 4, MASK)
        a("v_pk_add_f32 v[48:49], v[40:41], v[42:43]")
        a("v_pk_add_f32 v[50:51], v[44:45], v[46:47]")
        a("v_pk_add_f32 v[48:49], v[48:49], v[50:51]")
        a("v_add_f32 v48, v48, v49")
        self.allreduce("v_add_f32", [48], [49])
        a("v_mul_f32 v48, 0x3b000000, v48")
        for j in range(8):
            a("v_sub_f32 v%d, v%d, v48" % (52 + j, 40 + j))
        a("v_mul_f32 v49, v52, v52")
        for j in range(1, 8):
            a("v_fmac_f32 v49, v%d, v%d" % (52 + j, 52 + j))
        self.allreduce("v_add_f32", [49], [50])
        a("v_mul_f32 v49, 0x3b000000, v49")
        self.rnd(48, 1, 50, MASK)
        a("v_add_f32 v49, 0x%x, v49" % EPS)
        self.rnd(48, 1, 50, MASK)
        a("v_sqrt_f32 v49, v49")
        self.rnd(48, 1, 50, MASK)
        a("v_rcp_f32 v49, v49")
        for j in range(8):
            a("v_sub_f32 v%d, v%d, v48" % (40 + j, 40 + j))
        self.rnd(40, 4, 52, MASK)
        for j in range(8):
            a("v_mul_f32 v%d, v%d, v49" % (40 + j, 40 + j))
        self.pack(28, 40, 4)
        a("ds_write_b128 v13, %s offset:%d" % (vr(28), L_N - L_SC))
        a("v_lshrrev_b32 v1, 2, v7")
        a("v_lshlrev_b32 v21, 10, v1")
        a("v_lshl_add_u32 v21, v3, 3, v21")
        a("s_lshl_b32 s77, %s, 8" % S_W)
        a("s_add_u32 s77, s77, %d" % L_SC)
        a("v_add_u32 v21, s77, v21")
        a("v_lshlrev_b32 v22, 6, v11")
        a("v_lshl_add_u32 v22, v12, 5, v22")
        a("v_lshl_add_u32 v22, v4, 3, v22")
        a("s_lshl_b32 s77, %s, 13" % S_W)
        a("s_add_u32 s77, s77, %d" % L_M)
        a("v_add_u32 v22, s77, v22")
        a("v_xor_b32 v23, 32, v22")
        a("v_lshlrev_b32 v20, 2, v7")
        a("v_lshl_add_u32 v20, v3, 7, v20")
        a("s_lshl_b32 s77, %s, 9" % S_W)
        a("s_add_u32 s77, s77, %d" % L_RED)
        a("v_add_u32 v20, s77, v20")
        a("s_waitcnt lgkmcnt(0)")
        self.stamp(8)
        a("s_barrier")
        if self.stamps:
            a("s_mov_b32 s100, s%d" % STAMP0)

    def mprep(self):
        a = self.a
        a("L_mcomp:")
        for kk in range(4):
            a("ds_read2_b64 %s, v21 offset0:%d offset1:%d" % (vr(40 + 4 * kk), 8 * kk, 8 * kk + 4))
        self.stamp(9)
        a("s_waitcnt vmcnt(4) lgkmcnt(0)")
        self.stamp(10)
        self.wm_tr_reads(128)
        for tau in range(2):
            a("s_waitcnt lgkmcnt(%d)" % (8 - 8 * tau))
            for kk in range(4):
                acc = 32 + 4 * tau
                a("v_mfma_f32_16x16x32_bf16 %s, %s, %s, %s" % (vr(acc), vr(40 + 4 * kk), vr(128 + 16 * tau + 4 * kk), "0" if kk == 0 else vr(acc)))
        a("ds_write_b32 v20, v32")
        a("ds_write_b32 v20, v36 offset:64")
        a("s_waitcnt lgkmcnt(0)")
        self.stamp(11)
        a("s_barrier")
        a("s_branch L_stream2")

    def front_wave(self):
        a = self.a
        MASK = "s83"
        a("L_front:")
        a("s_setprio 3")
        for j in range(4):
            a("v_mov_b32 v%d, -1" % (32 + j))
        a("v_mov_b32 v13, 0")
        a("v_lshlrev_b32 v12, 4, v7")
        a("v_lshl_add_u32 v12, v3, 13, v12")
        a("s_lshl_b32 s76, %s, 5" % S_G)
        a("s_add_u32 s76, s76, %s" % S_I)
        a("s_lshl_b32 s82, s76, 10")
        a("s_add_u32 s82, s82, %d" % WS_A)
        a("s_lshl_b32 s81, %s, 15" % S_G)
        a("s_lshl_b32 s77, %s, 8" % S_I)
        a("s_add_u32 s81, s81, s77")
        a("s_add_u32 s81, s81, %d" % WS_QP)
        a("s_mov_b32 s80, %d" % WS_E)
        a("s_lshl_b32 s77, %s, 10" % S_I)
        a("s_lshl_b32 s56, %s, 12" % S_G)
        a("s_add_u32 s78, s56, %d" % WS_B)
        a("s_add_u32 s56, s56, %d" % (WS_C - 4096))
        a("s_cmp_ge_u32 %s, 4" % S_I)
        a("s_cselect_b32 s78, s56, s78")
        a("s_lshl_b32 s56, %s, 11" % S_G)
        a("s_add_u32 s56, s56, %d" % (WS_M2 - 8192))
        a("s_cmp_ge_u32 %s, 8" % S_I)
        a("s_cselect_b32 s78, s56, s78")
        a("s_lshl_b32 s56, %s, 10" % S_G)
        a("s_add_u32 s56, s56, %d" % (WS_ST - 10240))
        a("s_cmp_ge_u32 %s, 10" % S_I)
        a("s_cselect_b32 s78, s56, s78")
        a("s_cmp_ge_u32 %s, 11" % S_I)
        a("s_cselect_b32 s78, 0x40000000, s78")
        a("s_add_u32 s78, s78, s77")
        for d, nm in ((R_WS, 'ws'), (R_C, 'c')):
            a("s_mov_b32 s%d, %d" % (d + 2, KSIZE[nm]))
            a("s_mov_b32 s%d, 0x00020000" % (d + 3))
        a("s_waitcnt lgkmcnt(0)")
        for d, p in ((R_WS, P_WS), (R_C, P_C)):
            a("s_mov_b64 s[%d:%d], s[%d:%d]" % (d, d + 1, p, p + 1))
        a("buffer_load_dword v15, v13, %s, s80 offen sc1" % q4(R_WS))
        if self.stamps:
            a("s_mov_b32 s%d, s100" % STAMP0)
            for k in range(1, 12):
                a("s_mov_b32 s%d, 0" % (STAMP0 + k))

        def make_tag():
            a("v_readfirstlane_b32 s73, v15")
            a("s_mul_i32 s73, s73, %d" % LCG_A)
            a("s_add_u32 s73, s73, %d" % LCG_C)

        def post_ids(younger=0):
            a("s_getreg_b32 s72, hwreg(HW_REG_XCC_ID, 0, 4)")
            if self.force_remote:
                a("s_and_b32 s72, %s, 15" % S_I)
            a("s_lshl_b32 s60, %s, 8" % S_G)
            a("s_add_u32 s60, s60, %d" % WS_IDC)
            a("s_lshl_b32 s77, %s, 2" % S_I)
            a("s_add_u32 s77, s77, s60")
            a("s_lshl_b32 s76, s76, 7")
            a("s_add_u32 s76, s76, %d" % WS_IDR)
            a("s_waitcnt vmcnt(%d)" % younger)
            make_tag()
            a("s_xor_b32 s72, s72, s73")
            a("v_mov_b32 v22, s72")
            a("s_mov_b64 exec, 1")
            a("buffer_store_dword v22, v13, %s, s77 offen" % q4(R_WS))
            a("buffer_store_dword v22, v13, %s, s76 offen sc1" % q4(R_WS))
            if self.warm:
                a("s_mov_b32 exec_lo, 0x01010101")
                a("s_mov_b32 exec_hi, 0x01010101")
                a("buffer_load_dword v14, v8, %s, s82 offen sc1" % q4(R_WS))
                a("buffer_load_dword v14, v12, %s, s81 offen sc1" % q4(R_WS))
                a("s_cmp_eq_u32 %s, 10" % S_I)
                a("s_cselect_b32 s78, s78, 0x40000000")
                a("buffer_load_dword v14, v8, %s, s78 offen sc1" % q4(R_WS))
            a("s_mov_b64 exec, -1")

        a("s_cmp_eq_u32 %s, %d" % (S_G, self.mg_h))
        a("s_cbranch_scc1 L_f_m")
        a("s_cmp_lt_u32 %s, 24" % S_I)
        a("s_cbranch_scc1 L_f_q")
        for b in range(4):
            a("buffer_load_dwordx4 %s, v8, %s, 0 offen offset:%d" % (vr(208 + 4 * b), q4(R_C), b * 1024))
        a("L_f_q:")
        a("buffer_store_dwordx4 %s, v8, %s, s82 offen sc1" % (vr(32), q4(R_WS)))
        a("buffer_store_dwordx4 %s, v12, %s, s81 offen sc1" % (vr(32), q4(R_WS)))
        a("buffer_store_dwordx4 %s, v8, %s, s78 offen sc1" % (vr(32), q4(R_WS)))
        if self.exp == 4:
            a("s_barrier")
            self.finish()
        a("s_barrier")
        post_ids()
        if self.hsleep:
            a("s_sleep %d" % self.hsleep)
        a("L_f_q2:")
        if self.exp in (4, 5):
            self.finish()
        self.stamp(4)
        a("v_lshrrev_b32 v1, 2, v7")
        a("v_lshlrev_b32 v16, 9, v1")
        a("v_lshl_add_u32 v16, v3, 6, v16")
        a("v_lshl_add_u32 v16, v4, 4, v16")
        a("s_lshl_b32 s61, %s, 11" % S_B)
        a("s_add_u32 s61, s61, %d" % WS_H)
        a("s_add_u32 s57, s61, 8192")
        a("v_and_b32 v19, 31, v0")
        a("v_lshlrev_b32 v20, 7, v19")
        a("v_lshlrev_b32 v19, 2, v19")

        def h_loads():
            for e in range(4):
                a("buffer_load_dwordx4 %s, v16, %s, %s offen offset:%d sc1" % (vr(192 + 4 * e), q4(R_WS), "s61" if e < 2 else "s57", (e & 1) * 256))
            a("buffer_load_dword v23, v19, %s, s60 offen sc1" % q4(R_WS))
        a("v_lshlrev_b32 v18, 13, v4")
        a("v_lshl_add_u32 v18, v1, 6, v18")
        a("v_lshl_add_u32 v18, v3, 4, v18")
        a("s_lshl_b32 s62, %s, 2" % S_G)
        a("s_add_u32 s62, s62, %s" % S_B)
        a("s_lshl_b32 s62, s62, 13")
        a("s_add_u32 s62, s62, %d" % WS_QP)
        a("s_add_u32 s63, s62, 4096")
        a("s_lshl_b32 s59, %s, 12" % S_G)
        a("s_add_u32 s59, s59, %d" % WS_IDR)
        a("v_lshrrev_b32 v36, 2, v0")
        a("v_lshlrev_b32 v36, 7, v36")
        a("v_bfe_u32 v1, v0, 3, 2")
        a("v_lshl_add_u32 v36, v1, 5, v36")
        a("v_lshl_add_u32 v36, v4, 3, v36")
        a("v_add_u32 v36, %d, v36" % L_WQ)
        for tau in range(1, 4):
            a("v_xor_b32 v%d, %d, v36" % (36 + tau, 32 * tau))
        a("v_lshlrev_b32 v17, 3, v0")
        a("v_add_u32 v17, %d, v17" % L_Q)
        a("s_mov_b32 s79, 0")
        for tau in range(4):
            for kk in range(4):
                for rd in range(2):
                    a("ds_read_b64_tr_b16 %s, v%d offset:%d" % (vr(128 + 16 * tau + 4 * kk + 2 * rd, 2), 36 + tau, kk * 4096 + rd * 2048))
            a("s_waitcnt lgkmcnt(4)")
        if self.sent:
            a("s_lshl_b32 s77, %s, 6" % S_G)
            a("s_add_u32 s77, s77, s61")
            a("s_add_u32 s68, s%d, s77" % P_WS)
            a("s_addc_u32 s69, s%d, 0" % (P_WS + 1))
            a("L_sent:")
            for e in range(8):
                a("s_load_dword s%d, s[68:69], %d glc" % (44 + e, (e >> 2) * 8192 + (e & 3) * 512 + 4))
            a("s_waitcnt lgkmcnt(0)")
            for e in range(8):
                a("s_xor_b32 s%d, s%d, s73" % (44 + e, 44 + e))
            a("s_or_b64 s[44:45], s[44:45], s[46:47]")
            a("s_or_b64 s[48:49], s[48:49], s[50:51]")
            a("s_or_b64 s[44:45], s[44:45], s[48:49]")
            a("s_cbranch_scc0 L_sent_ok")
            self.spin_tail("L_sent", "s79")
            a("L_sent_ok:")
            self.stamp(7)
            a("s_mov_b32 s79, 0")
        for _ in range(self.hdeep - 1):
            h_loads()
            a("s_sleep %d" % (2 * self.half // self.hdeep))
        a("L_h_retry:")
        h_loads()
        a("s_waitcnt vmcnt(%d) lgkmcnt(0)" % (5 * (self.hdeep - 1)))
        for j in range(8):
            a("v_xor_b32 v%d, s73, v%d" % (40 + j, 193 + 2 * j))
        a("v_or3_b32 v1, v40, v41, v42")
        a("v_or3_b32 v2, v43, v44, v45")
        a("v_or3_b32 v1, v1, v46, v47")
        a("v_or_b32 v1, v1, v2")
        a("v_mov_b32 v2, 0")
        a("v_cmp_ne_u32 vcc, v1, v2")
        a("s_cbranch_vccz L_h_ok")
        self.spin_tail("L_h_retry", "s79")
        a("L_h_ok:")
        self.count(8, "s79")
        self.stamp(5)
        for j in range(8):
            a("v_and_b32 v%d, %s, v%d" % (41 + 2 * j, MASK, 192 + 2 * j))
            a("v_lshlrev_b32 v%d, 16, v%d" % (40 + 2 * j, 192 + 2 * j))
        for j in range(0, 8, 2):
            a("v_pk_add_f32 v[%d:%d], v[%d:%d], v[%d:%d]" % (40 + j, 41 + j, 40 + j, 41 + j, 48 + j, 49 + j))
        self.pack(26, 40, 4)
        for tau in range(4):
            for kk in range(4):
                a("v_mfma_f32_16x16x32_bf16 %s, %s, %s, 0" % (vr(64 + 16 * tau + 4 * kk), vr(128 + 16 * tau + 4 * kk), vr(26)))
        a("v_cmp_ne_u32 vcc, s72, v23")
        a("s_mov_b32 s58, 1")
        a("s_cbranch_vccnz L_id_slow")
        a("L_id_ok:")
        for tau in range(4):
            kks = [x for x in range(4) if x != tau]
            for k, kk in enumerate(kks):
                for r in range(4):
                    src1 = 64 + 16 * tau + 4 * tau + r if k == 0 else 32 + r
                    a("v_add_f32_dpp v%d, v%d, v%d row_ror:%d row_mask:0xf bank_mask:0x%x" % (32 + r, 64 + 16 * tau + 4 * kk + r, src1, (4 * (tau - kk)) & 15, 1 << tau))
        a("s_cmp_eq_u32 s58, 0")
        a("s_cbranch_scc1 L_qp_remote")
        a("buffer_store_dwordx4 %s, v18, %s, s81 offen" % (vr(32), q4(R_WS)))
        a("L_qp_done:")
        if self.exp == 6:
            self.finish()
        self.stamp(3)
        a("s_cmp_lg_u32 %s, 0" % S_I)
        a("s_cbranch_scc1 L_f_nogr")
        a("s_lshl_b32 s77, %s, 7" % S_G)
        a("s_add_u32 s77, s77, %d" % WS_GR)
        a("v_mov_b32 v22, s73")
        a("s_mov_b64 exec, 1")
        a("buffer_store_dword v22, v13, %s, s77 offen sc1" % q4(R_WS))
        a("s_mov_b64 exec, -1")
        a("L_f_nogr:")
        a("s_cmp_eq_u32 %s, %d" % (S_G, self.mg_h))
        a("s_cbranch_scc1 L_f_nos2")
        a("s_cmp_ge_u32 %s, 24" % S_I)
        a("s_cbranch_scc1 L_f_silu")
        a("L_f_nos2:")
        if self.qsleep:
            a("s_sleep %d" % self.qsleep)
        a("L_f_gather:")
        a("s_mov_b32 s79, 0")

        def q_loads():
            for e in range(8):
                a("buffer_load_dwordx4 %s, v8, %s, %s offen offset:%d sc1" % (vr(128 + 4 * e), q4(R_WS), "s62" if e < 4 else "s63", (e & 3) * 1024))
        for _ in range(self.qdeep - 1):
            q_loads()
            a("s_sleep %d" % (2 * self.half // self.qdeep))
        a("L_q_retry:")
        q_loads()
        a("s_waitcnt vmcnt(%d)" % (8 * (self.qdeep - 1)))
        for j in range(0, 16, 2):
            a("v_pk_add_f32 v[%d:%d], v[%d:%d], v[%d:%d]" % (64 + j, 65 + j, 128 + j, 129 + j, 144 + j, 145 + j))
        for j in range(0, 8, 2):
            a("v_pk_add_f32 v[%d:%d], v[%d:%d], v[%d:%d]" % (64 + j, 65 + j, 64 + j, 65 + j, 72 + j, 73 + j))
        a("v_pk_add_f32 v[72:73], v[64:65], v[66:67]")
        a("v_pk_add_f32 v[74:75], v[68:69], v[70:71]")
        a("v_pk_add_f32 v[72:73], v[72:73], v[74:75]")
        a("v_cmp_u_f32 vcc, v72, v73")
        a("s_cbranch_vccz L_q_ok")
        self.spin_tail("L_q_retry", "s79")
        a("L_q_ok:")
        self.count(9, "s79")
        self.pack(28, 64, 4)
        a("ds_write_b64 v17, v[28:29]")
        a("ds_write_b64 v17, v[30:31] offset:512")
        a("v_mov_b32 v24, s58")
        a("v_mov_b32 v25, s73")
        a("v_mov_b32 v1, %d" % L_LOC)
        a("ds_write_b64 v1, v[24:25]")
        a("s_waitcnt lgkmcnt(0)")
        self.stamp(6)
        a("s_barrier")
        self.finish()
        a("L_qp_remote:")
        a("buffer_store_dwordx4 %s, v18, %s, s81 offen sc1" % (vr(32), q4(R_WS)))
        a("s_branch L_qp_done")
        a("L_id_slow:")
        a("s_mov_b32 s79, 0")
        a("L_id_again:")
        a("buffer_load_dword v23, v19, %s, s60 offen sc1" % q4(R_WS))
        a("s_waitcnt vmcnt(0)")
        a("v_cmp_ne_u32 vcc, s72, v23")
        a("s_cbranch_vccz L_id_ok")
        a("s_add_u32 s79, s79, 1")
        a("s_cmp_lt_u32 s79, 3")
        a("s_cbranch_scc1 L_id_again")
        a("L_id_retry:")
        a("buffer_load_dword v23, v20, %s, s59 offen sc1" % q4(R_WS))
        a("s_waitcnt vmcnt(0)")
        a("v_xor_b32 v1, s73, v23")
        a("v_cmp_lt_u32 vcc, 15, v1")
        a("s_cbranch_vccz L_id_all")
        self.spin_tail("L_id_retry", "s79")
        a("L_id_all:")
        a("v_cmp_ne_u32 vcc, s72, v23")
        a("s_cbranch_vccz L_id_ok")
        a("s_mov_b32 s58, 0")
        a("s_branch L_id_ok")
        a("L_f_silu:")
        a("v_add_u32 v21, %d, v8" % L_SC)
        a("s_mov_b32 s77, 0")
        a("L_f_silu_l:")
        self.silu8(208, 24)
        a("ds_write_b128 v21, %s" % vr(24))
        for j in range(12):
            a("v_mov_b32 v%d, v%d" % (208 + j, 212 + j))
        a("v_add_u32 v21, 1024, v21")
        a("s_add_u32 s77, s77, 1")
        a("s_cmp_lt_u32 s77, 4")
        a("s_cbranch_scc1 L_f_silu_l")
        a("s_branch L_f_gather")
        a("L_f_m:")
        a("v_lshrrev_b32 v1, 3, v0")
        a("v_and_b32 v18, 1, v0")
        a("v_lshl_add_u32 v1, v1, 1, v18")
        a("v_bfe_u32 v19, v0, 1, 2")
        a("v_lshlrev_b32 v16, 3, v1")
        a("v_lshl_add_u32 v16, v19, 7, v16")
        a("v_add_u32 v16, %d, v16" % L_RED)
        a("v_lshlrev_b32 v18, 2, v1")
        a("v_lshl_add_u32 v18, v19, 10, v18")
        a("s_and_b32 s77, %s, 15" % S_I)
        a("s_lshl_b32 s77, s77, 6")
        a("s_add_u32 s77, s77, %d" % L_N)
        a("v_add_u32 v18, s77, v18")
        a("v_lshlrev_b32 v19, 3, v0")
        a("s_lshl_b32 s62, %s, 9" % S_I)
        a("s_add_u32 s62, s62, %d" % WS_H)
        a("s_barrier")
        a("ds_read_b32 v20, v18")
        a("buffer_store_dwordx4 %s, v8, %s, s82 offen sc1" % (vr(32), q4(R_WS)))
        a("buffer_store_dwordx4 %s, v12, %s, s81 offen sc1" % (vr(32), q4(R_WS)))
        a("buffer_store_dwordx4 %s, v8, %s, s78 offen sc1" % (vr(32), q4(R_WS)))
        a("s_waitcnt vmcnt(3)")
        make_tag()
        a("v_mov_b32 v25, s73")
        a("s_waitcnt lgkmcnt(0)")
        self.unpack(48, 20, 1, MASK)
        self.stamp(1)
        a("s_cmp_lt_u32 %s, 16" % S_I)
        a("s_barrier")
        for h in range(4):
            a("ds_read_b64 %s, v16 offset:%d" % (vr(64 + 2 * h, 2), h * 512))
        a("s_waitcnt lgkmcnt(2)")
        a("v_pk_add_f32 v[64:65], v[64:65], v[66:67]")
        a("s_waitcnt lgkmcnt(0)")
        a("v_pk_add_f32 v[68:69], v[68:69], v[70:71]")
        a("v_pk_add_f32 v[64:65], v[64:65], v[68:69]")
        a("s_cbranch_scc1 L_f_h_sa")
        self.rnd(64, 1, 40, MASK)
        a("v_pk_add_f32 v[64:65], v[64:65], 1.0 op_sel_hi:[1,0]")
        self.rnd(64, 1, 40, MASK)
        a("v_pk_mul_f32 v[64:65], v[64:65], v[48:49]")
        a("L_f_h_sa:")
        a("v_cvt_pk_bf16_f32 v24, v64, v65")
        a("buffer_store_dwordx2 v[24:25], v19, %s, s62 offen sc1" % q4(R_WS))
        self.stamp(2)
        post_ids(1)
        a("s_barrier")
        a("s_branch L_f_q2")

    def stamps_out(self):
        a = self.a
        a("L_stamps:")
        a("s_waitcnt vmcnt(0)")
        if self.pwg >= 0:
            a("s_cmp_lg_u32 s2, %d" % self.pwg)
            a("s_cbranch_scc1 L_exit")
            a("s_cmp_lg_u32 %s, %d" % (S_W, self.pwave))
            a("s_cbranch_scc1 L_exit")
            a("s_sub_u32 s76, s%d, s%d" % (STAMP0 + self.pk, STAMP0))
            a("s_mul_i32 s76, s76, 10")
            a("s_min_u32 s76, s76, 100000")
            a("s_add_u32 s76, s76, 10000")
            if self.pwave == 4:
                for _ in range(5):
                    a("s_barrier")
            a("L_pspin:")
            a("s_memrealtime s[100:101]")
            a("s_waitcnt lgkmcnt(0)")
            a("s_sub_u32 s77, s100, s%d" % STAMP0)
            a("s_cmp_lt_u32 s77, s76")
            a("s_cbranch_scc1 L_pspin")
            a("s_endpgm")
        a("s_lshl_b32 s76, s2, 3")
        a("s_add_u32 s76, s76, %s" % S_W)
        a("s_lshl_b32 s76, s76, 6")
        a("s_add_u32 s76, s76, %d" % WS_STAMP)
        a("v_mov_b32 v1, 0")
        for k in range(12):
            a("v_writelane_b32 v1, s%d, %d" % (STAMP0 + k, k))
        a("v_lshlrev_b32 v2, 2, v0")
        a("s_mov_b64 exec, 0xffff")
        a("buffer_store_dword v1, v2, %s, s76 offen" % q4(R_WS))
        a("s_endpgm")

    def build(self):
        a = self.a
        self.prologue()
        self.main_wave()
        self.front_wave()
        if self.stamps:
            self.stamps_out()
        a("L_exit:")
        a("L_last:")
        a("s_endpgm")
        lines, n = hazard.fix(a.lines)
        sys.stderr.write("hazard pass inserted %d wait states, %d lines\n" % (n, len(lines)))
        return kernel_file("\n".join(lines) + "\n", 256, 320, LDS_BYTES, 232)


if __name__ == "__main__":
    kw = {}
    out = sys.argv[1]
    for x in sys.argv[2:]:
        k, v = x.split("=")
        kw[k] = int(v) if v.lstrip("-").isdigit() else v
    open(out, "w").write(Gen(**kw).build())
```

```python
import sys
from asmlib import *
import hazard

WS_B, WS_C, WS_M2, WS_ST = 0x0, 0x8000, 0x10000, 0x14000
WS_H, WS_E, WS_IDC, WS_IDR, WS_A, WS_QP = 0x18000, 0x1C000, 0x1D000, 0x20000, 0x40000, 0x80000
WS_GR = 0x1E000
WS_STAMP = 0x100000
L_V = 0
L_WQ = 65536
L_M = 81920
L_T1 = 65536
L_T2 = 98304
L_MISC = 131072
L_Q = L_MISC
L_SC = L_MISC + 1024
L_N = L_SC + 4096
L_H2 = L_SC
L_P = L_N + 4096
L_RED = L_P + 2048
L_RED2 = L_RED + 2048
L_MAX = L_RED2 + 1024
L_SUM = L_MAX + 64
L_LOC = L_SUM + 64
L_DUMP = L_MISC + 16384
LDS_BYTES = L_DUMP + 2048
assert L_LOC + 64 <= LDS_BYTES

LOG2E = 0x3FB8AA3B
NLOG2E = 0xBFB8AA3B
SCALE = 0x3DB504F3
EPS = 0x3727C5AC
SPIN_MAX = 0x10000

S_G, S_I, S_B, S_S, S_W = "s4", "s5", "s6", "s7", "s3"
P_X, P_WQ, P_WO, P_WG, P_WU = 8, 14, 16, 20, 22
P_WD, P_C, P_WMOD, P_OUT, P_DBG, P_WS = 24, 26, 28, 30, 32, 34
R_WS, R_K, R_V, R_TA, R_TB, R_WD, R_X, R_C, R_OUT, R_DBG = 36, 40, 44, 48, 52, 56, 60, 64, 68, 72
R_WO = R_K
R_WQ, R_WMOD = 48, 52
LCG_A, LCG_C = 1664525, 1013904223
STAMP0 = 84


def q4(n):
    return "s[%d:%d]" % (n, n + 3)


def vr(n, k=4):
    return "v[%d:%d]" % (n, n + k - 1)


class Gen:
    def __init__(self, stamps=False, win=5, hdeep=2, qdeep=2, half=16, winv=6, helpg=1, sent=0, ntw="", warm=1, cdelay=3, st_local="sc1", nt="nt", mg_h=1, pref=1, force_remote=0, exp=0, tailfree=3, hsleep=0, qsleep=8, pop="", pgm=255, ilo=0, ihi=32, pamp=20, pwave=0, pk=0):
        self.pop, self.pgm, self.ilo, self.ihi, self.pamp, self.pwave, self.pk = pop, pgm, ilo, ihi, pamp, pwave, pk
        self.a = Asm()
        self.stamps = stamps
        self.win = win
        self.winv = winv
        self.helpg = helpg
        self.sent = sent
        self.hdeep, self.qdeep, self.half = hdeep, qdeep, half
        self.ntw = ntw
        self.warm = warm
        self.cdelay = cdelay
        self.st_local = st_local
        self.nt = nt
        self.mg_h = mg_h
        self.pref = pref
        self.exp = exp
        self.tailfree = tailfree
        self.hsleep = hsleep
        self.qsleep = qsleep
        self.force_remote = force_remote

    def stamp(self, k):
        if self.stamps:
            a = self.a
            a("s_memrealtime s[100:101]")
            a("s_waitcnt lgkmcnt(0)")
            a("s_mov_b32 s%d, s100" % (STAMP0 + k))

    def count(self, k, reg):
        if self.stamps:
            self.a("s_mul_i32 s%d, %s, 100" % (STAMP0 + k, reg))
            self.a("s_add_u32 s%d, s%d, s%d" % (STAMP0 + k, STAMP0 + k, STAMP0))

    def finish(self):
        a = self.a
        if self.stamps:
            a("s_branch L_stamps")
        else:
            a("s_endpgm")

    def mksrd(self, d, p, size):
        a = self.a
        a("s_mov_b64 s[%d:%d], s[%d:%d]" % (d, d + 1, p, p + 1))
        a("s_mov_b32 s%d, %d" % (d + 2, size))
        a("s_mov_b32 s%d, 0x00020000" % (d + 3))

    def spin_tail(self, lab, cnt):
        a = self.a
        a("s_add_u32 %s, %s, 1" % (cnt, cnt))
        a("s_cmp_lt_u32 %s, %d" % (cnt, SPIN_MAX))
        a("s_cbranch_scc1 %s" % lab)

    def allreduce(self, op, regs, tmp, rors=(1, 2, 4, 8)):
        a = self.a
        for r in rors:
            for x in regs:
                a("%s_dpp v%d, v%d, v%d row_ror:%d row_mask:0xf bank_mask:0xf" % (op, x, x, x, r))
        for sw in ("v_permlane16_swap_b32", "v_permlane32_swap_b32"):
            for x, t in zip(regs, tmp):
                a("v_mov_b32 v%d, v%d" % (t, x))
            for x, t in zip(regs, tmp):
                a("%s v%d, v%d" % (sw, x, t))
            for x, t in zip(regs, tmp):
                a("%s v%d, v%d, v%d" % (op, x, x, t))

    def unpack(self, dst, src, n, mask):
        a = self.a
        for j in range(n):
            a("v_lshlrev_b32 v%d, 16, v%d" % (dst + 2 * j, src + j))
            a("v_and_b32 v%d, %s, v%d" % (dst + 2 * j + 1, mask, src + j))

    def pack(self, dst, src, n):
        a = self.a
        for j in range(n):
            a("v_cvt_pk_bf16_f32 v%d, v%d, v%d" % (dst + j, src + 2 * j, src + 2 * j + 1))

    def rnd(self, x, n, tmp, mask):
        self.pack(tmp, x, n)
        self.unpack(x, tmp, n, mask)

    def sigma_voff(self, dst, rowb, t1, t2):
        a = self.a
        a("v_bfe_u32 v%d, v0, 3, 2" % t1)
        a("v_lshlrev_b32 v%d, 3, v%d" % (t1, t1))
        a("v_bfe_u32 v%d, v0, 1, 2" % t2)
        a("v_add_u32 v%d, v%d, v%d" % (t1, t1, t2))
        a("v_lshrrev_b32 v%d, 5, v0" % t2)
        a("v_lshl_add_u32 v%d, v%d, 2, v%d" % (t1, t2, t1))
        a("v_mul_u32_u24 v%d, %d, v%d" % (t1, rowb, t1))
        a("v_and_b32 v%d, 1, v0" % t2)
        a("v_lshl_add_u32 v%d, v%d, 4, v%d" % (dst, t2, t1))

    def prologue(self):
        a = self.a
        a("L_start:")
        if self.stamps:
            a("s_memrealtime s[100:101]")
        a("s_load_dwordx2 s[%d:%d], s[0:1], 8" % (R_K, R_K + 1))
        a("s_load_dwordx16 s[8:23], s[0:1], 0")
        a("s_load_dwordx8 s[24:31], s[0:1], 64")
        a("s_load_dwordx4 s[32:35], s[0:1], 96")
        a("s_getpc_b64 s[70:71]")
        a("L_pc:")
        a("s_cmpk_ge_u32 s2, 256")
        a("s_cbranch_scc1 L_exit")
        a("v_lshrrev_b32 v1, 6, v0")
        a("v_and_b32 v0, 63, v0")
        a("v_readfirstlane_b32 %s, v1" % S_W)
        a("s_and_b32 %s, s2, 7" % S_G)
        a("s_lshr_b32 %s, s2, 3" % S_I)
        a("s_lshr_b32 %s, s2, 6" % S_B)
        a("s_and_b32 %s, %s, 7" % (S_S, S_I))
        a("v_and_b32 v7, 15, v0")
        a("v_lshrrev_b32 v3, 4, v0")
        a("v_and_b32 v4, 3, v0")
        a("v_lshlrev_b32 v8, 4, v0")
        a("s_mov_b32 s83, 0xffff0000")
        a("s_cmp_lg_u32 %s, 4" % S_W)
        a("s_cbranch_scc1 L_main")
        if self.pref:
            a("v_lshl_add_u32 v1, %s, 4, v7" % S_S)
            a("v_lshlrev_b32 v1, 7, v1")
            a("v_min_u32 v1, L_last-L_pc, v1")
            a("s_mov_b64 exec, 0xffff")
            a("global_load_dword v2, v1, s[70:71]")
            a("s_mov_b64 exec, -1")
        a("s_branch L_front")
        a("L_main:")

    def t_loads(self, srd, voff, pol=None):
        a = self.a
        pol = self.ntw if pol is None else pol
        a("buffer_load_dwordx4 v%d, %s, s79 offen %s lds" % (voff, q4(srd), pol))
        a("s_add_u32 s77, s79, s74")
        for e in range(1, 4):
            a("buffer_load_dwordx4 v%d, %s, s77 offen offset:%d %s lds" % (voff, q4(srd), e * 1024, pol))
            if e < 3:
                a("s_add_u32 s77, s77, s74")

    def local_store(self, text):
        a = self.a
        l1, l2 = a.label("L_ls"), a.label("L_ls")
        a("s_cmp_eq_u32 s73, 0")
        a("s_cbranch_scc1 %s" % l1)
        a(text)
        a("%s:" % l2)
        self.deferred.append((l1, text + " sc1", l2))

    def main_wave(self):
        a = self.a
        W = self.win
        MASK = "s83"
        self.deferred = []
        a("s_cmp_lg_u32 %s, %d" % (S_G, self.mg_h))
        a("s_cbranch_scc1 L_stream")
        self.mload()
        a("L_stream:")
        a("v_and_b32 v1, 7, v0")
        a("v_lshlrev_b32 v9, 1, v3")
        a("v_xor_b32 v1, v1, v9")
        a("v_lshrrev_b32 v9, 3, v0")
        a("v_lshlrev_b32 v9, 13, v9")
        a("v_lshl_add_u32 v9, v1, 4, v9")
        a("s_lshl_b32 s79, %s, 2" % S_B)
        a("s_add_u32 s79, s79, %s" % S_W)
        a("s_lshl_b32 s79, s79, 8")
        a("s_add_u32 s79, s79, %s" % S_G)
        a("s_lshl_b32 s79, s79, 3")
        a("s_add_u32 s79, s79, %s" % S_S)
        a("s_lshl_b32 s79, s79, 7")
        a("s_lshl_b32 s98, %s, 12" % S_W)
        a("s_add_u32 m0, s98, %d" % L_WQ)
        a("s_mov_b32 s74, %d" % (65536 - 1024))
        a("s_mov_b32 s%d, %d" % (R_TB + 2, KSIZE['wq']))
        a("s_mov_b32 s%d, 0x00020000" % (R_TB + 3))
        a("s_waitcnt lgkmcnt(0)")
        a("s_mov_b64 s[%d:%d], s[%d:%d]" % (R_TB, R_TB + 1, P_WQ, P_WQ + 1))
        self.t_loads(R_TB, 9, self.nt)
        if self.stamps:
            a("s_mov_b32 s%d, s100" % STAMP0)
            for k in range(1, 12):
                if self.exp == 0 or k not in (7, 8):
                    a("s_mov_b32 s%d, 0" % (STAMP0 + k))
        a("s_cmp_eq_u32 %s, %d" % (S_G, self.mg_h))
        a("s_cbranch_scc1 L_mcomp")
        a("L_stream2:")
        a("s_mov_b32 s%d, %d" % (R_K + 2, KSIZE['k']))
        a("s_mov_b32 s%d, 0x00020000" % (R_K + 3))
        a("s_lshl_b32 s76, %s, 3" % S_B)
        a("s_add_u32 s76, s76, %s" % S_G)
        a("s_lshl_b32 s76, s76, 7")
        a("s_add_u32 s76, s76, %s" % S_S)
        a("s_lshl_b32 s76, s76, 2")
        a("s_add_u32 s76, s76, %s" % S_W)
        a("s_lshl_b32 s76, s76, 12")
        a("s_add_u32 s76, s76, %d" % (6144 * 256))
        a("v_bfe_u32 v1, v0, 2, 2")
        a("v_lshlrev_b32 v1, 10, v1")
        a("v_lshl_add_u32 v1, v3, 6, v1")
        a("v_lshl_add_u32 v2, v4, 4, v1")
        for e in range(16):
            rho, j = e >> 2, e & 3
            if j == 0 and rho > 0:
                a("s_add_u32 s97, s76, %d" % (rho * 131072))
            a("buffer_load_dwordx4 %s, v2, %s, %s offen offset:%d %s" % (vr(64 + 4 * e), q4(R_K), "s76" if rho == 0 else "s97", j * 256, self.nt))
            if e in (9, 11, 13):
                self.setup_common((e - 9) // 2)
            if e + 4 >= W - 1:
                a("s_waitcnt vmcnt(%d)" % (W - 1))
            if e == W - 2:
                a("s_barrier")
        self.stamp(1)
        for e in range(16):
            step, j = e >> 2, e & 3
            if j == 0:
                a("s_add_u32 m0, s98, %d" % (L_V + step * 16384))
                a("s_add_u32 s97, s76, %d" % (step * 131072))
            a("buffer_load_dwordx4 v%d, %s, s97 offen offset:%d %s lds" % (5 + (j & 1), q4(R_V), j * 1024, self.nt))
            if e == 1:
                a("s_cmp_ge_u32 %s, 24" % S_I)
                a("s_cbranch_scc1 L_su_m")
                a("s_cmp_ge_u32 %s, 16" % S_I)
                a("s_cbranch_scc1 L_su_g")
                a("s_branch L_su_w")
                a("L_su_done:")
                self.mksrd(R_WO, P_WO, KSIZE['wo'])
                a("v_mul_lo_u32 v10, v10, s78")
                a("v_add_u32 v10, v10, v11")
                a("v_xor_b32 v11, 16, v10")
                a("s_lshl_b32 s74, s78, 4")
                a("s_sub_u32 s74, s74, 1024")
                a("s_cmp_eq_u32 s72, 0")
                a("s_cselect_b32 s77, 1, -1")
                a("s_mul_i32 s75, s75, s77")
            if e != 0 and e < 16 - self.tailfree:
                a("s_waitcnt vmcnt(%d)" % ((W if e < 8 else self.winv) - 1))
        assert 16 - self.tailfree - self.winv >= 0
        self.stamp(2)
        if self.exp:
            a("s_waitcnt vmcnt(0)")
            self.stamp(3)
            self.finish()
        a("s_mov_b32 m0, s64")
        a("s_barrier")
        self.stamp(3)
        a("ds_read_b128 %s, v9" % vr(32))
        a("ds_read_b64 v[60:61], v14 offset:%d" % (L_LOC - L_MISC))
        NT1 = 2
        a("s_waitcnt lgkmcnt(0)")
        for e in range(16):
            a("v_mfma_f32_16x16x32_bf16 %s, %s, %s, 0" % (vr(128 + 4 * e), vr(64 + 4 * e), vr(32)))
        a("v_readfirstlane_b32 s73, v60")
        for rho in range(4):
            subs = [x for x in range(4) if x != rho]
            for k, sub in enumerate(subs):
                for rp in range(4):
                    D = 128 + 4 * (4 * rho + rp)
                    src1 = D + rho if k == 0 else 36 + rp
                    a("v_add_f32_dpp v%d, v%d, v%d row_ror:%d row_mask:0xf bank_mask:0x%x" % (36 + rp, D + sub, src1, (4 * (rho - sub)) & 15, 1 << rho))
        self.rnd(36, 2, 40, MASK)
        for r in range(4):
            a("v_mul_f32 v%d, 0x%x, v%d" % (36 + r, SCALE, 36 + r))
        self.rnd(36, 2, 40, MASK)
        a("v_max3_f32 v42, v36, v37, v38")
        a("v_max_f32 v42, v42, v39")
        self.allreduce("v_max_f32", [42], [43], rors=(4, 8))
        a("ds_write_b32 v13, v42 offset:%d" % (L_MAX - L_MISC))
        a("buffer_load_dwordx4 v228, %s, s57 offen %s lds" % (q4(R_WO), self.ntw))
        a("buffer_load_dwordx4 v228, %s, s99 offen offset:1024 %s lds" % (q4(R_WO), self.ntw))
        a("s_waitcnt lgkmcnt(0)")
        a("s_barrier")
        a("ds_read_b128 %s, v14 offset:%d" % (vr(44), L_MAX - L_MISC))
        a("s_waitcnt lgkmcnt(0)")
        a("v_max3_f32 v42, v44, v45, v46")
        a("v_max_f32 v42, v42, v47")
        for r in range(4):
            a("v_sub_f32 v%d, v%d, v42" % (36 + r, 36 + r))
        for r in range(4):
            a("v_mul_f32 v%d, 0x%x, v%d" % (36 + r, LOG2E, 36 + r))
        for r in range(4):
            a("v_exp_f32 v%d, v%d" % (36 + r, 36 + r))
        self.pack(40, 36, 2)
        a("ds_write_b64 v15, %s" % vr(40, 2))
        a("v_add_f32 v36, v36, v37")
        a("v_add_f32 v38, v38, v39")
        a("v_add_f32 v36, v36, v38")
        self.allreduce("v_add_f32", [36], [37], rors=(4, 8))
        a("ds_write_b32 v13, v36 offset:%d" % (L_SUM - L_MISC))
        a("s_waitcnt vmcnt(%d) lgkmcnt(0)" % (4 + NT1))
        a("s_barrier")
        self.stamp(4)
        a("ds_read_b128 %s, v14 offset:%d" % (vr(44), L_SUM - L_MISC))
        for kg in range(8):
            a("ds_read_b128 %s, v16 offset:%d" % (vr(64 + 4 * kg), kg * 256))

        def vreads(kg):
            step, u = kg >> 1, kg & 1
            T0 = step * 4 + 2 * u
            for d in range(2):
                base = 128 + 8 * kg + 4 * d
                a("ds_read_b64_tr_b16 %s, v%d offset:%d" % (vr(base, 2), 17 + d, T0 * 4096))
                a("ds_read_b64_tr_b16 %s, v%d offset:%d" % (vr(base + 2, 2), 17 + d, (T0 + 1) * 4096))

        def vmfma(kg):
            for d in range(2):
                a("v_mfma_f32_16x16x32_bf16 %s, %s, %s, %s" % (vr(48 + 4 * d), vr(128 + 8 * kg + 4 * d), vr(64 + 4 * kg), "0" if kg == 0 else vr(48 + 4 * d)))
        a("s_waitcnt lgkmcnt(8)")
        a("v_add_f32 v44, v44, v45")
        a("v_add_f32 v46, v46, v47")
        a("v_add_f32 v43, v44, v46")
        a("s_lshl_b64 exec, 1, %s" % S_W)
        self.local_store("buffer_store_dwordx2 %s, v19, %s, s81 offen" % (vr(42, 2), q4(R_WS)))
        a("s_mov_b64 exec, -1")
        a("s_waitcnt lgkmcnt(0)")
        for kg in range(3):
            vreads(kg)
        a("s_waitcnt lgkmcnt(0)")
        for kg in range(3, 6):
            vreads(kg)
        for kg in range(3):
            vmfma(kg)
        a("s_waitcnt lgkmcnt(0)")
        for kg in range(3, 6):
            vmfma(kg)
        a("s_waitcnt vmcnt(%d)" % (NT1 + 1))
        a("s_barrier")
        self.stamp(5)
        vreads(6)
        vreads(7)
        a("s_waitcnt lgkmcnt(4)")
        vmfma(6)
        a("s_waitcnt lgkmcnt(0)")
        vmfma(7)
        a("s_mov_b32 exec_lo, 0x000f000f")
        a("s_mov_b32 exec_hi, 0x000f000f")
        self.pack(56, 48, 4)
        self.local_store("buffer_store_dwordx4 %s, v20, %s, s82 offen" % (vr(56), q4(R_WS)))
        a("s_mov_b64 exec, -1")
        a("s_barrier")
        self.stamp(6)
        a("s_cmp_lg_u32 s96, 0")
        a("s_cbranch_scc1 L_role_gm")
        self.role_w()
        self.setup_g()
        self.role_g()
        self.setup_wm()
        self.role_m()
        for l1, text, l2 in self.deferred:
            a("%s:" % l1)
            a(text)
            a("s_branch %s" % l2)
        self.mprep()

    def setup_common(self, part):
        a = self.a
        if part == 0:
            self.mksrd(R_V, 12, KSIZE['v'])
            self.mksrd(R_WS, P_WS, KSIZE['ws'])
            self.mksrd(R_X, P_X, KSIZE['x'])
            a("v_lshlrev_b32 v1, 1, v3")
            a("v_xor_b32 v1, v1, v7")
            a("v_lshlrev_b32 v1, 4, v1")
            a("v_lshl_add_u32 v5, v3, 8, v1")
            a("v_xor_b32 v6, 0x80, v5")
            a("v_bfe_u32 v1, v0, 2, 2")
            a("v_lshlrev_b32 v9, 8, v4")
            a("v_lshl_add_u32 v9, v3, 6, v9")
            a("v_lshl_add_u32 v9, v1, 4, v9")
            a("v_add_u32 v9, %d, v9" % L_Q)
            a("v_lshlrev_b32 v14, 4, v4")
            a("v_add_u32 v14, %d, v14" % L_MISC)
            a("s_lshl_b32 s77, %s, 2" % S_W)
            a("v_add_u32 v13, s77, v14")
            a("v_lshl_add_u32 v16, v3, 6, v14")
            a("v_add_u32 v16, %d, v16" % (L_P - L_MISC))
            a("v_lshl_add_u32 v15, v1, 9, v16")
            a("s_lshr_b32 s77, %s, 1" % S_W)
            a("s_lshl_b32 s77, s77, 8")
            a("s_and_b32 s78, %s, 1" % S_W)
            a("s_lshl_b32 s78, s78, 3")
            a("s_add_u32 s77, s77, s78")
            a("v_add_u32 v15, s77, v15")
        elif part == 1:
            a("v_lshrrev_b32 v17, 2, v0")
            a("v_and_b32 v18, 7, v17")
            a("s_lshl_b32 s77, %s, 1" % S_W)
            a("v_xor_b32 v18, s77, v18")
            a("v_lshlrev_b32 v18, 5, v18")
            a("v_lshl_add_u32 v17, v17, 8, v18")
            a("v_lshl_add_u32 v17, v4, 3, v17")
            a("v_xor_b32 v18, 32, v17")
            a("v_lshlrev_b32 v19, 8, v4")
            a("s_lshl_b32 s81, %s, 10" % S_G)
            a("s_lshl_b32 s77, %s, 3" % S_I)
            a("s_add_u32 s81, s81, s77")
            a("s_add_u32 s81, s81, %d" % WS_ST)
        else:
            a("v_lshlrev_b32 v20, 13, v4")
            a("v_lshl_add_u32 v20, v3, 8, v20")
            a("s_lshl_b32 s82, %s, 15" % S_G)
            a("s_lshr_b32 s77, %s, 2" % S_S)
            a("s_lshl_b32 s77, s77, 10")
            a("s_add_u32 s82, s82, s77")
            a("s_lshl_b32 s77, %s, 6" % S_B)
            a("s_add_u32 s82, s82, s77")
            a("s_and_b32 s77, %s, 3" % S_S)
            a("s_lshl_b32 s77, s77, 4")
            a("s_add_u32 s82, s82, s77")
            a("s_lshl_b32 s77, %s, 11" % S_W)
            a("s_add_u32 s82, s82, s77")
            a("s_add_u32 s82, s82, %d" % WS_A)
            a("v_and_b32 v12, 1, v3")
            a("v_lshlrev_b32 v1, 1, v12")
            a("v_xor_b32 v1, v1, v4")
            a("v_lshlrev_b32 v11, 4, v1")
            a("v_lshrrev_b32 v10, 2, v0")
            a("s_and_b32 s72, %s, 1" % S_I)
            a("v_lshlrev_b32 v228, 7, v10")
            a("v_lshl_add_u32 v228, v4, 4, v228")
            a("s_lshl_b32 s57, %s, 2" % S_G)
            a("s_add_u32 s57, s57, %s" % S_W)
            a("s_lshl_b32 s57, s57, 5")
            a("s_add_u32 s57, s57, %s" % S_I)
            a("s_lshl_b32 s57, s57, 12")
            a("s_add_u32 s99, s57, 1024")
            a("s_mov_b32 s64, %d" % L_DUMP)

    def setup_wm(self):
        a = self.a
        a("L_su_w:")
        a("s_mov_b32 s96, 0")
        self.mksrd(R_TA, P_WO, KSIZE['wo'])
        self.mksrd(R_TB, P_WD, KSIZE['wd'])
        self.mksrd(R_OUT, P_OUT, KSIZE['out'])
        a("s_mov_b32 s78, 1024")
        a("s_lshl_b32 s79, %s, 19" % S_G)
        a("s_lshl_b32 s77, %s, 6" % S_I)
        a("s_add_u32 s79, s79, s77")
        a("v_lshl_add_u32 v228, v10, 10, v11")
        a("s_lshl_b32 s77, %s, 2" % S_W)
        a("s_add_u32 s77, s77, s72")
        a("s_lshl_b32 s64, s77, 11")
        a("s_add_u32 s64, s64, %d" % L_T1)
        a("s_lshl_b32 s57, s77, 15")
        a("s_add_u32 s57, s57, s79")
        a("s_add_u32 s99, s57, 15360")
        a("s_mov_b32 s72, 1")
        a("v_min_u32 v195, 55, v0")
        a("v_lshlrev_b32 v195, 10, v195")
        a("s_lshl_b32 s56, %s, 4" % S_G)
        a("s_add_u32 s56, s56, %s" % S_I)
        a("s_lshl_b32 s56, s56, 8")
        a("s_add_u32 s56, s56, %d" % WS_B)
        a("s_lshl_b32 s66, %s, 2" % S_G)
        a("s_add_u32 s66, s66, %s" % S_W)
        a("s_lshl_b32 s65, s66, 8")
        a("s_add_u32 s65, s65, %d" % WS_ST)
        a("s_lshl_b32 s66, s66, 13")
        a("s_add_u32 s66, s66, %d" % WS_A)
        a("s_add_u32 s67, s66, 4096")
        a("v_and_b32 v1, 7, v0")
        a("v_lshlrev_b32 v1, 3, v1")
        a("v_lshl_add_u32 v21, v3, 6, v1")
        a("v_bfe_u32 v1, v0, 3, 2")
        a("v_lshlrev_b32 v27, 3, v1")
        a("v_bfe_u32 v1, v0, 1, 2")
        a("v_add_u32 v27, v27, v1")
        a("v_lshrrev_b32 v1, 5, v0")
        a("v_lshl_add_u32 v27, v1, 2, v27")
        a("v_and_b32 v1, 1, v0")
        a("v_lshl_add_u32 v27, v1, 5, v27")
        a("v_lshlrev_b32 v27, 10, v27")
        a("s_mul_i32 s58, %s, %d" % (S_W, 7 * 1024))
        a("s_add_u32 s77, s58, %d" % L_T2)
        a("v_lshlrev_b32 v28, 3, v0")
        a("v_add_u32 v28, s77, v28")
        a("s_add_u32 s58, s58, %d" % WS_C)
        a("s_add_u32 s59, s58, 4096")
        a("v_lshrrev_b32 v1, 2, v7")
        a("v_lshlrev_b32 v29, 9, v1")
        a("v_lshl_add_u32 v29, v3, 7, v29")
        a("v_lshl_add_u32 v29, v4, 4, v29")
        a("v_lshlrev_b32 v193, 2, v4")
        a("v_lshl_add_u32 v192, v1, 10, v193")
        a("v_lshl_add_u32 v193, v1, 6, v193")
        a("v_lshl_add_u32 v194, v3, 12, v193")
        a("v_lshrrev_b32 v1, 1, v3")
        a("v_lshlrev_b32 v30, 7, v1")
        a("v_lshl_add_u32 v30, v4, 5, v30")
        a("v_lshl_add_u32 v30, v12, 4, v30")
        a("s_lshl_b32 s77, %s, 8" % S_W)
        a("s_add_u32 s77, s77, %d" % L_RED2)
        a("v_add_u32 v30, s77, v30")
        a("v_lshlrev_b32 v31, 3, v7")
        a("v_add_u32 v31, %d, v31" % L_RED2)
        a("s_branch L_su_wm")
        a("L_su_m:")
        a("s_mov_b32 s96, 2")
        self.mksrd(R_TA, P_WMOD, KSIZE['wmod'])
        a("s_mov_b32 s78, 6144")
        a("s_lshl_b32 s77, %s, 3" % S_G)
        a("s_add_u32 s77, s77, %s" % S_I)
        a("s_sub_u32 s77, s77, 24")
        a("s_lshl_b32 s79, s77, 6")
        a("s_add_u32 s79, s79, 2048")
        a("s_lshl_b32 s56, s77, 8")
        a("s_add_u32 s56, s56, %d" % WS_M2)
        self.mksrd(R_TB, P_WU, KSIZE['wu'])
        a("s_cmp_eq_u32 %s, %d" % (S_G, self.mg_h))
        a("s_cselect_b32 s%d, 0, %d" % (R_TB + 2, KSIZE['wu']))
        a("s_cmp_gt_u32 %s, %d" % (S_G, self.mg_h))
        a("s_cselect_b32 s77, 1, 0")
        a("s_sub_u32 s65, %s, s77" % S_G)
        a("s_lshl_b32 s65, s65, 9")
        a("s_lshl_b32 s77, %s, 3" % S_S)
        a("s_add_u32 s77, s77, %s" % S_W)
        a("s_add_u32 s77, s77, 4")
        a("s_mul_i32 s77, s77, %d" % (8 * 3584))
        a("s_add_u32 s65, s65, s77")
        a("v_lshrrev_b32 v27, 3, v0")
        a("v_mul_u32_u24 v27, 3584, v27")
        a("v_and_b32 v1, 7, v0")
        a("v_lshl_add_u32 v27, v1, 6, v27")
        a("v_lshrrev_b32 v1, 2, v7")
        a("v_lshlrev_b32 v21, 10, v1")
        a("v_lshl_add_u32 v21, v3, 3, v21")
        a("s_lshl_b32 s77, %s, 8" % S_W)
        a("s_add_u32 s77, s77, %d" % L_SC)
        a("v_add_u32 v21, s77, v21")
        a("L_su_wm:")
        a("s_lshl_b32 s77, %s, 1" % S_W)
        a("s_add_u32 s77, s77, s72")
        a("s_lshl_b32 s80, s77, 12")
        a("s_add_u32 s80, s80, %d" % L_T1)
        a("s_lshl_b32 s75, s78, 6")
        a("s_mul_i32 s77, s77, s75")
        a("s_add_u32 s79, s79, s77")
        a("v_lshlrev_b32 v22, 6, v10")
        a("v_lshl_add_u32 v22, v12, 5, v22")
        a("v_lshl_add_u32 v22, v4, 3, v22")
        a("s_lshl_b32 s77, %s, 13" % S_W)
        a("s_add_u32 s77, s77, %d" % L_T1)
        a("v_add_u32 v22, s77, v22")
        a("v_xor_b32 v23, 32, v22")
        a("v_lshlrev_b32 v24, 2, v7")
        a("v_lshl_add_u32 v24, v3, 7, v24")
        a("s_lshl_b32 s77, %s, 9" % S_W)
        a("s_add_u32 s77, s77, %d" % L_RED)
        a("v_add_u32 v24, s77, v24")
        a("v_lshlrev_b32 v25, 3, v0")
        a("v_add_u32 v25, %d, v25" % L_RED)
        a("v_lshlrev_b32 v26, 2, v0")
        a("s_branch L_su_done")

    def setup_g(self):
        a = self.a
        a("L_su_g:")
        a("s_mov_b32 s96, 1")
        self.mksrd(R_TA, P_WG, KSIZE['wg'])
        self.mksrd(R_TB, P_WU, KSIZE['wu'])
        a("s_mov_b32 s78, 3584")
        a("s_cmp_gt_u32 %s, %d" % (S_G, self.mg_h))
        a("s_cselect_b32 s77, 1, 0")
        a("s_sub_u32 s77, %s, s77" % S_G)
        a("s_lshl_b32 s77, s77, 3")
        a("s_add_u32 s77, s77, %s" % S_I)
        a("s_sub_u32 s77, s77, 16")
        a("s_lshl_b32 s79, s77, 6")
        a("s_lshl_b32 s56, s77, 2")
        a("s_add_u32 s56, s56, %s" % S_W)
        a("s_lshl_b32 s56, s56, 7")
        a("s_add_u32 s56, s56, %d" % WS_C)
        a("s_lshl_b32 s77, s72, 2")
        a("s_add_u32 s77, s77, %s" % S_W)
        a("s_lshl_b32 s80, s77, 12")
        a("s_add_u32 s80, s80, %d" % L_T1)
        a("s_mul_i32 s77, s77, %d" % (64 * 3584))
        a("s_add_u32 s79, s79, s77")
        a("s_mov_b32 s75, %d" % (256 * 3584))
        a("v_lshrrev_b32 v1, 3, v7")
        a("v_lshrrev_b32 v21, 1, v3")
        a("v_cmp_eq_u32 vcc, v1, v21")
        a("v_and_b32 v1, 1, v0")
        a("v_lshlrev_b32 v1, 4, v1")
        a("v_mov_b32 v22, 0x3f80")
        a("v_lshlrev_b32 v1, v1, v22")
        a("v_cndmask_b32 v1, 0, v1, vcc")
        a("v_bfe_u32 v22, v0, 1, 2")
        for j in range(4):
            a("v_cmp_eq_u32 vcc, %d, v22" % j)
            a("v_cndmask_b32 v%d, 0, v1, vcc" % (224 + j))
        a("v_lshlrev_b32 v26, 4, v4")
        a("v_lshl_add_u32 v26, v12, 3, v26")
        a("v_lshl_add_u32 v26, v21, 2, v26")
        a("v_lshl_add_u32 v1, v21, 4, v7")
        a("v_lshlrev_b32 v27, 4, v1")
        a("v_lshl_add_u32 v27, v12, 3, v27")
        a("v_lshrrev_b32 v1, 2, v1")
        a("v_lshlrev_b32 v25, 8, v1")
        a("v_and_b32 v22, 1, v0")
        a("v_lshl_add_u32 v22, v22, 1, v12")
        a("v_lshl_add_u32 v22, v22, 6, v25")
        a("v_bfe_u32 v1, v0, 1, 1")
        a("v_lshl_add_u32 v22, v1, 3, v22")
        a("s_lshl_b32 s77, %s, 4" % S_W)
        a("s_add_u32 s77, s77, %d" % L_H2)
        a("v_add_u32 v22, s77, v22")
        a("v_lshl_add_u32 v25, v4, 4, v25")
        a("v_lshl_add_u32 v21, v12, 12, v25")
        a("v_lshl_add_u32 v25, v12, 3, v25")
        a("v_lshlrev_b32 v23, 6, v3")
        a("v_lshl_add_u32 v23, v4, 4, v23")
        a("v_add_u32 v23, %d, v23" % L_H2)
        a("v_lshlrev_b32 v24, 6, v10")
        a("v_lshl_add_u32 v24, v1, 15, v24")
        a("v_lshl_add_u32 v1, v12, 1, v1")
        a("v_xor_b32 v1, %s, v1" % S_W)
        a("v_lshl_add_u32 v24, v1, 4, v24")
        a("v_and_b32 v1, 1, v0")
        a("v_lshl_add_u32 v24, v1, 3, v24")
        a("v_add_u32 v24, %d, v24" % L_T1)
        a("s_lshl_b32 s77, %s, 6" % S_W)
        a("s_add_u32 s65, s77, %d" % WS_M2)
        a("s_add_u32 s66, s65, 4096")
        a("s_add_u32 s67, s65, 8192")
        for gp in range(4):
            a("s_add_u32 s%d, s77, %d" % (68 + gp, WS_B + gp * 8192))
        a("s_branch L_su_done")

    def gr_wait(self, t):
        a = self.a
        a("v_readfirstlane_b32 s97, v61")
        a("v_and_b32 v2, 7, v0")
        a("v_lshlrev_b32 v2, 7, v2")
        a("s_mov_b32 s98, %d" % WS_GR)
        a("s_mov_b32 s77, 0")
        a("L_gr_retry_%s:" % t)
        a("buffer_load_dword v62, v2, %s, s98 offen sc1" % q4(R_WS))
        a("s_waitcnt vmcnt(0)")
        a("v_cmp_ne_u32 vcc, s97, v62")
        a("s_cbranch_vccz L_gr_ok_%s" % t)
        self.spin_tail("L_gr_retry_%s" % t, "s77")
        a("L_gr_ok_%s:" % t)

    def wm_tr_reads(self, base=96):
        a = self.a
        for tau in range(2):
            for kk in range(4):
                for rd in range(2):
                    a("ds_read_b64_tr_b16 %s, v%d offset:%d" % (vr(base + 16 * tau + 4 * kk + 2 * rd, 2), 22 + tau, (2 * kk + rd) * 1024))
            if tau == 0:
                a("s_waitcnt lgkmcnt(4)")

    def wm_publish(self, r0, r1, done):
        a = self.a
        a("ds_write_b32 v24, v%d" % r0)
        a("ds_write_b32 v24, v%d offset:64" % r1)
        a("s_waitcnt lgkmcnt(0)")
        a("s_barrier")
        self.stamp(7)
        a("s_cmp_lg_u32 %s, 0" % S_W)
        a("s_cbranch_scc1 %s" % done)
        for h in range(4):
            a("ds_read_b64 %s, v25 offset:%d" % (vr(32 + 2 * h, 2), h * 512))
        a("s_waitcnt lgkmcnt(2)")
        a("v_pk_add_f32 v[32:33], v[32:33], v[34:35]")
        a("s_waitcnt lgkmcnt(0)")
        a("v_pk_add_f32 v[36:37], v[36:37], v[38:39]")
        a("v_pk_add_f32 v[32:33], v[32:33], v[36:37]")
        a("v_cvt_pk_bf16_f32 v32, v32, v33")
        a("buffer_store_dword v32, v26, %s, s56 offen sc1" % q4(R_WS))

    def role_w(self):
        a = self.a
        a("s_xor_b32 m0, s64, 0x800")
        a("s_xor_b32 s57, s57, 0x8000")
        a("s_add_u32 s99, s57, 15360")
        a("buffer_load_dwordx4 v10, %s, s57 offen %s lds" % (q4(R_TA), self.ntw))
        a("buffer_load_dwordx4 v10, %s, s99 offen offset:1024 %s lds" % (q4(R_TA), self.ntw))
        a("s_mov_b32 m0, s80")
        a("s_mov_b32 s78, 0")
        self.t_loads(R_TA, 10)

        def loads():
            a("buffer_load_dwordx2 %s, v21, %s, s65 offen sc1" % (vr(50, 2), q4(R_WS)))
            for e in range(8):
                a("buffer_load_dwordx4 %s, v8, %s, %s offen offset:%d sc1" % (vr(64 + 4 * e), q4(R_WS), "s66" if e < 4 else "s67", (e & 3) * 1024))
        loads()
        a("s_waitcnt vmcnt(9)")
        self.wm_tr_reads()
        a("s_branch L_w_in")
        a("L_w_retry:")
        loads()
        a("L_w_in:")
        a("s_waitcnt vmcnt(8)")
        a("v_max_f32_dpp v52, v50, v50 quad_perm:[1,0,3,2] row_mask:0xf bank_mask:0xf")
        a("v_max_f32_dpp v52, v52, v52 quad_perm:[2,3,0,1] row_mask:0xf bank_mask:0xf")
        a("v_max_f32_dpp v52, v52, v52 row_ror:4 row_mask:0xf bank_mask:0xf")
        a("v_sub_f32 v52, v50, v52")
        a("v_mul_f32 v52, 0x%x, v52" % LOG2E)
        a("v_exp_f32 v52, v52")
        a("v_mul_f32 v53, v52, v51")
        a("v_add_f32_dpp v53, v53, v53 quad_perm:[1,0,3,2] row_mask:0xf bank_mask:0xf")
        a("v_add_f32_dpp v53, v53, v53 quad_perm:[2,3,0,1] row_mask:0xf bank_mask:0xf")
        a("v_add_f32_dpp v53, v53, v53 row_ror:4 row_mask:0xf bank_mask:0xf")
        a("v_rcp_f32 v53, v53")
        a("v_mul_f32 v52, v52, v53")
        a("s_waitcnt lgkmcnt(0)")
        for e in range(8):
            kk, rg = e >> 1, e & 1
            a("s_waitcnt vmcnt(%d)" % (7 - e))
            for tau in range(2):
                acc = 32 + 8 * tau + 4 * rg
                a("v_mfma_f32_16x16x32_bf16 %s, %s, %s, %s" % (vr(acc), vr(64 + 4 * e), vr(96 + 16 * tau + 4 * kk), "0" if kk == 0 else vr(acc)))
        for s in range(8):
            for tau in range(2):
                a("%s v%d, v52, v%d row_newbcast:%d row_mask:0xf bank_mask:0xf" % ("v_mul_f32_dpp" if s == 0 else "v_fmac_f32_dpp", 48 + tau, 32 + 8 * tau + s, s))
        a("v_cmp_u_f32 vcc, v48, v49")
        a("s_cbranch_vccz L_w_ok")
        self.spin_tail("L_w_retry", "s78")
        a("L_w_ok:")
        self.wm_publish(48, 49, "L_w_pub_done")
        a("L_w_pub_done:")
        a("s_barrier")
        self.stamp(8)
        a("s_lshl_b32 s77, %s, 1" % S_I)
        a("s_and_b32 s78, %s, 1" % S_W)
        a("s_add_u32 s77, s77, s78")
        a("s_mul_i32 s77, s77, %d" % (56 * 1024))
        a("s_lshl_b32 s78, %s, 7" % S_G)
        a("s_add_u32 s77, s77, s78")
        a("s_cmp_lt_u32 %s, 2" % S_W)
        a("s_cbranch_scc1 L_w_notouch")
        a("buffer_load_dword v1, v195, %s, s77 offen %s" % (q4(R_TB), self.ntw))
        a("L_w_notouch:")
        a("s_cmp_ge_u32 %s, 8" % S_I)
        a("s_cbranch_scc1 L_done")
        self.role_d()

    def role_d(self):
        a = self.a
        MASK = "s83"
        a("s_lshl_b32 s76, %s, 3" % S_G)
        a("s_add_u32 s76, s76, %s" % S_I)
        a("s_lshl_b32 s76, s76, 4")
        a("s_mul_i32 s78, %s, 7" % S_W)
        a("s_mov_b32 s77, %s" % S_I)
        a("s_barrier")
        for k in range(7):
            a("s_cmp_ge_u32 s77, 7")
            a("s_cselect_b32 s77, 0, s77")
            a("s_add_u32 s79, s78, s77")
            a("s_lshl_b32 s80, s79, 10")
            a("s_add_u32 m0, s80, %d" % L_T2)
            a("s_lshl_b32 s79, s79, 16")
            a("s_add_u32 s79, s79, s76")
            a("buffer_load_dwordx4 v27, %s, s79 offen %s lds" % (q4(R_TB), self.ntw))
            a("s_add_u32 s77, s77, 1")
        a("s_cmp_lg_u32 %s, 0" % S_W)
        a("s_cbranch_scc1 L_d_nox")
        a("s_lshr_b32 s78, s76, 6")
        a("s_lshl_b32 s78, s78, 8")
        a("s_and_b32 s77, s76, 63")
        a("s_add_u32 s78, s78, s77")
        a("s_add_u32 s79, s78, %d" % WS_B)
        a("s_add_u32 s80, s79, 16384")
        a("s_add_u32 s81, s78, %d" % WS_M2)
        a("s_add_u32 s82, s81, %d" % (3 * 4096))
        a("buffer_load_dword v42, v192, %s, s76 offen" % q4(R_X))
        self.gr_wait("d")
        a("s_mov_b32 s77, 0")
        a("L_d_x_retry:")
        a("buffer_load_dword v40, v193, %s, s81 offen sc1" % q4(R_WS))
        a("buffer_load_dword v41, v193, %s, s82 offen sc1" % q4(R_WS))
        a("buffer_load_dword v32, v194, %s, s79 offen sc1" % q4(R_WS))
        a("buffer_load_dword v33, v194, %s, s80 offen sc1" % q4(R_WS))
        a("s_waitcnt vmcnt(0)")
        self.unpack(48, 32, 2, MASK)
        a("v_pk_add_f32 v[48:49], v[48:49], v[50:51]")
        self.allreduce("v_add_f32", [48, 49], [50, 51], rors=())
        self.unpack(50, 40, 3, MASK)
        a("v_pk_fma_f32 v[48:49], v[48:49], v[50:51], v[54:55]")
        a("v_pk_add_f32 v[50:51], v[48:49], v[52:53]")
        a("v_cmp_u_f32 vcc, v50, v51")
        a("s_cbranch_vccz L_d_nox")
        self.spin_tail("L_d_x_retry", "s77")
        a("L_d_nox:")
        a("s_waitcnt vmcnt(0)")
        for e in range(7):
            for rd in range(2):
                a("ds_read_b64_tr_b16 %s, v28 offset:%d" % (vr(96 + 4 * e + 2 * rd, 2), e * 1024 + rd * 512))
        a("s_mov_b32 s77, 0")
        a("s_barrier")
        self.stamp(9)
        a("L_d_retry:")
        for u in range(4):
            a("buffer_load_dwordx4 %s, v29, %s, %s offen offset:%d sc1" % (vr(64 + 4 * u), q4(R_WS), "s58" if u < 2 else "s59", (u & 1) * 2048))
        a("s_waitcnt lgkmcnt(0)")
        for e in range(7):
            if e & 1 == 0:
                a("s_waitcnt vmcnt(%d)" % (3 - (e >> 1)))
            acc = 32 + 4 * (e & 1)
            a("v_mfma_f32_16x16x32_bf16 %s, %s, %s, %s" % (vr(acc), vr(96 + 4 * e), vr(64 + 4 * (e >> 1)), "0" if e < 2 else vr(acc)))
        for r in range(4):
            a("v_add_f32_dpp v%d, v%d, v%d row_shl:8 row_mask:0xf bank_mask:0xf" % (44 + r, 36 + r, 32 + r))
        a("v_cmp_u_f32 vcc, v44, v44")
        a("s_and_b32 vcc_lo, vcc_lo, 0x000f000f")
        a("s_and_b32 vcc_hi, vcc_hi, 0x00f000f0")
        a("s_or_b32 s79, vcc_lo, vcc_hi")
        a("s_cbranch_scc0 L_d_ok")
        self.spin_tail("L_d_retry", "s77")
        a("L_d_ok:")
        a("s_mov_b32 exec_lo, 0x000f000f")
        a("s_mov_b32 exec_hi, 0x00f000f0")
        a("ds_write_b128 v30, %s" % vr(44))
        a("s_mov_b64 exec, -1")
        a("s_waitcnt lgkmcnt(0)")
        a("s_barrier")
        self.stamp(10)
        a("s_cmp_lg_u32 %s, 0" % S_W)
        a("s_cbranch_scc1 L_d_epoch")
        for p in range(8):
            a("ds_read_b64 %s, v31 offset:%d" % (vr(64 + 2 * p, 2), p * 128))
        for j in range(4):
            a("s_waitcnt lgkmcnt(%d)" % (6 - 2 * j))
            a("v_pk_add_f32 v[%d:%d], v[%d:%d], v[%d:%d]" % (64 + 4 * j, 65 + 4 * j, 64 + 4 * j, 65 + 4 * j, 66 + 4 * j, 67 + 4 * j))
        a("v_pk_add_f32 v[64:65], v[64:65], v[68:69]")
        a("v_pk_add_f32 v[72:73], v[72:73], v[76:77]")
        a("v_pk_add_f32 v[64:65], v[64:65], v[72:73]")
        a("v_pk_fma_f32 v[64:65], v[64:65], v[52:53], v[48:49]")
        a("v_cvt_pk_bf16_f32 v64, v64, v65")
        a("s_mov_b64 exec, 0xffff")
        a("buffer_store_dword v64, v192, %s, s76 offen" % q4(R_OUT))
        a("s_mov_b64 exec, -1")
        self.stamp(11)
        a("L_done:")
        self.finish()
        a("L_d_epoch:")
        a("s_lshl_b32 s77, s2, 2")
        a("s_add_u32 s77, s77, %s" % S_W)
        a("s_cmp_lg_u32 s77, 1")
        a("s_cbranch_scc1 L_done")
        a("s_mov_b32 s77, %d" % WS_E)
        a("s_mov_b64 exec, 1")
        a("buffer_store_dword v61, v8, %s, s77 offen sc1" % q4(R_WS))
        a("s_mov_b64 exec, -1")
        a("s_branch L_done")

    def role_g(self):
        a = self.a
        MASK = "s83"
        a("L_role_gm:")
        a("s_cmp_eq_u32 s96, 2")
        a("s_cbranch_scc1 L_role_m")
        a("s_cmp_eq_u32 %s, %d" % (S_G, self.mg_h))
        a("s_cbranch_scc1 L_done")
        a("s_mov_b32 m0, s80")
        self.t_loads(R_TA, 10)
        a("s_add_u32 m0, s80, 32768")
        a("s_xor_b32 s80, s80, 16384")
        a("s_barrier")
        self.t_loads(R_TB, 11)
        a("s_barrier")
        a("s_mov_b32 m0, s80")
        a("s_add_u32 s79, s79, s75")
        self.t_loads(R_TA, 10)
        a("s_add_u32 m0, s80, 32768")
        a("s_lshl_b32 s76, %s, 10" % S_W)
        self.t_loads(R_TB, 11)
        a("buffer_load_dwordx2 %s, v27, %s, s76 offen" % (vr(32, 2), q4(R_X)))
        a("buffer_load_dwordx2 %s, v27, %s, s76 offen offset:512" % (vr(34, 2), q4(R_X)))
        self.gr_wait("g")
        a("s_mov_b32 s79, 0")
        a("s_barrier")
        self.stamp(7)

        def mloads():
            for k, so in enumerate(("s65", "s66", "s67")):
                a("buffer_load_dwordx2 %s, v25, %s, %s offen sc1" % (vr(36 + 4 * k, 2), q4(R_WS), so))
                a("buffer_load_dwordx2 %s, v25, %s, %s offen offset:2048 sc1" % (vr(38 + 4 * k, 2), q4(R_WS), so))
        mloads()
        for t in range(16):
            for rd in range(2):
                a("ds_read_b64_tr_b16 %s, v24 offset:%d" % (vr(128 + 4 * t + 2 * rd, 2), (2 * t + rd) * 1024))
            if t % 4 == 3:
                a("s_waitcnt lgkmcnt(4)")
        a("s_branch L_g_m_in")
        a("L_g_m_retry:")
        mloads()
        a("L_g_m_in:")
        a("s_waitcnt vmcnt(0)")
        a("v_max3_u32 v1, v36, v37, v38")
        for j in range(39, 47, 2):
            a("v_max3_u32 v1, v1, v%d, v%d" % (j, j + 1))
        a("v_max_u32 v1, v1, v47")
        a("v_cmp_eq_u32 vcc, -1, v1")
        a("s_cbranch_vccz L_g_m_ok")
        self.spin_tail("L_g_m_retry", "s79")
        a("L_g_m_ok:")
        self.stamp(11)
        a("s_mov_b32 s79, 0")

        def loads():
            for e in range(8):
                gp, ac = e >> 1, e & 1
                a("buffer_load_dwordx4 %s, v21, %s, s%d offen offset:%d sc1" % (vr(64 + 4 * e), q4(R_WS), 68 + gp, ac * 2048))
        loads()
        self.unpack(192, 32, 16, MASK)
        for j in range(0, 8, 2):
            a("v_pk_add_f32 v[%d:%d], v[%d:%d], 1.0 op_sel_hi:[1,0]" % (216 + j, 217 + j, 216 + j, 217 + j))
        a("s_branch L_g_in")
        a("L_g_retry:")
        loads()
        a("L_g_in:")
        for e in range(8):
            a("s_waitcnt vmcnt(%d)" % (7 - e))
            acc = 32 + 4 * (e & 1)
            a("v_mfma_f32_16x16x32_bf16 %s, %s, %s, %s" % (vr(acc), vr(224), vr(64 + 4 * e), "0" if e < 2 else vr(acc)))
        a("v_cmp_u_f32 vcc, v32, v36")
        a("s_cbranch_vccz L_g_ok")
        self.spin_tail("L_g_retry", "s79")
        a("L_g_ok:")
        self.stamp(8)
        for j in range(0, 8, 2):
            a("v_pk_fma_f32 v[%d:%d], v[%d:%d], v[%d:%d], v[%d:%d]" % (32 + j, 33 + j, 32 + j, 33 + j, 200 + j, 201 + j, 192 + j, 193 + j))
        a("v_readfirstlane_b32 s78, v32")
        for j in range(8):
            a("v_subrev_f32 v%d, s78, v%d" % (32 + j, 32 + j))
        a("v_pk_add_f32 v[40:41], v[32:33], v[34:35]")
        a("v_pk_mul_f32 v[42:43], v[32:33], v[32:33]")
        a("v_pk_add_f32 v[48:49], v[36:37], v[38:39]")
        a("v_pk_fma_f32 v[42:43], v[34:35], v[34:35], v[42:43]")
        a("v_pk_add_f32 v[40:41], v[40:41], v[48:49]")
        a("v_pk_fma_f32 v[42:43], v[36:37], v[36:37], v[42:43]")
        a("v_add_f32 v40, v40, v41")
        a("v_pk_fma_f32 v[42:43], v[38:39], v[38:39], v[42:43]")
        a("v_add_f32 v41, v42, v43")
        self.allreduce("v_add_f32", [40, 41], [42, 43])
        a("v_mul_f32 v40, 0x3b000000, v40")
        a("v_mul_f32 v41, 0x3b000000, v41")
        a("v_fma_f32 v41, -v40, v40, v41")
        a("v_max_f32 v41, 0, v41")
        a("v_add_f32 v41, 0x%x, v41" % EPS)
        a("v_rsq_f32 v42, v41")
        a("v_mul_f32 v40, -v40, v42")
        for j in range(0, 8, 2):
            a("v_pk_fma_f32 v[%d:%d], v[%d:%d], v[42:43], v[40:41] op_sel_hi:[1,0,0]" % (32 + j, 33 + j, 32 + j, 33 + j))
        for j in range(0, 8, 2):
            a("v_pk_fma_f32 v[%d:%d], v[%d:%d], v[%d:%d], v[%d:%d]" % (32 + j, 33 + j, 32 + j, 33 + j, 216 + j, 217 + j, 208 + j, 209 + j))
        self.pack(40, 32, 4)
        a("ds_write_b64 v22, v[40:41]")
        a("ds_write_b64 v22, v[42:43] offset:2048")
        a("s_waitcnt lgkmcnt(0)")
        a("s_barrier")
        self.stamp(9)
        for t in range(12):
            a("ds_read_b128 %s, v23 offset:%d" % (vr(64 + 4 * t), t * 256))
        for t in range(16):
            if t < 4:
                a("s_waitcnt lgkmcnt(11)")
                a("ds_read_b128 %s, v23 offset:%d" % (vr(64 + 4 * (12 + t)), (12 + t) * 256))
            else:
                a("s_waitcnt lgkmcnt(%d)" % (15 - t))
            a("v_mfma_f32_16x16x32_bf16 %s, %s, %s, %s" % (vr(32), vr(128 + 4 * t), vr(64 + 4 * t), "0" if t == 0 else vr(32)))
        a("v_permlane32_swap_b32 v32, v34")
        a("v_permlane32_swap_b32 v33, v35")
        a("v_mul_f32 v32, 0x%x, v32" % NLOG2E)
        a("v_mul_f32 v33, 0x%x, v33" % NLOG2E)
        a("v_exp_f32 v32, v32")
        a("v_exp_f32 v33, v33")
        a("v_add_f32 v32, 1.0, v32")
        a("v_add_f32 v33, 1.0, v33")
        a("v_rcp_f32 v32, v32")
        a("v_rcp_f32 v33, v33")
        a("v_mul_f32 v32, v32, v34")
        a("v_mul_f32 v33, v33, v35")
        a("s_mov_b32 exec_lo, 0x000f000f")
        a("s_mov_b32 exec_hi, 0x000f000f")
        a("v_cvt_pk_bf16_f32 v32, v32, v33")
        a("buffer_store_dword v32, v26, %s, s56 offen sc1" % q4(R_WS))
        a("s_mov_b64 exec, -1")
        self.stamp(10)
        self.finish()

    def role_m(self):
        a = self.a
        a("L_role_m:")
        a("s_mov_b32 m0, s80")
        self.t_loads(R_TA, 10)
        a("s_add_u32 s79, s79, s75")
        a("s_xor_b32 m0, s80, 0x1000")
        a("s_barrier")
        self.t_loads(R_TA, 10)
        if self.helpg:
            a("s_barrier")
            a("buffer_load_dword v1, v27, %s, s65 offen %s" % (q4(R_TB), self.ntw))
        for kk in range(4):
            a("ds_read2_b64 %s, v21 offset0:%d offset1:%d" % (vr(64 + 4 * kk), 8 * kk, 8 * kk + 4))
        a("s_waitcnt vmcnt(%d) lgkmcnt(0)" % (1 if self.helpg else 0))
        self.wm_tr_reads()
        a("s_waitcnt lgkmcnt(0)")
        for kk in range(4):
            for tau in range(2):
                acc = 32 + 4 * tau
                a("v_mfma_f32_16x16x32_bf16 %s, %s, %s, %s" % (vr(acc), vr(64 + 4 * kk), vr(96 + 16 * tau + 4 * kk), "0" if kk == 0 else vr(acc)))
        self.wm_publish(32, 36, "L_done")
        self.stamp(8)
        self.finish()

    def silu8(self, src, dst):
        a = self.a
        self.unpack(40, src, 4, "s83")
        for j in range(8):
            a("v_mul_f32 v%d, 0x%x, v%d" % (48 + j, NLOG2E, 40 + j))
        for j in range(8):
            a("v_exp_f32 v%d, v%d" % (48 + j, 48 + j))
        for j in range(8):
            a("v_add_f32 v%d, 1.0, v%d" % (48 + j, 48 + j))
        for j in range(8):
            a("v_rcp_f32 v%d, v%d" % (48 + j, 48 + j))
        for j in range(8):
            a("v_mul_f32 v%d, v%d, v%d" % (48 + j, 48 + j, 40 + j))
        self.pack(dst, 48, 4)

    def mload(self):
        a = self.a
        a("s_lshl_b32 s82, %s, 10" % S_W)
        a("v_and_b32 v12, 1, v3")
        a("v_lshlrev_b32 v1, 1, v12")
        a("v_xor_b32 v1, v1, v4")
        a("v_lshrrev_b32 v11, 2, v0")
        a("v_mul_u32_u24 v10, 6144, v11")
        a("v_lshl_add_u32 v10, v1, 4, v10")
        a("s_and_b32 s72, %s, 1" % S_I)
        a("s_lshl_b32 s77, %s, 1" % S_W)
        a("s_add_u32 s77, s77, s72")
        a("s_lshl_b32 s80, s77, 12")
        a("s_add_u32 m0, s80, %d" % L_M)
        a("s_mul_i32 s79, s77, %d" % (64 * 6144))
        a("s_lshl_b32 s78, %s, 6" % S_I)
        a("s_add_u32 s79, s79, s78")
        a("s_mov_b32 s74, %d" % (16 * 6144 - 1024))
        for d, nm in ((R_C, 'c'), (R_X, 'x'), (R_TA, 'wmod')):
            a("s_mov_b32 s%d, %d" % (d + 2, KSIZE[nm]))
            a("s_mov_b32 s%d, 0x00020000" % (d + 3))
        a("s_waitcnt lgkmcnt(0)")
        for d, p in ((R_C, P_C), (R_X, P_X), (R_TA, P_WMOD)):
            a("s_mov_b64 s[%d:%d], s[%d:%d]" % (d, d + 1, p, p + 1))
        a("buffer_load_dwordx4 %s, v8, %s, s82 offen" % (vr(24), q4(R_C)))
        a("buffer_load_dwordx4 %s, v8, %s, s82 offen" % (vr(28), q4(R_X)))
        if self.cdelay:
            a("s_sleep %d" % self.cdelay)
        self.t_loads(R_TA, 10)
        a("s_xor_b32 s80, s80, 0x1000")
        a("s_add_u32 m0, s80, %d" % L_M)
        a("s_lshr_b32 s77, s80, 12")
        a("s_mul_i32 s79, s77, %d" % (64 * 6144))
        a("s_add_u32 s79, s79, s78")
        a("s_add_u32 s82, s82, %d" % L_SC)
        a("v_add_u32 v13, s82, v8")
        a("s_waitcnt vmcnt(5)")
        self.silu8(24, 24)
        a("ds_write_b128 v13, %s" % vr(24))
        self.t_loads(R_TA, 10)
        MASK = "s83"
        if self.stamps:
            a("s_mov_b32 s%d, s100" % STAMP0)
        self.stamp(7)
        a("s_waitcnt vmcnt(8)")
        self.unpack(40, 28, 4, MASK)
        a("v_pk_add_f32 v[48:49], v[40:41], v[42:43]")
        a("v_pk_add_f32 v[50:51], v[44:45], v[46:47]")
        a("v_pk_add_f32 v[48:49], v[48:49], v[50:51]")
        a("v_add_f32 v48, v48, v49")
        self.allreduce("v_add_f32", [48], [49])
        a("v_mul_f32 v48, 0x3b000000, v48")
        for j in range(8):
            a("v_sub_f32 v%d, v%d, v48" % (52 + j, 40 + j))
        a("v_mul_f32 v49, v52, v52")
        for j in range(1, 8):
            a("v_fmac_f32 v49, v%d, v%d" % (52 + j, 52 + j))
        self.allreduce("v_add_f32", [49], [50])
        a("v_mul_f32 v49, 0x3b000000, v49")
        self.rnd(48, 1, 50, MASK)
        a("v_add_f32 v49, 0x%x, v49" % EPS)
        self.rnd(48, 1, 50, MASK)
        a("v_sqrt_f32 v49, v49")
        self.rnd(48, 1, 50, MASK)
        a("v_rcp_f32 v49, v49")
        for j in range(8):
            a("v_sub_f32 v%d, v%d, v48" % (40 + j, 40 + j))
        self.rnd(40, 4, 52, MASK)
        for j in range(8):
            a("v_mul_f32 v%d, v%d, v49" % (40 + j, 40 + j))
        self.pack(28, 40, 4)
        a("ds_write_b128 v13, %s offset:%d" % (vr(28), L_N - L_SC))
        a("v_lshrrev_b32 v1, 2, v7")
        a("v_lshlrev_b32 v21, 10, v1")
        a("v_lshl_add_u32 v21, v3, 3, v21")
        a("s_lshl_b32 s77, %s, 8" % S_W)
        a("s_add_u32 s77, s77, %d" % L_SC)
        a("v_add_u32 v21, s77, v21")
        a("v_lshlrev_b32 v22, 6, v11")
        a("v_lshl_add_u32 v22, v12, 5, v22")
        a("v_lshl_add_u32 v22, v4, 3, v22")
        a("s_lshl_b32 s77, %s, 13" % S_W)
        a("s_add_u32 s77, s77, %d" % L_M)
        a("v_add_u32 v22, s77, v22")
        a("v_xor_b32 v23, 32, v22")
        a("v_lshlrev_b32 v20, 2, v7")
        a("v_lshl_add_u32 v20, v3, 7, v20")
        a("s_lshl_b32 s77, %s, 9" % S_W)
        a("s_add_u32 s77, s77, %d" % L_RED)
        a("v_add_u32 v20, s77, v20")
        a("s_waitcnt lgkmcnt(0)")
        self.stamp(8)
        a("s_barrier")
        if self.stamps:
            a("s_mov_b32 s100, s%d" % STAMP0)

    def mprep(self):
        a = self.a
        a("L_mcomp:")
        for kk in range(4):
            a("ds_read2_b64 %s, v21 offset0:%d offset1:%d" % (vr(40 + 4 * kk), 8 * kk, 8 * kk + 4))
        self.stamp(9)
        a("s_waitcnt vmcnt(4) lgkmcnt(0)")
        self.stamp(10)
        self.wm_tr_reads(128)
        for tau in range(2):
            a("s_waitcnt lgkmcnt(%d)" % (8 - 8 * tau))
            for kk in range(4):
                acc = 32 + 4 * tau
                a("v_mfma_f32_16x16x32_bf16 %s, %s, %s, %s" % (vr(acc), vr(40 + 4 * kk), vr(128 + 16 * tau + 4 * kk), "0" if kk == 0 else vr(acc)))
        a("ds_write_b32 v20, v32")
        a("ds_write_b32 v20, v36 offset:64")
        a("s_waitcnt lgkmcnt(0)")
        self.stamp(11)
        a("s_barrier")
        a("s_branch L_stream2")

    def front_wave(self):
        a = self.a
        MASK = "s83"
        a("L_front:")
        a("s_setprio 3")
        for j in range(4):
            a("v_mov_b32 v%d, -1" % (32 + j))
        a("v_mov_b32 v13, 0")
        a("v_lshlrev_b32 v12, 4, v7")
        a("v_lshl_add_u32 v12, v3, 13, v12")
        a("s_lshl_b32 s76, %s, 5" % S_G)
        a("s_add_u32 s76, s76, %s" % S_I)
        a("s_lshl_b32 s82, s76, 10")
        a("s_add_u32 s82, s82, %d" % WS_A)
        a("s_lshl_b32 s81, %s, 15" % S_G)
        a("s_lshl_b32 s77, %s, 8" % S_I)
        a("s_add_u32 s81, s81, s77")
        a("s_add_u32 s81, s81, %d" % WS_QP)
        a("s_mov_b32 s80, %d" % WS_E)
        a("s_lshl_b32 s77, %s, 10" % S_I)
        a("s_lshl_b32 s56, %s, 12" % S_G)
        a("s_add_u32 s78, s56, %d" % WS_B)
        a("s_add_u32 s56, s56, %d" % (WS_C - 4096))
        a("s_cmp_ge_u32 %s, 4" % S_I)
        a("s_cselect_b32 s78, s56, s78")
        a("s_lshl_b32 s56, %s, 11" % S_G)
        a("s_add_u32 s56, s56, %d" % (WS_M2 - 8192))
        a("s_cmp_ge_u32 %s, 8" % S_I)
        a("s_cselect_b32 s78, s56, s78")
        a("s_lshl_b32 s56, %s, 10" % S_G)
        a("s_add_u32 s56, s56, %d" % (WS_ST - 10240))
        a("s_cmp_ge_u32 %s, 10" % S_I)
        a("s_cselect_b32 s78, s56, s78")
        a("s_cmp_ge_u32 %s, 11" % S_I)
        a("s_cselect_b32 s78, 0x40000000, s78")
        a("s_add_u32 s78, s78, s77")
        for d, nm in ((R_WS, 'ws'), (R_C, 'c')):
            a("s_mov_b32 s%d, %d" % (d + 2, KSIZE[nm]))
            a("s_mov_b32 s%d, 0x00020000" % (d + 3))
        a("s_waitcnt lgkmcnt(0)")
        for d, p in ((R_WS, P_WS), (R_C, P_C)):
            a("s_mov_b64 s[%d:%d], s[%d:%d]" % (d, d + 1, p, p + 1))
        a("buffer_load_dword v15, v13, %s, s80 offen sc1" % q4(R_WS))
        if self.stamps:
            a("s_mov_b32 s%d, s100" % STAMP0)
            for k in range(1, 12):
                a("s_mov_b32 s%d, 0" % (STAMP0 + k))

        def make_tag():
            a("v_readfirstlane_b32 s73, v15")
            a("s_mul_i32 s73, s73, %d" % LCG_A)
            a("s_add_u32 s73, s73, %d" % LCG_C)

        def post_ids(younger=0):
            a("s_getreg_b32 s72, hwreg(HW_REG_XCC_ID, 0, 4)")
            if self.force_remote:
                a("s_and_b32 s72, %s, 15" % S_I)
            a("s_lshl_b32 s60, %s, 8" % S_G)
            a("s_add_u32 s60, s60, %d" % WS_IDC)
            a("s_lshl_b32 s77, %s, 2" % S_I)
            a("s_add_u32 s77, s77, s60")
            a("s_lshl_b32 s76, s76, 7")
            a("s_add_u32 s76, s76, %d" % WS_IDR)
            a("s_waitcnt vmcnt(%d)" % younger)
            make_tag()
            a("s_xor_b32 s72, s72, s73")
            a("v_mov_b32 v22, s72")
            a("s_mov_b64 exec, 1")
            a("buffer_store_dword v22, v13, %s, s77 offen" % q4(R_WS))
            a("buffer_store_dword v22, v13, %s, s76 offen sc1" % q4(R_WS))
            if self.warm:
                a("s_mov_b32 exec_lo, 0x01010101")
                a("s_mov_b32 exec_hi, 0x01010101")
                a("buffer_load_dword v14, v8, %s, s82 offen sc1" % q4(R_WS))
                a("buffer_load_dword v14, v12, %s, s81 offen sc1" % q4(R_WS))
                a("s_cmp_eq_u32 %s, 10" % S_I)
                a("s_cselect_b32 s78, s78, 0x40000000")
                a("buffer_load_dword v14, v8, %s, s78 offen sc1" % q4(R_WS))
            a("s_mov_b64 exec, -1")

        a("s_cmp_eq_u32 %s, %d" % (S_G, self.mg_h))
        a("s_cbranch_scc1 L_f_m")
        a("s_cmp_lt_u32 %s, 24" % S_I)
        a("s_cbranch_scc1 L_f_q")
        for b in range(4):
            a("buffer_load_dwordx4 %s, v8, %s, 0 offen offset:%d" % (vr(208 + 4 * b), q4(R_C), b * 1024))
        a("L_f_q:")
        a("buffer_store_dwordx4 %s, v8, %s, s82 offen sc1" % (vr(32), q4(R_WS)))
        a("buffer_store_dwordx4 %s, v12, %s, s81 offen sc1" % (vr(32), q4(R_WS)))
        a("buffer_store_dwordx4 %s, v8, %s, s78 offen sc1" % (vr(32), q4(R_WS)))
        if self.exp == 4:
            a("s_barrier")
            self.finish()
        a("s_barrier")
        post_ids()
        if self.hsleep:
            a("s_sleep %d" % self.hsleep)
        a("L_f_q2:")
        if self.exp in (4, 5):
            self.finish()
        self.stamp(4)
        a("v_lshrrev_b32 v1, 2, v7")
        a("v_lshlrev_b32 v16, 9, v1")
        a("v_lshl_add_u32 v16, v3, 6, v16")
        a("v_lshl_add_u32 v16, v4, 4, v16")
        a("s_lshl_b32 s61, %s, 11" % S_B)
        a("s_add_u32 s61, s61, %d" % WS_H)
        a("s_add_u32 s57, s61, 8192")
        a("v_and_b32 v19, 31, v0")
        a("v_lshlrev_b32 v20, 7, v19")
        a("v_lshlrev_b32 v19, 2, v19")

        def h_loads():
            for e in range(4):
                a("buffer_load_dwordx4 %s, v16, %s, %s offen offset:%d sc1" % (vr(192 + 4 * e), q4(R_WS), "s61" if e < 2 else "s57", (e & 1) * 256))
            a("buffer_load_dword v23, v19, %s, s60 offen sc1" % q4(R_WS))
        a("v_lshlrev_b32 v18, 13, v4")
        a("v_lshl_add_u32 v18, v1, 6, v18")
        a("v_lshl_add_u32 v18, v3, 4, v18")
        a("s_lshl_b32 s62, %s, 2" % S_G)
        a("s_add_u32 s62, s62, %s" % S_B)
        a("s_lshl_b32 s62, s62, 13")
        a("s_add_u32 s62, s62, %d" % WS_QP)
        a("s_add_u32 s63, s62, 4096")
        a("s_lshl_b32 s59, %s, 12" % S_G)
        a("s_add_u32 s59, s59, %d" % WS_IDR)
        a("v_lshrrev_b32 v36, 2, v0")
        a("v_lshlrev_b32 v36, 7, v36")
        a("v_bfe_u32 v1, v0, 3, 2")
        a("v_lshl_add_u32 v36, v1, 5, v36")
        a("v_lshl_add_u32 v36, v4, 3, v36")
        a("v_add_u32 v36, %d, v36" % L_WQ)
        for tau in range(1, 4):
            a("v_xor_b32 v%d, %d, v36" % (36 + tau, 32 * tau))
        a("v_lshlrev_b32 v17, 3, v0")
        a("v_add_u32 v17, %d, v17" % L_Q)
        a("s_mov_b32 s79, 0")
        for tau in range(4):
            for kk in range(4):
                for rd in range(2):
                    a("ds_read_b64_tr_b16 %s, v%d offset:%d" % (vr(128 + 16 * tau + 4 * kk + 2 * rd, 2), 36 + tau, kk * 4096 + rd * 2048))
            a("s_waitcnt lgkmcnt(4)")
        if self.sent:
            a("s_lshl_b32 s77, %s, 6" % S_G)
            a("s_add_u32 s77, s77, s61")
            a("s_add_u32 s68, s%d, s77" % P_WS)
            a("s_addc_u32 s69, s%d, 0" % (P_WS + 1))
            a("L_sent:")
            for e in range(8):
                a("s_load_dword s%d, s[68:69], %d glc" % (44 + e, (e >> 2) * 8192 + (e & 3) * 512 + 4))
            a("s_waitcnt lgkmcnt(0)")
            for e in range(8):
                a("s_xor_b32 s%d, s%d, s73" % (44 + e, 44 + e))
            a("s_or_b64 s[44:45], s[44:45], s[46:47]")
            a("s_or_b64 s[48:49], s[48:49], s[50:51]")
            a("s_or_b64 s[44:45], s[44:45], s[48:49]")
            a("s_cbranch_scc0 L_sent_ok")
            self.spin_tail("L_sent", "s79")
            a("L_sent_ok:")
            self.stamp(7)
            a("s_mov_b32 s79, 0")
        for _ in range(self.hdeep - 1):
            h_loads()
            a("s_sleep %d" % (2 * self.half // self.hdeep))
        a("L_h_retry:")
        h_loads()
        a("s_waitcnt vmcnt(%d) lgkmcnt(0)" % (5 * (self.hdeep - 1)))
        for j in range(8):
            a("v_xor_b32 v%d, s73, v%d" % (40 + j, 193 + 2 * j))
        a("v_or3_b32 v1, v40, v41, v42")
        a("v_or3_b32 v2, v43, v44, v45")
        a("v_or3_b32 v1, v1, v46, v47")
        a("v_or_b32 v1, v1, v2")
        a("v_mov_b32 v2, 0")
        a("v_cmp_ne_u32 vcc, v1, v2")
        a("s_cbranch_vccz L_h_ok")
        self.spin_tail("L_h_retry", "s79")
        a("L_h_ok:")
        self.count(8, "s79")
        self.stamp(5)
        for j in range(8):
            a("v_and_b32 v%d, %s, v%d" % (41 + 2 * j, MASK, 192 + 2 * j))
            a("v_lshlrev_b32 v%d, 16, v%d" % (40 + 2 * j, 192 + 2 * j))
        for j in range(0, 8, 2):
            a("v_pk_add_f32 v[%d:%d], v[%d:%d], v[%d:%d]" % (40 + j, 41 + j, 40 + j, 41 + j, 48 + j, 49 + j))
        self.pack(26, 40, 4)
        for tau in range(4):
            for kk in range(4):
                a("v_mfma_f32_16x16x32_bf16 %s, %s, %s, 0" % (vr(64 + 16 * tau + 4 * kk), vr(128 + 16 * tau + 4 * kk), vr(26)))
        a("v_cmp_ne_u32 vcc, s72, v23")
        a("s_mov_b32 s58, 1")
        a("s_cbranch_vccnz L_id_slow")
        a("L_id_ok:")
        for tau in range(4):
            kks = [x for x in range(4) if x != tau]
            for k, kk in enumerate(kks):
                for r in range(4):
                    src1 = 64 + 16 * tau + 4 * tau + r if k == 0 else 32 + r
                    a("v_add_f32_dpp v%d, v%d, v%d row_ror:%d row_mask:0xf bank_mask:0x%x" % (32 + r, 64 + 16 * tau + 4 * kk + r, src1, (4 * (tau - kk)) & 15, 1 << tau))
        a("s_cmp_eq_u32 s58, 0")
        a("s_cbranch_scc1 L_qp_remote")
        a("buffer_store_dwordx4 %s, v18, %s, s81 offen" % (vr(32), q4(R_WS)))
        a("L_qp_done:")
        if self.exp == 6:
            self.finish()
        self.stamp(3)
        a("s_cmp_lg_u32 %s, 0" % S_I)
        a("s_cbranch_scc1 L_f_nogr")
        a("s_lshl_b32 s77, %s, 7" % S_G)
        a("s_add_u32 s77, s77, %d" % WS_GR)
        a("v_mov_b32 v22, s73")
        a("s_mov_b64 exec, 1")
        a("buffer_store_dword v22, v13, %s, s77 offen sc1" % q4(R_WS))
        a("s_mov_b64 exec, -1")
        a("L_f_nogr:")
        a("s_cmp_eq_u32 %s, %d" % (S_G, self.mg_h))
        a("s_cbranch_scc1 L_f_nos2")
        a("s_cmp_ge_u32 %s, 24" % S_I)
        a("s_cbranch_scc1 L_f_silu")
        a("L_f_nos2:")
        if self.qsleep:
            a("s_sleep %d" % self.qsleep)
        a("L_f_gather:")
        a("s_mov_b32 s79, 0")

        def q_loads():
            for e in range(8):
                a("buffer_load_dwordx4 %s, v8, %s, %s offen offset:%d sc1" % (vr(128 + 4 * e), q4(R_WS), "s62" if e < 4 else "s63", (e & 3) * 1024))
        for _ in range(self.qdeep - 1):
            q_loads()
            a("s_sleep %d" % (2 * self.half // self.qdeep))
        a("L_q_retry:")
        q_loads()
        a("s_waitcnt vmcnt(%d)" % (8 * (self.qdeep - 1)))
        for j in range(0, 16, 2):
            a("v_pk_add_f32 v[%d:%d], v[%d:%d], v[%d:%d]" % (64 + j, 65 + j, 128 + j, 129 + j, 144 + j, 145 + j))
        for j in range(0, 8, 2):
            a("v_pk_add_f32 v[%d:%d], v[%d:%d], v[%d:%d]" % (64 + j, 65 + j, 64 + j, 65 + j, 72 + j, 73 + j))
        a("v_pk_add_f32 v[72:73], v[64:65], v[66:67]")
        a("v_pk_add_f32 v[74:75], v[68:69], v[70:71]")
        a("v_pk_add_f32 v[72:73], v[72:73], v[74:75]")
        a("v_cmp_u_f32 vcc, v72, v73")
        a("s_cbranch_vccz L_q_ok")
        self.spin_tail("L_q_retry", "s79")
        a("L_q_ok:")
        self.count(9, "s79")
        self.pack(28, 64, 4)
        a("ds_write_b64 v17, v[28:29]")
        a("ds_write_b64 v17, v[30:31] offset:512")
        a("v_mov_b32 v24, s58")
        a("v_mov_b32 v25, s73")
        a("v_mov_b32 v1, %d" % L_LOC)
        a("ds_write_b64 v1, v[24:25]")
        a("s_waitcnt lgkmcnt(0)")
        self.stamp(6)
        a("s_barrier")
        self.finish()
        a("L_qp_remote:")
        a("buffer_store_dwordx4 %s, v18, %s, s81 offen sc1" % (vr(32), q4(R_WS)))
        a("s_branch L_qp_done")
        a("L_id_slow:")
        a("s_mov_b32 s79, 0")
        a("L_id_again:")
        a("buffer_load_dword v23, v19, %s, s60 offen sc1" % q4(R_WS))
        a("s_waitcnt vmcnt(0)")
        a("v_cmp_ne_u32 vcc, s72, v23")
        a("s_cbranch_vccz L_id_ok")
        a("s_add_u32 s79, s79, 1")
        a("s_cmp_lt_u32 s79, 3")
        a("s_cbranch_scc1 L_id_again")
        a("L_id_retry:")
        a("buffer_load_dword v23, v20, %s, s59 offen sc1" % q4(R_WS))
        a("s_waitcnt vmcnt(0)")
        a("v_xor_b32 v1, s73, v23")
        a("v_cmp_lt_u32 vcc, 15, v1")
        a("s_cbranch_vccz L_id_all")
        self.spin_tail("L_id_retry", "s79")
        a("L_id_all:")
        a("v_cmp_ne_u32 vcc, s72, v23")
        a("s_cbranch_vccz L_id_ok")
        a("s_mov_b32 s58, 0")
        a("s_branch L_id_ok")
        a("L_f_silu:")
        a("v_add_u32 v21, %d, v8" % L_SC)
        a("s_mov_b32 s77, 0")
        a("L_f_silu_l:")
        self.silu8(208, 24)
        a("ds_write_b128 v21, %s" % vr(24))
        for j in range(12):
            a("v_mov_b32 v%d, v%d" % (208 + j, 212 + j))
        a("v_add_u32 v21, 1024, v21")
        a("s_add_u32 s77, s77, 1")
        a("s_cmp_lt_u32 s77, 4")
        a("s_cbranch_scc1 L_f_silu_l")
        a("s_branch L_f_gather")
        a("L_f_m:")
        a("v_lshrrev_b32 v1, 3, v0")
        a("v_and_b32 v18, 1, v0")
        a("v_lshl_add_u32 v1, v1, 1, v18")
        a("v_bfe_u32 v19, v0, 1, 2")
        a("v_lshlrev_b32 v16, 3, v1")
        a("v_lshl_add_u32 v16, v19, 7, v16")
        a("v_add_u32 v16, %d, v16" % L_RED)
        a("v_lshlrev_b32 v18, 2, v1")
        a("v_lshl_add_u32 v18, v19, 10, v18")
        a("s_and_b32 s77, %s, 15" % S_I)
        a("s_lshl_b32 s77, s77, 6")
        a("s_add_u32 s77, s77, %d" % L_N)
        a("v_add_u32 v18, s77, v18")
        a("v_lshlrev_b32 v19, 3, v0")
        a("s_lshl_b32 s62, %s, 9" % S_I)
        a("s_add_u32 s62, s62, %d" % WS_H)
        a("s_barrier")
        a("ds_read_b32 v20, v18")
        a("buffer_store_dwordx4 %s, v8, %s, s82 offen sc1" % (vr(32), q4(R_WS)))
        a("buffer_store_dwordx4 %s, v12, %s, s81 offen sc1" % (vr(32), q4(R_WS)))
        a("buffer_store_dwordx4 %s, v8, %s, s78 offen sc1" % (vr(32), q4(R_WS)))
        a("s_waitcnt vmcnt(3)")
        make_tag()
        a("v_mov_b32 v25, s73")
        a("s_waitcnt lgkmcnt(0)")
        self.unpack(48, 20, 1, MASK)
        self.stamp(1)
        a("s_cmp_lt_u32 %s, 16" % S_I)
        a("s_barrier")
        for h in range(4):
            a("ds_read_b64 %s, v16 offset:%d" % (vr(64 + 2 * h, 2), h * 512))
        a("s_waitcnt lgkmcnt(2)")
        a("v_pk_add_f32 v[64:65], v[64:65], v[66:67]")
        a("s_waitcnt lgkmcnt(0)")
        a("v_pk_add_f32 v[68:69], v[68:69], v[70:71]")
        a("v_pk_add_f32 v[64:65], v[64:65], v[68:69]")
        a("s_cbranch_scc1 L_f_h_sa")
        self.rnd(64, 1, 40, MASK)
        a("v_pk_add_f32 v[64:65], v[64:65], 1.0 op_sel_hi:[1,0]")
        self.rnd(64, 1, 40, MASK)
        a("v_pk_mul_f32 v[64:65], v[64:65], v[48:49]")
        a("L_f_h_sa:")
        a("v_cvt_pk_bf16_f32 v24, v64, v65")
        a("buffer_store_dwordx2 v[24:25], v19, %s, s62 offen sc1" % q4(R_WS))
        self.stamp(2)
        post_ids(1)
        a("s_barrier")
        a("s_branch L_f_q2")

    def stamps_out(self):
        a = self.a
        a("L_stamps:")
        a("s_waitcnt vmcnt(0)")
        a("s_lshl_b32 s76, s2, 3")
        a("s_add_u32 s76, s76, %s" % S_W)
        a("s_lshl_b32 s76, s76, 6")
        a("s_add_u32 s76, s76, %d" % WS_STAMP)
        a("v_mov_b32 v1, 0")
        for k in range(12):
            a("v_writelane_b32 v1, s%d, %d" % (STAMP0 + k, k))
        a("v_lshlrev_b32 v2, 2, v0")
        a("s_mov_b64 exec, 0xffff")
        a("buffer_store_dword v1, v2, %s, s76 offen sc1" % q4(R_WS))
        if self.pop:
            a("s_mov_b64 exec, -1")
            a("s_cmp_lg_u32 s76, %d" % (WS_STAMP + 3 * 64))
            a("s_cbranch_scc1 L_exit")
            a("L_pw:")
            a("s_memrealtime s[100:101]")
            a("s_waitcnt lgkmcnt(0)")
            a("s_sub_u32 s77, s100, s%d" % STAMP0)
            a("s_cmp_lt_u32 s77, 6000")
            a("s_cbranch_scc1 L_pw")
            a("v_lshlrev_b32 v2, 9, v0")
            for j in range(4):
                a("s_mov_b32 s77, %d" % (WS_STAMP + j * 32768))
                a("buffer_load_dword v%d, v2, %s, s77 offen sc1" % (10 + j, q4(R_WS)))
                a("buffer_load_dword v%d, v2, %s, s77 offen offset:%d sc1" % (14 + j, q4(R_WS), self.pwave * 64 + self.pk * 4))
            a("s_waitcnt vmcnt(0)")
            a("s_sub_u32 s78, s%d, 2000" % STAMP0)
            for j in range(8):
                a("v_subrev_u32 v%d, s78, v%d" % (10 + j, 10 + j))
            neutral = "0" if self.pop == "max" else "-1"
            a("v_mov_b32 v20, %s" % neutral)
            for j in range(4):
                m = 0
                for l in range(64):
                    if (self.pgm >> (l & 7)) & 1 and self.ilo <= 8 * j + (l >> 3) < self.ihi:
                        m |= 1 << l
                a("s_mov_b32 exec_lo, 0x%x" % (m & 0xffffffff))
                a("s_mov_b32 exec_hi, 0x%x" % (m >> 32))
                a("v_%s_u32 v20, v20, v%d" % (self.pop, 14 + j))
            a("s_mov_b64 exec, -1")
            a("v_min3_u32 v10, v10, v11, v12")
            a("v_min_u32 v10, v10, v13")
            self.allreduce("v_min_u32", [10], [11])
            self.allreduce("v_%s_u32" % self.pop, [20], [21])
            a("v_sub_u32 v20, v20, v10")
            a("v_readfirstlane_b32 s76, v20")
            a("v_readfirstlane_b32 s79, v10")
            a("s_mul_i32 s76, s76, %d" % self.pamp)
            a("s_min_u32 s76, s76, 100000")
            a("s_add_u32 s76, s76, 10000")
            a("s_add_u32 s79, s79, s78")
            a("L_pspin:")
            a("s_memrealtime s[100:101]")
            a("s_waitcnt lgkmcnt(0)")
            a("s_sub_u32 s77, s100, s79")
            a("s_cmp_lt_u32 s77, s76")
            a("s_cbranch_scc1 L_pspin")
        a("s_endpgm")

    def build(self):
        a = self.a
        self.prologue()
        self.main_wave()
        self.front_wave()
        if self.stamps:
            self.stamps_out()
        a("L_exit:")
        a("L_last:")
        a("s_endpgm")
        lines, n = hazard.fix(a.lines)
        sys.stderr.write("hazard pass inserted %d wait states, %d lines\n" % (n, len(lines)))
        return kernel_file("\n".join(lines) + "\n", 256, 320, LDS_BYTES, 232)


if __name__ == "__main__":
    kw = {}
    out = sys.argv[1]
    for x in sys.argv[2:]:
        k, v = x.split("=")
        kw[k] = int(v) if v.lstrip("-").isdigit() else v
    open(out, "w").write(Gen(**kw).build())
```

```python
import sys
from asmlib import *
import hazard

WS_B, WS_C, WS_M2 = 0x0, 0x8000, 0x10000
WS_H, WS_E, WS_IDC, WS_GR, WS_IDR = 0x18000, 0x1C000, 0x1D000, 0x1E000, 0x20000
WS_A = 0x80000
WS_Q, WS_ST = WS_A + 32768, WS_A + 36864
WS_STAMP = 0x100000
L_V = 0
L_WQ = 65536
L_M = 0
L_T1 = 65536
L_T2 = 98304
L_MISC = 131072
L_Q = L_MISC
L_SC = L_MISC + 1024
L_N = L_SC + 4096
L_H2 = L_SC
L_P = L_N + 4096
L_RED = L_P + 2048
L_RED2 = L_RED + 2048
L_MAX = L_RED2 + 1024
L_SUM = L_MAX + 64
L_LOC = L_SUM + 64
L_DUMP = L_MISC + 16384
LDS_BYTES = L_DUMP + 2048
assert L_LOC + 64 <= LDS_BYTES

LOG2E = 0x3FB8AA3B
NLOG2E = 0xBFB8AA3B
SCALE = 0x3DB504F3
EPS = 0x3727C5AC
SPIN_MAX = 0x10000

S_G, S_I, S_B, S_S, S_W = "s4", "s5", "s6", "s7", "s3"
P_X, P_WQ, P_WO, P_WG, P_WU = 8, 14, 16, 20, 22
P_WD, P_C, P_WMOD, P_OUT, P_DBG, P_WS = 24, 26, 28, 30, 32, 34
R_WS, R_K, R_V, R_TA, R_TB, R_WD, R_X, R_C, R_OUT, R_DBG = 36, 40, 44, 48, 52, 56, 60, 64, 68, 72
R_WO = R_K
R_WQ, R_WMOD = 48, 52
LCG_A, LCG_C = 1664525, 1013904223
STAMP0 = 84


def q4(n):
    return "s[%d:%d]" % (n, n + 3)


def vr(n, k=4):
    return "v[%d:%d]" % (n, n + k - 1)


class Gen:
    def __init__(self, stamps=False, win=8, wsw=12, wsw2=99, wend=8, nv=1, wqe=8, hw=2, ramp=3, pb=9, helpm=1, xhelp=1, kearly=8, idmax=12, t1early=0, hdeep=2, qdeep=2, half=16, winv=6, helpg=1, sent=0, ntw="", warm=1, cdelay=3, st_local="sc1", nt="nt", mg_h=7, pref=1, force_remote=0, exp=0, tailfree=3, hsleep=0, qsleep=20, pop="", pgm=255, ilo=0, ihi=32, pamp=20, pwave=0, pk=0):
        self.pop, self.pgm, self.ilo, self.ihi, self.pamp, self.pwave, self.pk = pop, pgm, ilo, ihi, pamp, pwave, pk
        self.a = Asm()
        self.stamps = stamps
        self.win = win
        self.winv = winv
        self.helpg = helpg
        self.sent = sent
        self.hw = hw
        self.wsw2, self.wend = wsw2, wend
        self.wsw, self.nv, self.wqe = wsw, nv, wqe
        self.pb, self.helpm = pb, helpm
        self.xhelp, self.kearly = xhelp, kearly
        self.ramp, self.idmax, self.t1early = ramp, idmax, t1early
        self.hdeep, self.qdeep, self.half = hdeep, qdeep, half
        self.ntw = ntw
        self.warm = warm
        self.cdelay = cdelay
        self.st_local = st_local
        self.nt = nt
        self.mg_h = mg_h
        self.pref = pref
        self.exp = exp
        self.tailfree = tailfree
        self.hsleep = hsleep
        self.qsleep = qsleep
        self.force_remote = force_remote

    def stamp(self, k):
        if self.stamps:
            a = self.a
            a("s_memrealtime s[100:101]")
            a("s_waitcnt lgkmcnt(0)")
            a("s_mov_b32 s%d, s100" % (STAMP0 + k))

    def count(self, k, reg):
        if self.stamps:
            self.a("s_mul_i32 s%d, %s, 100" % (STAMP0 + k, reg))
            self.a("s_add_u32 s%d, s%d, s%d" % (STAMP0 + k, STAMP0 + k, STAMP0))

    def finish(self):
        a = self.a
        if self.stamps:
            a("s_branch L_stamps")
        else:
            a("s_endpgm")

    def mksrd(self, d, p, size):
        a = self.a
        a("s_mov_b64 s[%d:%d], s[%d:%d]" % (d, d + 1, p, p + 1))
        a("s_mov_b32 s%d, %d" % (d + 2, size))
        a("s_mov_b32 s%d, 0x00020000" % (d + 3))

    def spin_tail(self, lab, cnt):
        a = self.a
        a("s_add_u32 %s, %s, 1" % (cnt, cnt))
        a("s_cmp_lt_u32 %s, %d" % (cnt, SPIN_MAX))
        a("s_cbranch_scc1 %s" % lab)

    def allreduce(self, op, regs, tmp, rors=(1, 2, 4, 8)):
        a = self.a
        for r in rors:
            for x in regs:
                a("%s_dpp v%d, v%d, v%d row_ror:%d row_mask:0xf bank_mask:0xf" % (op, x, x, x, r))
        for sw in ("v_permlane16_swap_b32", "v_permlane32_swap_b32"):
            for x, t in zip(regs, tmp):
                a("v_mov_b32 v%d, v%d" % (t, x))
            for x, t in zip(regs, tmp):
                a("%s v%d, v%d" % (sw, x, t))
            for x, t in zip(regs, tmp):
                a("%s v%d, v%d, v%d" % (op, x, x, t))

    def unpack(self, dst, src, n, mask):
        a = self.a
        for j in range(n):
            a("v_lshlrev_b32 v%d, 16, v%d" % (dst + 2 * j, src + j))
            a("v_and_b32 v%d, %s, v%d" % (dst + 2 * j + 1, mask, src + j))

    def pack(self, dst, src, n):
        a = self.a
        for j in range(n):
            a("v_cvt_pk_bf16_f32 v%d, v%d, v%d" % (dst + j, src + 2 * j, src + 2 * j + 1))

    def rnd(self, x, n, tmp, mask):
        self.pack(tmp, x, n)
        self.unpack(x, tmp, n, mask)

    def sigma_voff(self, dst, rowb, t1, t2):
        a = self.a
        a("v_bfe_u32 v%d, v0, 3, 2" % t1)
        a("v_lshlrev_b32 v%d, 3, v%d" % (t1, t1))
        a("v_bfe_u32 v%d, v0, 1, 2" % t2)
        a("v_add_u32 v%d, v%d, v%d" % (t1, t1, t2))
        a("v_lshrrev_b32 v%d, 5, v0" % t2)
        a("v_lshl_add_u32 v%d, v%d, 2, v%d" % (t1, t2, t1))
        a("v_mul_u32_u24 v%d, %d, v%d" % (t1, rowb, t1))
        a("v_and_b32 v%d, 1, v0" % t2)
        a("v_lshl_add_u32 v%d, v%d, 4, v%d" % (dst, t2, t1))

    def prologue(self):
        a = self.a
        a("L_start:")
        if self.stamps:
            a("s_memrealtime s[100:101]")
        a("s_load_dwordx2 s[%d:%d], s[0:1], 8" % (R_K, R_K + 1))
        a("s_load_dwordx16 s[8:23], s[0:1], 0")
        a("s_load_dwordx8 s[24:31], s[0:1], 64")
        a("s_load_dwordx4 s[32:35], s[0:1], 96")
        a("s_getpc_b64 s[70:71]")
        a("L_pc:")
        a("s_cmpk_ge_u32 s2, 256")
        a("s_cbranch_scc1 L_exit")
        a("v_lshrrev_b32 v1, 6, v0")
        a("v_and_b32 v0, 63, v0")
        a("v_readfirstlane_b32 %s, v1" % S_W)
        a("s_and_b32 %s, s2, 7" % S_G)
        a("s_lshr_b32 %s, s2, 3" % S_I)
        a("s_lshr_b32 %s, s2, 6" % S_B)
        a("s_and_b32 %s, %s, 7" % (S_S, S_I))
        a("v_and_b32 v7, 15, v0")
        a("v_lshrrev_b32 v3, 4, v0")
        a("v_and_b32 v4, 3, v0")
        a("v_lshlrev_b32 v8, 4, v0")
        a("s_cmp_eq_u32 %s, 3" % S_B)
        a("s_cselect_b32 s96, 2, 0")
        a("s_cmp_lg_u32 %s, 4" % S_W)
        a("s_cbranch_scc1 L_main")
        if self.pref:
            a("v_lshl_add_u32 v1, %s, 4, v7" % S_S)
            a("v_lshlrev_b32 v1, 7, v1")
            a("v_min_u32 v1, L_last-L_pc, v1")
            a("s_mov_b64 exec, 0xffff")
            a("global_load_dword v2, v1, s[70:71]")
            a("s_mov_b64 exec, -1")
        a("s_branch L_front")
        a("L_main:")

    def t_loads(self, srd, voff, pol=None):
        a = self.a
        pol = self.ntw if pol is None else pol
        a("buffer_load_dwordx4 v%d, %s, s79 offen %s lds" % (voff, q4(srd), pol))
        a("s_add_u32 s77, s79, s74")
        for e in range(1, 4):
            a("buffer_load_dwordx4 v%d, %s, s77 offen offset:%d %s lds" % (voff, q4(srd), e * 1024, pol))
            if e < 3:
                a("s_add_u32 s77, s77, s74")

    def local_store(self, text):
        a = self.a
        l1, l2 = a.label("L_ls"), a.label("L_ls")
        a("s_cmp_eq_u32 s73, 0")
        a("s_cbranch_scc1 %s" % l1)
        a(text)
        a("%s:" % l2)
        self.deferred.append((l1, text + " sc1", l2))

    def main_wave(self):
        a = self.a
        W = self.win
        MASK = "s83"
        self.deferred = []
        a("s_mov_b32 s%d, 0x00020000" % (R_K + 3))
        for d in (R_TA, R_TB, R_C):
            a("s_mov_b32 s%d, s%d" % (d + 3, R_K + 3))
        a("s_mov_b32 s%d, %d" % (R_TA + 2, KSIZE['wmod']))
        a("s_mov_b32 s%d, %d" % (R_K + 2, KSIZE['k']))
        a("s_lshl_b32 s%d, s96, 11" % (R_C + 2))
        a("s_lshl_b32 s82, %s, 10" % S_W)
        a("v_lshrrev_b32 v1, 1, v0")
        a("v_mul_u32_u24 v1, 48, v1")
        a("v_and_or_b32 v1, v0, 1, v1")
        a("v_lshlrev_b32 v5, 7, v1")
        a("s_lshl2_add_u32 s77, %s, %s" % (S_I, S_W))
        a("s_mul_i32 s78, s77, 96")
        a("s_add_u32 s78, s78, %s" % S_G)
        a("s_lshl_b32 s78, s78, 8")
        a("s_lshl3_add_u32 s79, s77, %s" % S_G)
        a("s_lshl_b32 s79, s79, 10")
        a("s_mov_b32 s%d, %d" % (R_TB + 2, KSIZE['wq']))
        a("s_mov_b32 s74, %d" % (96 * 8192))
        a("s_lshl_b32 s75, %s, 11" % S_G)
        a("s_add_u32 s75, s75, s77")
        a("s_add_u32 s75, s75, %d" % (24 * 2048 + 1536))
        a("s_lshl_b32 s75, s75, 10")
        a("s_cmp_lg_u32 s96, 0")
        a("s_waitcnt lgkmcnt(0)")
        for d, p in ((R_C, P_C), (R_TA, P_WMOD), (R_TB, P_WQ)):
            a("s_mov_b64 s[%d:%d], s[%d:%d]" % (d, d + 1, p, p + 1))
        a("buffer_load_dwordx4 %s, v8, %s, s82 offen" % (vr(24), q4(R_C)))
        a("s_mov_b64 exec, 0xff")
        a("buffer_load_dword v23, v5, %s, s78 offen" % q4(R_TA))
        a("s_mov_b64 exec, -1")
        a("s_cbranch_scc1 L_qcu")
        nh = 10 + self.nv
        for e in range(nh):
            if e == 10:
                a("s_mov_b64 s[%d:%d], s[12:13]" % (R_V, R_V + 1))
                a("s_mov_b64 s[%d:%d], s[%d:%d]" % (R_V + 2, R_V + 3, R_K + 2, R_K + 3))
            a("buffer_load_dwordx4 %s, v8, %s, s79 offen" % (vr(128), q4(R_TB if e < 5 else R_K if e < 10 else R_V)))
            if e == 4:
                a("s_mov_b32 s79, s75")
                a("s_lshr_b32 s74, s74, 3")
            elif e == 9:
                a("s_mov_b32 s79, s75")
            elif e < nh - 1:
                a("s_add_u32 s79, s79, s74")
            if e + 1 == self.ramp and self.ramp < W:
                a("s_waitcnt vmcnt(%d)" % self.ramp)
            if e >= W - 1 and e < nh - 1:
                a("s_waitcnt vmcnt(%d)" % (W - 1))
        if self.stamps:
            a("s_mov_b32 s%d, s100" % STAMP0)
            for k in range(1, 12):
                a("s_mov_b32 s%d, 0" % (STAMP0 + k))
        self.k_setup()
        a("s_waitcnt vmcnt(%d)" % (W - 1))
        for e in range(16):
            if e == self.kearly:
                a("L_stream:")
            self.k_load(e)
            if e in (9, 11, 13):
                self.setup_common((e - 9) // 2)
            a("s_waitcnt vmcnt(%d)" % (self.wn(e) - 1))
        self.stamp(1)
        ops = []
        st = dict(e=0)

        def after(tag):
            idx = max(k for k, t in enumerate(ops) if t == tag)
            return len(ops) - 1 - idx

        def nxt(wait=True):
            e = st["e"]
            if e >= 18:
                return
            st["e"] += 1
            if wait and e > 1:
                a("s_waitcnt vmcnt(%d)" % (self.wn(15 + e) - 1))
            if e < 16:
                step, j = e >> 2, e & 3
                if j == 0:
                    a("s_add_u32 m0, s98, %d" % (L_V + step * 16384))
                    a("s_add_u32 s97, s76, %d" % (step * 131072))
                a("buffer_load_dwordx4 v%d, %s, s97 offen offset:%d %s lds" % (5 + (j & 1), q4(R_V), j * 1024, self.nt))
                ops.append("v%d" % step)
            elif e == 16:
                a("s_mov_b32 m0, s64")
                a("buffer_load_dwordx4 v228, %s, s57 offen %s lds" % (q4(R_WO), self.ntw))
                ops.append("t")
            else:
                a("buffer_load_dwordx4 v228, %s, s99 offen offset:1024 %s lds" % (q4(R_WO), self.ntw))
                ops.append("t")
        nxt()
        nxt()
        a("s_cmp_ge_u32 %s, 24" % S_I)
        a("s_cbranch_scc1 L_su_m")
        a("s_cmp_ge_u32 %s, 16" % S_I)
        a("s_cbranch_scc1 L_su_g")
        a("s_branch L_su_w")
        a("L_su_done:")
        self.mksrd(R_WO, P_WO, KSIZE['wo'])
        a("v_mul_lo_u32 v10, v10, s78")
        a("v_add_u32 v10, v10, v11")
        a("v_xor_b32 v11, 16, v10")
        a("s_lshl_b32 s74, s78, 4")
        a("s_sub_u32 s74, s74, 1024")
        a("s_cmp_eq_u32 s72, 0")
        a("s_cselect_b32 s77, 1, -1")
        a("s_mul_i32 s75, s75, s77")
        while st["e"] < (16 if self.exp else self.pb):
            nxt()
        assert self.pb > self.wn(15 + self.pb - 1)
        self.stamp(2)
        if self.exp:
            a("s_waitcnt vmcnt(0)")
            self.stamp(3)
            self.finish()
        a("s_barrier")
        self.stamp(3)
        a("ds_read_b128 %s, v9" % vr(32))
        a("ds_read_b64 v[60:61], v14 offset:%d" % (L_LOC - L_MISC))
        nxt()
        a("s_waitcnt lgkmcnt(0)")
        for e in range(16):
            a("v_mfma_f32_16x16x32_bf16 %s, %s, %s, 0" % (vr(128 + 4 * e), vr(64 + 4 * e), vr(32)))
        a("v_readfirstlane_b32 s73, v60")
        nxt()
        for rho in range(4):
            subs = [x for x in range(4) if x != rho]
            for k, sub in enumerate(subs):
                for rp in range(4):
                    D = 128 + 4 * (4 * rho + rp)
                    src1 = D + rho if k == 0 else 36 + rp
                    a("v_add_f32_dpp v%d, v%d, v%d row_ror:%d row_mask:0xf bank_mask:0x%x" % (36 + rp, D + sub, src1, (4 * (rho - sub)) & 15, 1 << rho))
        nxt()
        self.rnd(36, 2, 40, MASK)
        for r in range(4):
            a("v_mul_f32 v%d, 0x%x, v%d" % (36 + r, SCALE, 36 + r))
        self.rnd(36, 2, 40, MASK)
        a("v_max3_f32 v42, v36, v37, v38")
        a("v_max_f32 v42, v42, v39")
        self.allreduce("v_max_f32", [42], [43], rors=(4, 8))
        a("ds_write_b32 v13, v42 offset:%d" % (L_MAX - L_MISC))
        nxt()
        a("s_waitcnt lgkmcnt(0)")
        a("s_barrier")
        a("ds_read_b128 %s, v14 offset:%d" % (vr(44), L_MAX - L_MISC))
        a("s_waitcnt lgkmcnt(0)")
        a("v_max3_f32 v42, v44, v45, v46")
        a("v_max_f32 v42, v42, v47")
        for r in range(4):
            a("v_sub_f32 v%d, v%d, v42" % (36 + r, 36 + r))
        for r in range(4):
            a("v_mul_f32 v%d, 0x%x, v%d" % (36 + r, LOG2E, 36 + r))
        for r in range(4):
            a("v_exp_f32 v%d, v%d" % (36 + r, 36 + r))
        self.pack(40, 36, 2)
        a("ds_write_b64 v15, %s" % vr(40, 2))
        nxt()
        a("v_add_f32 v36, v36, v37")
        a("v_add_f32 v38, v38, v39")
        a("v_add_f32 v36, v36, v38")
        self.allreduce("v_add_f32", [36], [37], rors=(4, 8))
        a("ds_write_b32 v13, v36 offset:%d" % (L_SUM - L_MISC))
        nxt()
        a("s_waitcnt vmcnt(%d) lgkmcnt(0)" % after("v1"))
        a("s_barrier")
        self.stamp(4)
        a("ds_read_b128 %s, v14 offset:%d" % (vr(44), L_SUM - L_MISC))
        for kg in range(8):
            a("ds_read_b128 %s, v16 offset:%d" % (vr(64 + 4 * kg), kg * 256))

        def vreads(kg):
            step, u = kg >> 1, kg & 1
            T0 = step * 4 + 2 * u
            for d in range(2):
                base = 128 + 8 * kg + 4 * d
                a("ds_read_b64_tr_b16 %s, v%d offset:%d" % (vr(base, 2), 17 + d, T0 * 4096))
                a("ds_read_b64_tr_b16 %s, v%d offset:%d" % (vr(base + 2, 2), 17 + d, (T0 + 1) * 4096))

        def vmfma(kg):
            for d in range(2):
                a("v_mfma_f32_16x16x32_bf16 %s, %s, %s, %s" % (vr(48 + 4 * d), vr(128 + 8 * kg + 4 * d), vr(64 + 4 * kg), "0" if kg == 0 else vr(48 + 4 * d)))
        vreads(0)
        nxt()
        a("s_waitcnt lgkmcnt(12)")
        a("v_add_f32 v44, v44, v45")
        a("v_add_f32 v46, v46, v47")
        a("v_add_f32 v43, v44, v46")
        a("s_lshl_b64 exec, 1, %s" % S_W)
        self.local_store("buffer_store_dwordx2 %s, v19, %s, s81 offen" % (vr(42, 2), q4(R_WS)))
        ops.append("s")
        a("s_mov_b64 exec, -1")
        a("s_waitcnt lgkmcnt(0)")
        for kg in range(1, 4):
            vreads(kg)
        vmfma(0)
        for kg in range(1, 4):
            a("s_waitcnt lgkmcnt(%d)" % (12 - 4 * kg))
            vmfma(kg)
        while st["e"] < 18:
            nxt()
        for step in (2, 3):
            a("s_waitcnt vmcnt(%d)" % after("v%d" % step))
            a("s_barrier")
            if step == 3:
                self.stamp(5)
            vreads(2 * step)
            vreads(2 * step + 1)
            a("s_waitcnt lgkmcnt(4)")
            vmfma(2 * step)
            a("s_waitcnt lgkmcnt(0)")
            vmfma(2 * step + 1)
        a("s_mov_b32 exec_lo, 0x000f000f")
        a("s_mov_b32 exec_hi, 0x000f000f")
        self.pack(56, 48, 4)
        self.local_store("buffer_store_dwordx4 %s, v20, %s, s82 offen" % (vr(56), q4(R_WS)))
        a("s_mov_b64 exec, -1")
        a("s_barrier")
        self.stamp(6)
        a("s_cmp_lg_u32 s96, 0")
        a("s_cbranch_scc1 L_role_gm")
        self.role_w()
        self.setup_g()
        self.role_g()
        self.setup_wm()
        self.role_m()
        for l1, text, l2 in self.deferred:
            a("%s:" % l1)
            a(text)
            a("s_branch %s" % l2)
        self.mload()

    def wn(self, e):
        if e >= self.wsw2:
            return self.wend
        return max(self.winv, self.win - max(0, e - self.wsw + 1))

    def k_setup(self):
        a = self.a
        a("s_mov_b32 s83, 0xffff0000")
        a("s_lshl_b32 s98, %s, 12" % S_W)
        a("s_lshl3_add_u32 s76, %s, %s" % (S_B, S_G))
        a("s_lshl_b32 s76, s76, 7")
        a("s_add_u32 s76, s76, %s" % S_S)
        a("s_lshl2_add_u32 s76, s76, %s" % S_W)
        a("s_addk_i32 s76, 384")
        a("s_lshl_b32 s76, s76, 12")
        a("v_bfe_u32 v1, v0, 2, 2")
        a("v_lshl_add_u32 v1, v1, 4, v3")
        a("v_lshl_add_u32 v1, v1, 2, v4")
        a("v_lshlrev_b32 v2, 4, v1")

    def k_load(self, e):
        a = self.a
        rho, j = e >> 2, e & 3
        if j == 0 and rho > 0:
            a("s_add_u32 s97, s76, %d" % (rho * 131072))
        a("buffer_load_dwordx4 %s, v2, %s, %s offen offset:%d %s" % (vr(64 + 4 * e), q4(R_K), "s76" if rho == 0 else "s97", j * 256, self.nt))

    def setup_common(self, part):
        a = self.a
        if part == 0:
            self.mksrd(R_V, 12, KSIZE['v'])
            self.mksrd(R_WS, P_WS, KSIZE['ws'])
            self.mksrd(R_X, P_X, KSIZE['x'])
            a("v_lshlrev_b32 v1, 1, v3")
            a("v_xor_b32 v1, v1, v7")
            a("v_lshlrev_b32 v1, 4, v1")
            a("v_lshl_add_u32 v5, v3, 8, v1")
            a("v_xor_b32 v6, 0x80, v5")
            a("v_bfe_u32 v1, v0, 2, 2")
            a("v_lshlrev_b32 v9, 8, v4")
            a("v_lshl_add_u32 v9, v3, 6, v9")
            a("v_lshl_add_u32 v9, v1, 4, v9")
            a("v_add_u32 v9, %d, v9" % L_Q)
            a("v_lshlrev_b32 v14, 4, v4")
            a("v_add_u32 v14, %d, v14" % L_MISC)
            a("s_lshl_b32 s77, %s, 2" % S_W)
            a("v_add_u32 v13, s77, v14")
            a("v_lshl_add_u32 v16, v3, 6, v14")
            a("v_add_u32 v16, %d, v16" % (L_P - L_MISC))
            a("v_lshl_add_u32 v15, v1, 9, v16")
            a("s_lshr_b32 s77, %s, 1" % S_W)
            a("s_lshl_b32 s77, s77, 8")
            a("s_and_b32 s78, %s, 1" % S_W)
            a("s_lshl_b32 s78, s78, 3")
            a("s_add_u32 s77, s77, s78")
            a("v_add_u32 v15, s77, v15")
        elif part == 1:
            a("v_lshrrev_b32 v17, 2, v0")
            a("v_and_b32 v18, 7, v17")
            a("s_lshl_b32 s77, %s, 1" % S_W)
            a("v_xor_b32 v18, s77, v18")
            a("v_lshlrev_b32 v18, 5, v18")
            a("v_lshl_add_u32 v17, v17, 8, v18")
            a("v_lshl_add_u32 v17, v4, 3, v17")
            a("v_xor_b32 v18, 32, v17")
            a("v_lshlrev_b32 v19, 8, v4")
            a("s_lshl_b32 s81, %s, 16" % S_G)
            a("s_lshl_b32 s77, %s, 3" % S_I)
            a("s_add_u32 s81, s81, s77")
            a("s_add_u32 s81, s81, %d" % WS_ST)
        else:
            a("v_lshlrev_b32 v20, 13, v4")
            a("v_lshl_add_u32 v20, v3, 8, v20")
            a("s_lshl_b32 s82, %s, 16" % S_G)
            a("s_lshr_b32 s77, %s, 2" % S_S)
            a("s_lshl_b32 s77, s77, 10")
            a("s_add_u32 s82, s82, s77")
            a("s_lshl_b32 s77, %s, 6" % S_B)
            a("s_add_u32 s82, s82, s77")
            a("s_and_b32 s77, %s, 3" % S_S)
            a("s_lshl_b32 s77, s77, 4")
            a("s_add_u32 s82, s82, s77")
            a("s_lshl_b32 s77, %s, 11" % S_W)
            a("s_add_u32 s82, s82, s77")
            a("s_add_u32 s82, s82, %d" % WS_A)
            a("v_and_b32 v12, 1, v3")
            a("v_lshlrev_b32 v1, 1, v12")
            a("v_xor_b32 v1, v1, v4")
            a("v_lshlrev_b32 v11, 4, v1")
            a("v_lshrrev_b32 v10, 2, v0")
            a("s_and_b32 s72, %s, 1" % S_I)
            a("v_lshlrev_b32 v228, 7, v10")
            a("v_lshl_add_u32 v228, v4, 4, v228")
            a("s_lshl_b32 s57, %s, 2" % S_G)
            a("s_add_u32 s57, s57, %s" % S_W)
            a("s_lshl_b32 s57, s57, 5")
            a("s_add_u32 s57, s57, %s" % S_I)
            a("s_lshl_b32 s57, s57, 12")
            a("s_add_u32 s99, s57, 1024")
            a("s_mov_b32 s64, %d" % L_DUMP)

    def setup_wm(self):
        a = self.a
        a("L_su_w:")
        a("s_mov_b32 s96, 0")
        self.mksrd(R_TA, P_WO, KSIZE['wo'])
        self.mksrd(R_TB, P_WD, KSIZE['wd'])
        self.mksrd(R_OUT, P_OUT, KSIZE['out'])
        a("s_mov_b32 s78, 1024")
        a("s_lshl_b32 s79, %s, 19" % S_G)
        a("s_lshl_b32 s77, %s, 6" % S_I)
        a("s_add_u32 s79, s79, s77")
        a("v_lshl_add_u32 v228, v10, 10, v11")
        a("s_lshl_b32 s77, %s, 2" % S_W)
        a("s_add_u32 s77, s77, s72")
        a("s_lshl_b32 s64, s77, 11")
        a("s_add_u32 s64, s64, %d" % L_T1)
        a("s_lshl_b32 s57, s77, 15")
        a("s_add_u32 s57, s57, s79")
        a("s_add_u32 s99, s57, 15360")
        a("s_mov_b32 s72, 1")
        a("v_min_u32 v195, 55, v0")
        a("v_lshlrev_b32 v195, 10, v195")
        a("s_lshl_b32 s56, %s, 4" % S_G)
        a("s_add_u32 s56, s56, %s" % S_I)
        a("s_lshl_b32 s56, s56, 8")
        a("s_add_u32 s56, s56, %d" % WS_B)
        a("s_lshl_b32 s65, %s, 8" % S_G)
        a("s_add_u32 s65, s65, %s" % S_W)
        a("s_lshl_b32 s65, s65, 8")
        a("s_add_u32 s65, s65, %d" % WS_ST)
        a("s_lshl3_add_u32 s66, %s, %s" % (S_G, S_W))
        a("s_lshl_b32 s66, s66, 13")
        a("s_add_u32 s66, s66, %d" % WS_A)
        a("s_add_u32 s67, s66, 4096")
        a("v_and_b32 v1, 7, v0")
        a("v_lshlrev_b32 v1, 3, v1")
        a("v_lshl_add_u32 v21, v3, 6, v1")
        a("v_bfe_u32 v1, v0, 3, 2")
        a("v_lshlrev_b32 v27, 3, v1")
        a("v_bfe_u32 v1, v0, 1, 2")
        a("v_add_u32 v27, v27, v1")
        a("v_lshrrev_b32 v1, 5, v0")
        a("v_lshl_add_u32 v27, v1, 2, v27")
        a("v_and_b32 v1, 1, v0")
        a("v_lshl_add_u32 v27, v1, 5, v27")
        a("v_lshlrev_b32 v27, 10, v27")
        a("s_mul_i32 s58, %s, %d" % (S_W, 7 * 1024))
        a("s_add_u32 s77, s58, %d" % L_T2)
        a("v_lshlrev_b32 v28, 3, v0")
        a("v_add_u32 v28, s77, v28")
        a("s_add_u32 s58, s58, %d" % WS_C)
        a("s_add_u32 s59, s58, 4096")
        a("v_lshrrev_b32 v1, 2, v7")
        a("v_lshlrev_b32 v29, 9, v1")
        a("v_lshl_add_u32 v29, v3, 7, v29")
        a("v_lshl_add_u32 v29, v4, 4, v29")
        a("v_lshlrev_b32 v193, 2, v4")
        a("v_lshl_add_u32 v192, v1, 10, v193")
        a("v_lshl_add_u32 v193, v1, 6, v193")
        a("v_lshl_add_u32 v194, v3, 12, v193")
        a("v_lshrrev_b32 v1, 1, v3")
        a("v_lshlrev_b32 v30, 7, v1")
        a("v_lshl_add_u32 v30, v4, 5, v30")
        a("v_lshl_add_u32 v30, v12, 4, v30")
        a("s_lshl_b32 s77, %s, 8" % S_W)
        a("s_add_u32 s77, s77, %d" % L_RED2)
        a("v_add_u32 v30, s77, v30")
        a("v_lshlrev_b32 v31, 3, v7")
        a("v_add_u32 v31, %d, v31" % L_RED2)
        a("s_branch L_su_wm")
        a("L_su_m:")
        a("s_mov_b32 s96, 2")
        self.mksrd(R_TA, P_WMOD, KSIZE['wmod'])
        a("s_mov_b32 s78, 6144")
        a("s_lshl_b32 s77, %s, 3" % S_G)
        a("s_add_u32 s77, s77, %s" % S_I)
        a("s_sub_u32 s77, s77, 24")
        a("s_lshl_b32 s79, s77, 6")
        a("s_add_u32 s79, s79, 2048")
        a("s_lshl_b32 s56, s77, 8")
        a("s_add_u32 s56, s56, %d" % WS_M2)
        if self.helpm:
            a("s_lshl2_add_u32 s77, %s, s72" % S_W)
            a("s_lshl_b32 s58, s77, 11")
            a("s_add_u32 s58, s58, %d" % L_T1)
            a("s_mul_i32 s66, s77, %d" % (32 * 6144))
            a("s_add_u32 s66, s66, s79")
            a("s_xor_b32 s77, s77, 1")
            a("s_mul_i32 s67, s77, %d" % (32 * 6144))
            a("s_add_u32 s67, s67, s79")
            a("s_mov_b32 s72, 1")
        self.mksrd(R_TB, P_WU, KSIZE['wu'])
        a("s_cmp_eq_u32 %s, %d" % (S_G, self.mg_h))
        a("s_cselect_b32 s%d, 0, %d" % (R_TB + 2, KSIZE['wu']))
        a("s_cmp_gt_u32 %s, %d" % (S_G, self.mg_h))
        a("s_cselect_b32 s77, 1, 0")
        a("s_sub_u32 s65, %s, s77" % S_G)
        a("s_lshl_b32 s65, s65, 9")
        a("s_lshl_b32 s77, %s, 3" % S_S)
        a("s_add_u32 s77, s77, %s" % S_W)
        a("s_add_u32 s77, s77, 4")
        a("s_mul_i32 s77, s77, %d" % (8 * 3584))
        a("s_add_u32 s65, s65, s77")
        a("v_lshrrev_b32 v27, 3, v0")
        a("v_mul_u32_u24 v27, 3584, v27")
        a("v_and_b32 v1, 7, v0")
        a("v_lshl_add_u32 v27, v1, 6, v27")
        a("v_lshrrev_b32 v1, 2, v7")
        a("v_lshlrev_b32 v21, 10, v1")
        a("v_lshl_add_u32 v21, v3, 3, v21")
        a("s_lshl_b32 s77, %s, 8" % S_W)
        a("s_add_u32 s77, s77, %d" % L_SC)
        a("v_add_u32 v21, s77, v21")
        a("L_su_wm:")
        a("s_lshl_b32 s77, %s, 1" % S_W)
        a("s_add_u32 s77, s77, s72")
        a("s_lshl_b32 s80, s77, 12")
        a("s_add_u32 s80, s80, %d" % L_T1)
        a("s_lshl_b32 s75, s78, 6")
        a("s_mul_i32 s77, s77, s75")
        a("s_add_u32 s79, s79, s77")
        a("v_lshlrev_b32 v22, 6, v10")
        a("v_lshl_add_u32 v22, v12, 5, v22")
        a("v_lshl_add_u32 v22, v4, 3, v22")
        a("s_lshl_b32 s77, %s, 13" % S_W)
        a("s_add_u32 s77, s77, %d" % L_T1)
        a("v_add_u32 v22, s77, v22")
        a("v_xor_b32 v23, 32, v22")
        a("v_lshlrev_b32 v24, 2, v7")
        a("v_lshl_add_u32 v24, v3, 7, v24")
        a("s_lshl_b32 s77, %s, 9" % S_W)
        a("s_add_u32 s77, s77, %d" % L_RED)
        a("v_add_u32 v24, s77, v24")
        a("v_lshlrev_b32 v25, 3, v0")
        a("v_add_u32 v25, %d, v25" % L_RED)
        a("v_lshlrev_b32 v26, 2, v0")
        a("s_branch L_su_done")

    def setup_g(self):
        a = self.a
        a("L_su_g:")
        a("s_mov_b32 s96, 1")
        self.mksrd(R_TA, P_WG, KSIZE['wg'])
        self.mksrd(R_TB, P_WU, KSIZE['wu'])
        a("s_mov_b32 s78, 3584")
        a("s_cmp_gt_u32 %s, %d" % (S_G, self.mg_h))
        a("s_cselect_b32 s77, 1, 0")
        a("s_sub_u32 s77, %s, s77" % S_G)
        a("s_lshl_b32 s77, s77, 3")
        a("s_add_u32 s77, s77, %s" % S_I)
        a("s_sub_u32 s77, s77, 16")
        a("s_lshl_b32 s79, s77, 6")
        a("s_lshl_b32 s56, s77, 2")
        a("s_add_u32 s56, s56, %s" % S_W)
        a("s_lshl_b32 s56, s56, 7")
        a("s_add_u32 s56, s56, %d" % WS_C)
        a("s_lshl_b32 s77, s72, 2")
        a("s_add_u32 s77, s77, %s" % S_W)
        a("s_lshl_b32 s80, s77, 12")
        a("s_add_u32 s80, s80, %d" % L_T1)
        a("s_mul_i32 s77, s77, %d" % (64 * 3584))
        a("s_add_u32 s79, s79, s77")
        a("s_mov_b32 s75, %d" % (256 * 3584))
        a("s_lshl4_add_u32 s58, %s, %s" % (S_W, S_S))
        a("s_add_u32 s58, s58, 8")
        a("s_mul_i32 s58, s58, %d" % (8 * 6144))
        a("s_lshl_b32 s77, %s, 9" % S_G)
        a("s_add_u32 s58, s58, s77")
        a("v_lshrrev_b32 v28, 3, v0")
        a("v_mul_u32_u24 v28, 6144, v28")
        a("v_and_b32 v1, 7, v0")
        a("v_lshl_add_u32 v28, v1, 6, v28")
        a("v_lshrrev_b32 v1, 3, v7")
        a("v_lshrrev_b32 v21, 1, v3")
        a("v_cmp_eq_u32 vcc, v1, v21")
        a("v_and_b32 v1, 1, v0")
        a("v_lshlrev_b32 v1, 4, v1")
        a("v_mov_b32 v22, 0x3f80")
        a("v_lshlrev_b32 v1, v1, v22")
        a("v_cndmask_b32 v1, 0, v1, vcc")
        a("v_bfe_u32 v22, v0, 1, 2")
        for j in range(4):
            a("v_cmp_eq_u32 vcc, %d, v22" % j)
            a("v_cndmask_b32 v%d, 0, v1, vcc" % (224 + j))
        a("v_lshlrev_b32 v26, 4, v4")
        a("v_lshl_add_u32 v26, v12, 3, v26")
        a("v_lshl_add_u32 v26, v21, 2, v26")
        a("v_lshl_add_u32 v1, v21, 4, v7")
        a("v_lshlrev_b32 v27, 4, v1")
        a("v_lshl_add_u32 v27, v12, 3, v27")
        a("v_lshrrev_b32 v1, 2, v1")
        a("v_lshlrev_b32 v25, 8, v1")
        a("v_and_b32 v22, 1, v0")
        a("v_lshl_add_u32 v22, v22, 1, v12")
        a("v_lshl_add_u32 v22, v22, 6, v25")
        a("v_bfe_u32 v1, v0, 1, 1")
        a("v_lshl_add_u32 v22, v1, 3, v22")
        a("s_lshl_b32 s77, %s, 4" % S_W)
        a("s_add_u32 s77, s77, %d" % L_H2)
        a("v_add_u32 v22, s77, v22")
        a("v_lshl_add_u32 v25, v4, 4, v25")
        a("v_lshl_add_u32 v21, v12, 12, v25")
        a("v_lshl_add_u32 v25, v12, 3, v25")
        a("v_lshlrev_b32 v23, 6, v3")
        a("v_lshl_add_u32 v23, v4, 4, v23")
        a("v_add_u32 v23, %d, v23" % L_H2)
        a("v_lshlrev_b32 v24, 6, v10")
        a("v_lshl_add_u32 v24, v1, 15, v24")
        a("v_lshl_add_u32 v1, v12, 1, v1")
        a("v_xor_b32 v1, %s, v1" % S_W)
        a("v_lshl_add_u32 v24, v1, 4, v24")
        a("v_and_b32 v1, 1, v0")
        a("v_lshl_add_u32 v24, v1, 3, v24")
        a("v_add_u32 v24, %d, v24" % L_T1)
        a("s_lshl_b32 s77, %s, 6" % S_W)
        a("s_add_u32 s65, s77, %d" % WS_M2)
        a("s_add_u32 s66, s65, 4096")
        a("s_add_u32 s67, s65, 8192")
        for gp in range(4):
            a("s_add_u32 s%d, s77, %d" % (68 + gp, WS_B + gp * 8192))
        a("s_branch L_su_done")

    def gr_wait(self, t):
        a = self.a
        a("v_readfirstlane_b32 s97, v61")
        a("v_and_b32 v2, 7, v0")
        a("v_lshlrev_b32 v2, 7, v2")
        a("s_mov_b32 s98, %d" % WS_GR)
        a("s_mov_b32 s77, 0")
        a("L_gr_retry_%s:" % t)
        a("buffer_load_dword v62, v2, %s, s98 offen sc1" % q4(R_WS))
        a("s_waitcnt vmcnt(0)")
        a("v_cmp_ne_u32 vcc, s97, v62")
        a("s_cbranch_vccz L_gr_ok_%s" % t)
        self.spin_tail("L_gr_retry_%s" % t, "s77")
        a("L_gr_ok_%s:" % t)

    def wm_tr_reads(self, base=96):
        a = self.a
        for tau in range(2):
            for kk in range(4):
                for rd in range(2):
                    a("ds_read_b64_tr_b16 %s, v%d offset:%d" % (vr(base + 16 * tau + 4 * kk + 2 * rd, 2), 22 + tau, (2 * kk + rd) * 1024))
            if tau == 0:
                a("s_waitcnt lgkmcnt(4)")

    def wm_publish(self, r0, r1, done):
        a = self.a
        a("ds_write_b32 v24, v%d" % r0)
        a("ds_write_b32 v24, v%d offset:64" % r1)
        a("s_waitcnt lgkmcnt(0)")
        a("s_barrier")
        self.stamp(7)
        a("s_cmp_lg_u32 %s, 0" % S_W)
        a("s_cbranch_scc1 %s" % done)
        for h in range(4):
            a("ds_read_b64 %s, v25 offset:%d" % (vr(32 + 2 * h, 2), h * 512))
        a("s_waitcnt lgkmcnt(2)")
        a("v_pk_add_f32 v[32:33], v[32:33], v[34:35]")
        a("s_waitcnt lgkmcnt(0)")
        a("v_pk_add_f32 v[36:37], v[36:37], v[38:39]")
        a("v_pk_add_f32 v[32:33], v[32:33], v[36:37]")
        a("v_cvt_pk_bf16_f32 v32, v32, v33")
        a("buffer_store_dword v32, v26, %s, s56 offen sc1" % q4(R_WS))

    def role_w(self):
        a = self.a
        a("s_xor_b32 m0, s64, 0x800")
        a("s_xor_b32 s57, s57, 0x8000")
        a("s_add_u32 s99, s57, 15360")
        a("buffer_load_dwordx4 v10, %s, s57 offen %s lds" % (q4(R_TA), self.ntw))
        a("buffer_load_dwordx4 v10, %s, s99 offen offset:1024 %s lds" % (q4(R_TA), self.ntw))
        a("s_mov_b32 m0, s80")
        a("s_mov_b32 s78, 0")
        self.t_loads(R_TA, 10)

        def loads():
            a("buffer_load_dwordx2 %s, v21, %s, s65 offen sc1" % (vr(50, 2), q4(R_WS)))
            for e in range(8):
                a("buffer_load_dwordx4 %s, v8, %s, %s offen offset:%d sc1" % (vr(64 + 4 * e), q4(R_WS), "s66" if e < 4 else "s67", (e & 3) * 1024))
        loads()
        a("s_waitcnt vmcnt(9)")
        self.wm_tr_reads()
        a("s_branch L_w_in")
        a("L_w_retry:")
        loads()
        a("L_w_in:")
        a("s_waitcnt vmcnt(8)")
        a("v_max_f32_dpp v52, v50, v50 quad_perm:[1,0,3,2] row_mask:0xf bank_mask:0xf")
        a("v_max_f32_dpp v52, v52, v52 quad_perm:[2,3,0,1] row_mask:0xf bank_mask:0xf")
        a("v_max_f32_dpp v52, v52, v52 row_ror:4 row_mask:0xf bank_mask:0xf")
        a("v_sub_f32 v52, v50, v52")
        a("v_mul_f32 v52, 0x%x, v52" % LOG2E)
        a("v_exp_f32 v52, v52")
        a("v_mul_f32 v53, v52, v51")
        a("v_add_f32_dpp v53, v53, v53 quad_perm:[1,0,3,2] row_mask:0xf bank_mask:0xf")
        a("v_add_f32_dpp v53, v53, v53 quad_perm:[2,3,0,1] row_mask:0xf bank_mask:0xf")
        a("v_add_f32_dpp v53, v53, v53 row_ror:4 row_mask:0xf bank_mask:0xf")
        a("v_rcp_f32 v53, v53")
        a("v_mul_f32 v52, v52, v53")
        a("s_waitcnt lgkmcnt(0)")
        for e in range(8):
            kk, rg = e >> 1, e & 1
            a("s_waitcnt vmcnt(%d)" % (7 - e))
            for tau in range(2):
                acc = 32 + 8 * tau + 4 * rg
                a("v_mfma_f32_16x16x32_bf16 %s, %s, %s, %s" % (vr(acc), vr(64 + 4 * e), vr(96 + 16 * tau + 4 * kk), "0" if kk == 0 else vr(acc)))
        for s in range(8):
            for tau in range(2):
                a("%s v%d, v52, v%d row_newbcast:%d row_mask:0xf bank_mask:0xf" % ("v_mul_f32_dpp" if s == 0 else "v_fmac_f32_dpp", 48 + tau, 32 + 8 * tau + s, s))
        a("v_cmp_u_f32 vcc, v48, v49")
        a("s_cbranch_vccz L_w_ok")
        self.spin_tail("L_w_retry", "s78")
        a("L_w_ok:")
        self.wm_publish(48, 49, "L_w_pub_done")
        a("L_w_pub_done:")
        a("s_barrier")
        self.stamp(8)
        a("s_lshl_b32 s77, %s, 1" % S_I)
        a("s_and_b32 s78, %s, 1" % S_W)
        a("s_add_u32 s77, s77, s78")
        a("s_mul_i32 s77, s77, %d" % (56 * 1024))
        a("s_lshl_b32 s78, %s, 7" % S_G)
        a("s_add_u32 s77, s77, s78")
        a("s_cmp_lt_u32 %s, 2" % S_W)
        a("s_cbranch_scc1 L_w_notouch")
        a("buffer_load_dword v1, v195, %s, s77 offen %s" % (q4(R_TB), self.ntw))
        a("L_w_notouch:")
        a("s_cmp_ge_u32 %s, 8" % S_I)
        a("s_cbranch_scc1 L_done")
        self.role_d()

    def role_d(self):
        a = self.a
        MASK = "s83"
        a("s_lshl_b32 s76, %s, 3" % S_G)
        a("s_add_u32 s76, s76, %s" % S_I)
        a("s_lshl_b32 s76, s76, 4")
        a("s_mul_i32 s78, %s, 7" % S_W)
        a("s_mov_b32 s77, %s" % S_I)
        a("s_barrier")
        for k in range(7):
            a("s_cmp_ge_u32 s77, 7")
            a("s_cselect_b32 s77, 0, s77")
            a("s_add_u32 s79, s78, s77")
            a("s_lshl_b32 s80, s79, 10")
            a("s_add_u32 m0, s80, %d" % L_T2)
            a("s_lshl_b32 s79, s79, 16")
            a("s_add_u32 s79, s79, s76")
            a("buffer_load_dwordx4 v27, %s, s79 offen %s lds" % (q4(R_TB), self.ntw))
            a("s_add_u32 s77, s77, 1")
        a("s_cmp_lg_u32 %s, 0" % S_W)
        a("s_cbranch_scc1 L_d_nox")
        a("s_lshr_b32 s78, s76, 6")
        a("s_lshl_b32 s78, s78, 8")
        a("s_and_b32 s77, s76, 63")
        a("s_add_u32 s78, s78, s77")
        a("s_add_u32 s79, s78, %d" % WS_B)
        a("s_add_u32 s80, s79, 16384")
        a("s_add_u32 s81, s78, %d" % WS_M2)
        a("s_add_u32 s82, s81, %d" % (3 * 4096))
        a("buffer_load_dword v42, v192, %s, s76 offen" % q4(R_X))
        self.gr_wait("d")
        a("s_mov_b32 s77, 0")
        a("L_d_x_retry:")
        a("buffer_load_dword v40, v193, %s, s81 offen sc1" % q4(R_WS))
        a("buffer_load_dword v41, v193, %s, s82 offen sc1" % q4(R_WS))
        a("buffer_load_dword v32, v194, %s, s79 offen sc1" % q4(R_WS))
        a("buffer_load_dword v33, v194, %s, s80 offen sc1" % q4(R_WS))
        a("s_waitcnt vmcnt(0)")
        self.unpack(48, 32, 2, MASK)
        a("v_pk_add_f32 v[48:49], v[48:49], v[50:51]")
        self.allreduce("v_add_f32", [48, 49], [50, 51], rors=())
        self.unpack(50, 40, 3, MASK)
        a("v_pk_fma_f32 v[48:49], v[48:49], v[50:51], v[54:55]")
        a("v_pk_add_f32 v[50:51], v[48:49], v[52:53]")
        a("v_cmp_u_f32 vcc, v50, v51")
        a("s_cbranch_vccz L_d_nox")
        self.spin_tail("L_d_x_retry", "s77")
        a("L_d_nox:")
        a("s_waitcnt vmcnt(0)")
        for e in range(7):
            for rd in range(2):
                a("ds_read_b64_tr_b16 %s, v28 offset:%d" % (vr(96 + 4 * e + 2 * rd, 2), e * 1024 + rd * 512))
        a("s_mov_b32 s77, 0")
        a("s_barrier")
        self.stamp(9)
        a("L_d_retry:")
        for u in range(4):
            a("buffer_load_dwordx4 %s, v29, %s, %s offen offset:%d sc1" % (vr(64 + 4 * u), q4(R_WS), "s58" if u < 2 else "s59", (u & 1) * 2048))
        a("s_waitcnt lgkmcnt(0)")
        for e in range(7):
            if e & 1 == 0:
                a("s_waitcnt vmcnt(%d)" % (3 - (e >> 1)))
            acc = 32 + 4 * (e & 1)
            a("v_mfma_f32_16x16x32_bf16 %s, %s, %s, %s" % (vr(acc), vr(96 + 4 * e), vr(64 + 4 * (e >> 1)), "0" if e < 2 else vr(acc)))
        for r in range(4):
            a("v_add_f32_dpp v%d, v%d, v%d row_shl:8 row_mask:0xf bank_mask:0xf" % (44 + r, 36 + r, 32 + r))
        a("v_cmp_u_f32 vcc, v44, v44")
        a("s_and_b32 vcc_lo, vcc_lo, 0x000f000f")
        a("s_and_b32 vcc_hi, vcc_hi, 0x00f000f0")
        a("s_or_b32 s79, vcc_lo, vcc_hi")
        a("s_cbranch_scc0 L_d_ok")
        self.spin_tail("L_d_retry", "s77")
        a("L_d_ok:")
        a("s_mov_b32 exec_lo, 0x000f000f")
        a("s_mov_b32 exec_hi, 0x00f000f0")
        a("ds_write_b128 v30, %s" % vr(44))
        a("s_mov_b64 exec, -1")
        a("s_waitcnt lgkmcnt(0)")
        a("s_barrier")
        self.stamp(10)
        a("s_cmp_lg_u32 %s, 0" % S_W)
        a("s_cbranch_scc1 L_d_epoch")
        for p in range(8):
            a("ds_read_b64 %s, v31 offset:%d" % (vr(64 + 2 * p, 2), p * 128))
        for j in range(4):
            a("s_waitcnt lgkmcnt(%d)" % (6 - 2 * j))
            a("v_pk_add_f32 v[%d:%d], v[%d:%d], v[%d:%d]" % (64 + 4 * j, 65 + 4 * j, 64 + 4 * j, 65 + 4 * j, 66 + 4 * j, 67 + 4 * j))
        a("v_pk_add_f32 v[64:65], v[64:65], v[68:69]")
        a("v_pk_add_f32 v[72:73], v[72:73], v[76:77]")
        a("v_pk_add_f32 v[64:65], v[64:65], v[72:73]")
        a("v_pk_fma_f32 v[64:65], v[64:65], v[52:53], v[48:49]")
        a("v_cvt_pk_bf16_f32 v64, v64, v65")
        a("s_mov_b64 exec, 0xffff")
        a("buffer_store_dword v64, v192, %s, s76 offen" % q4(R_OUT))
        a("s_mov_b64 exec, -1")
        self.stamp(11)
        a("L_done:")
        self.finish()
        a("L_d_epoch:")
        a("s_lshl_b32 s77, s2, 2")
        a("s_add_u32 s77, s77, %s" % S_W)
        a("s_cmp_lg_u32 s77, 1")
        a("s_cbranch_scc1 L_done")
        a("s_mov_b32 s77, %d" % WS_E)
        a("s_mov_b64 exec, 1")
        a("buffer_store_dword v61, v8, %s, s77 offen sc1" % q4(R_WS))
        a("s_mov_b64 exec, -1")
        a("s_branch L_done")

    def role_g(self):
        a = self.a
        MASK = "s83"
        a("L_role_gm:")
        a("s_cmp_eq_u32 s96, 2")
        a("s_cbranch_scc1 L_role_m")
        if self.helpm:
            self.mksrd(R_V, P_WMOD, KSIZE['wmod'])
            a("buffer_load_dword v29, v28, %s, s58 offen offset:2048 %s" % (q4(R_V), self.ntw))
            a("s_barrier")
        a("s_cmp_eq_u32 %s, %d" % (S_G, self.mg_h))
        a("s_cbranch_scc1 L_done")
        a("s_mov_b32 m0, s80")
        self.t_loads(R_TA, 10)
        a("s_add_u32 m0, s80, 32768")
        a("s_xor_b32 s80, s80, 16384")
        a("s_barrier")
        self.t_loads(R_TB, 11)
        a("s_barrier")
        a("s_mov_b32 m0, s80")
        a("s_add_u32 s79, s79, s75")
        self.t_loads(R_TA, 10)
        a("s_add_u32 m0, s80, 32768")
        a("s_lshl_b32 s76, %s, 10" % S_W)
        self.t_loads(R_TB, 11)
        a("buffer_load_dwordx2 %s, v27, %s, s76 offen" % (vr(32, 2), q4(R_X)))
        a("buffer_load_dwordx2 %s, v27, %s, s76 offen offset:512" % (vr(34, 2), q4(R_X)))
        self.gr_wait("g")
        a("s_mov_b32 s79, 0")
        a("s_barrier")
        self.stamp(7)

        def mloads():
            for k, so in enumerate(("s65", "s66", "s67")):
                a("buffer_load_dwordx2 %s, v25, %s, %s offen sc1" % (vr(36 + 4 * k, 2), q4(R_WS), so))
                a("buffer_load_dwordx2 %s, v25, %s, %s offen offset:2048 sc1" % (vr(38 + 4 * k, 2), q4(R_WS), so))

        def loads():
            for e in range(8):
                gp, ac = e >> 1, e & 1
                a("buffer_load_dwordx4 %s, v21, %s, s%d offen offset:%d sc1" % (vr(64 + 4 * e), q4(R_WS), 68 + gp, ac * 2048))

        def mcheck():
            a("v_max3_u32 v1, v36, v37, v38")
            for j in range(39, 47, 2):
                a("v_max3_u32 v1, v1, v%d, v%d" % (j, j + 1))
            a("v_max_u32 v1, v1, v47")
            a("v_cmp_eq_u32 vcc, -1, v1")
        mloads()
        loads()
        for t in range(16):
            for rd in range(2):
                a("ds_read_b64_tr_b16 %s, v24 offset:%d" % (vr(128 + 4 * t + 2 * rd, 2), (2 * t + rd) * 1024))
            if t % 4 == 3:
                a("s_waitcnt lgkmcnt(4)")
        a("s_branch L_g_m_in")
        a("L_g_m_retry:")
        a("s_waitcnt vmcnt(0)")
        mloads()
        loads()
        a("L_g_m_in:")
        a("s_waitcnt vmcnt(8)")
        mcheck()
        a("s_cbranch_vccz L_g_m_ok")
        self.spin_tail("L_g_m_retry", "s79")
        a("L_g_m_ok:")
        self.stamp(11)
        a("s_mov_b32 s79, 0")
        self.unpack(192, 32, 16, MASK)
        for j in range(0, 8, 2):
            a("v_pk_add_f32 v[%d:%d], v[%d:%d], 1.0 op_sel_hi:[1,0]" % (216 + j, 217 + j, 216 + j, 217 + j))
        a("s_branch L_g_in")
        a("L_g_retry:")
        loads()
        a("L_g_in:")
        for e in range(8):
            a("s_waitcnt vmcnt(%d)" % (7 - e))
            acc = 32 + 4 * (e & 1)
            a("v_mfma_f32_16x16x32_bf16 %s, %s, %s, %s" % (vr(acc), vr(224), vr(64 + 4 * e), "0" if e < 2 else vr(acc)))
        a("v_cmp_u_f32 vcc, v32, v36")
        a("s_cbranch_vccz L_g_ok")
        self.spin_tail("L_g_retry", "s79")
        a("L_g_ok:")
        self.stamp(8)
        for j in range(0, 8, 2):
            a("v_pk_fma_f32 v[%d:%d], v[%d:%d], v[%d:%d], v[%d:%d]" % (32 + j, 33 + j, 32 + j, 33 + j, 200 + j, 201 + j, 192 + j, 193 + j))
        a("v_readfirstlane_b32 s78, v32")
        for j in range(8):
            a("v_subrev_f32 v%d, s78, v%d" % (32 + j, 32 + j))
        a("v_pk_add_f32 v[40:41], v[32:33], v[34:35]")
        a("v_pk_mul_f32 v[42:43], v[32:33], v[32:33]")
        a("v_pk_add_f32 v[48:49], v[36:37], v[38:39]")
        a("v_pk_fma_f32 v[42:43], v[34:35], v[34:35], v[42:43]")
        a("v_pk_add_f32 v[40:41], v[40:41], v[48:49]")
        a("v_pk_fma_f32 v[42:43], v[36:37], v[36:37], v[42:43]")
        a("v_add_f32 v40, v40, v41")
        a("v_pk_fma_f32 v[42:43], v[38:39], v[38:39], v[42:43]")
        a("v_add_f32 v41, v42, v43")
        self.allreduce("v_add_f32", [40, 41], [42, 43])
        a("v_mul_f32 v40, 0x3b000000, v40")
        a("v_mul_f32 v41, 0x3b000000, v41")
        a("v_fma_f32 v41, -v40, v40, v41")
        a("v_max_f32 v41, 0, v41")
        a("v_add_f32 v41, 0x%x, v41" % EPS)
        a("v_rsq_f32 v42, v41")
        a("v_mul_f32 v40, -v40, v42")
        for j in range(0, 8, 2):
            a("v_pk_fma_f32 v[%d:%d], v[%d:%d], v[42:43], v[40:41] op_sel_hi:[1,0,0]" % (32 + j, 33 + j, 32 + j, 33 + j))
        for j in range(0, 8, 2):
            a("v_pk_fma_f32 v[%d:%d], v[%d:%d], v[%d:%d], v[%d:%d]" % (32 + j, 33 + j, 32 + j, 33 + j, 216 + j, 217 + j, 208 + j, 209 + j))
        self.pack(40, 32, 4)
        a("ds_write_b64 v22, v[40:41]")
        a("ds_write_b64 v22, v[42:43] offset:2048")
        a("s_waitcnt lgkmcnt(0)")
        a("s_barrier")
        self.stamp(9)
        for t in range(12):
            a("ds_read_b128 %s, v23 offset:%d" % (vr(64 + 4 * t), t * 256))
        for t in range(16):
            if t < 4:
                a("s_waitcnt lgkmcnt(11)")
                a("ds_read_b128 %s, v23 offset:%d" % (vr(64 + 4 * (12 + t)), (12 + t) * 256))
            else:
                a("s_waitcnt lgkmcnt(%d)" % (15 - t))
            a("v_mfma_f32_16x16x32_bf16 %s, %s, %s, %s" % (vr(32), vr(128 + 4 * t), vr(64 + 4 * t), "0" if t == 0 else vr(32)))
        a("v_permlane32_swap_b32 v32, v34")
        a("v_permlane32_swap_b32 v33, v35")
        a("v_mul_f32 v32, 0x%x, v32" % NLOG2E)
        a("v_mul_f32 v33, 0x%x, v33" % NLOG2E)
        a("v_exp_f32 v32, v32")
        a("v_exp_f32 v33, v33")
        a("v_add_f32 v32, 1.0, v32")
        a("v_add_f32 v33, 1.0, v33")
        a("v_rcp_f32 v32, v32")
        a("v_rcp_f32 v33, v33")
        a("v_mul_f32 v32, v32, v34")
        a("v_mul_f32 v33, v33, v35")
        a("s_mov_b32 exec_lo, 0x000f000f")
        a("s_mov_b32 exec_hi, 0x000f000f")
        a("v_cvt_pk_bf16_f32 v32, v32, v33")
        a("buffer_store_dword v32, v26, %s, s56 offen sc1" % q4(R_WS))
        a("s_mov_b64 exec, -1")
        self.stamp(10)
        self.finish()

    def role_m(self):
        a = self.a
        a("L_role_m:")
        if self.helpm:
            for k, so in enumerate(("s66", "s67")):
                a("s_xor_b32 m0, s58, %d" % (k * 0x800))
                a("s_add_u32 s77, %s, s74" % so)
                a("buffer_load_dwordx4 v10, %s, %s offen %s lds" % (q4(R_TA), so, self.ntw))
                a("buffer_load_dwordx4 v10, %s, s77 offen offset:1024 %s lds" % (q4(R_TA), self.ntw))
                if k == 0:
                    a("s_barrier")
            a("s_mov_b32 m0, s80")
            self.t_loads(R_TA, 10)
        else:
            a("s_mov_b32 m0, s80")
            self.t_loads(R_TA, 10)
            a("s_add_u32 s79, s79, s75")
            a("s_xor_b32 m0, s80, 0x1000")
            a("s_barrier")
            self.t_loads(R_TA, 10)
        if self.helpg:
            a("s_barrier")
            a("buffer_load_dword v1, v27, %s, s65 offen %s" % (q4(R_TB), self.ntw))
        for kk in range(4):
            a("ds_read2_b64 %s, v21 offset0:%d offset1:%d" % (vr(64 + 4 * kk), 8 * kk, 8 * kk + 4))
        a("s_waitcnt vmcnt(%d) lgkmcnt(0)" % (1 if self.helpg else 0))
        self.wm_tr_reads()
        a("s_waitcnt lgkmcnt(0)")
        for kk in range(4):
            for tau in range(2):
                acc = 32 + 4 * tau
                a("v_mfma_f32_16x16x32_bf16 %s, %s, %s, %s" % (vr(acc), vr(64 + 4 * kk), vr(96 + 16 * tau + 4 * kk), "0" if kk == 0 else vr(acc)))
        self.wm_publish(32, 36, "L_done")
        self.stamp(8)
        self.finish()

    def silu8(self, src, dst):
        a = self.a
        self.unpack(40, src, 4, "s83")
        for j in range(8):
            a("v_mul_f32 v%d, 0x%x, v%d" % (48 + j, NLOG2E, 40 + j))
        for j in range(8):
            a("v_exp_f32 v%d, v%d" % (48 + j, 48 + j))
        for j in range(8):
            a("v_add_f32 v%d, 1.0, v%d" % (48 + j, 48 + j))
        for j in range(8):
            a("v_rcp_f32 v%d, v%d" % (48 + j, 48 + j))
        for j in range(8):
            a("v_mul_f32 v%d, v%d, v%d" % (48 + j, 48 + j, 40 + j))
        self.pack(dst, 48, 4)

    def wq_loads(self, e0, e1):
        a = self.a
        a("s_mov_b32 s74, %d" % (65536 - 1024))
        for kk in range(e0 // 4, e1 // 4):
            a("s_add_u32 m0, s80, %d" % (kk * 4096))
            for e in range(4):
                a("buffer_load_dwordx4 v9, %s, s81 offen offset:%d %s lds" % (q4(R_TB), e * 1024, self.nt))
                if e < 3:
                    a("s_add_u32 s81, s81, s74")
                elif kk < 3:
                    a("s_add_u32 s81, s81, %d" % (65536 + 3072))
                if 4 * kk + e >= 8:
                    a("s_waitcnt vmcnt(7)")

    def mload(self):
        a = self.a
        MASK = "s83"
        a("L_qcu:")
        if self.stamps:
            a("s_mov_b32 s%d, s100" % STAMP0)
            for k in range(1, 12):
                a("s_mov_b32 s%d, 0" % (STAMP0 + k))
        self.mksrd(R_WS, P_WS, KSIZE['ws'])
        a("s_mov_b32 s77, %d" % WS_E)
        a("v_mov_b32 v14, 0")
        a("buffer_load_dword v15, v14, %s, s77 offen sc1" % q4(R_WS))
        a("s_mov_b32 s83, 0xffff0000")
        a("v_add_u32 v13, s82, v8")
        a("v_add_u32 v13, %d, v13" % L_SC)
        a("v_and_b32 v1, 7, v0")
        a("v_lshlrev_b32 v9, 1, v3")
        a("v_xor_b32 v1, v1, v9")
        a("v_lshrrev_b32 v9, 3, v0")
        a("v_lshlrev_b32 v9, 13, v9")
        a("v_lshl_add_u32 v9, v1, 4, v9")
        a("s_add_u32 s81, s82, %s" % S_G)
        a("s_lshl3_add_u32 s81, s81, %s" % S_S)
        a("s_lshl_b32 s81, s81, 7")
        a("s_cmp_lt_u32 %s, 4" % S_S)
        a("s_cbranch_scc1 L_mload")
        for so, sr, k in (("s79", R_TB, 8192), ("s75", R_K, 1024)):
            a("s_add_u32 %s, %s, %d" % (so, so, 368 * k))
            a("buffer_load_dwordx4 %s, v8, %s, %s offen" % (vr(128), q4(sr), so))
            a("s_add_u32 %s, %s, %d" % (so, so, 16 * k))
            a("buffer_load_dwordx4 %s, v8, %s, %s offen" % (vr(128), q4(sr), so))
        a("s_lshl_b32 s80, %s, 14" % S_W)
        a("s_add_u32 s80, s80, %d" % L_WQ)
        a("s_waitcnt vmcnt(6)")
        self.silu8(24, 24)
        a("ds_write_b128 v13, %s" % vr(24))
        a("s_waitcnt vmcnt(0)")
        self.wq_loads(0, self.wqe)
        a("s_branch L_qload")
        a("L_mload:")
        self.mksrd(R_X, P_X, KSIZE['x'])
        a("buffer_load_dwordx4 %s, v8, %s, s82 offen" % (vr(28), q4(R_X)))
        a("v_and_b32 v12, 1, v3")
        a("v_lshlrev_b32 v1, 1, v12")
        a("v_xor_b32 v1, v1, v4")
        a("v_lshrrev_b32 v11, 2, v0")
        a("v_mul_u32_u24 v10, 6144, v11")
        a("v_lshl_add_u32 v10, v1, 4, v10")
        a("s_lshl_b32 s80, %s, 13" % S_W)
        a("s_add_u32 m0, s80, %d" % L_M)
        a("s_lshl2_add_u32 s78, %s, %s" % (S_G, S_S))
        a("s_lshl_b32 s78, s78, 6")
        a("s_mul_i32 s79, %s, %d" % (S_W, 128 * 6144))
        a("s_add_u32 s79, s79, s78")
        a("s_mov_b32 s74, %d" % (16 * 6144 - 1024))
        self.t_loads(R_TA, 10)
        a("s_add_u32 m0, s80, %d" % (L_M + 4096))
        a("s_add_u32 s79, s79, %d" % (64 * 6144))
        a("s_waitcnt vmcnt(7)")
        self.silu8(24, 24)
        a("ds_write_b128 v13, %s" % vr(24))
        self.t_loads(R_TA, 10)
        a("s_waitcnt vmcnt(8)")
        self.unpack(40, 28, 4, MASK)
        a("v_pk_add_f32 v[48:49], v[40:41], v[42:43]")
        a("v_pk_add_f32 v[50:51], v[44:45], v[46:47]")
        a("v_pk_add_f32 v[48:49], v[48:49], v[50:51]")
        a("v_add_f32 v48, v48, v49")
        self.allreduce("v_add_f32", [48], [49])
        a("v_mul_f32 v48, 0x3b000000, v48")
        for j in range(8):
            a("v_sub_f32 v%d, v%d, v48" % (52 + j, 40 + j))
        a("v_mul_f32 v49, v52, v52")
        for j in range(1, 8):
            a("v_fmac_f32 v49, v%d, v%d" % (52 + j, 52 + j))
        self.allreduce("v_add_f32", [49], [50])
        a("v_mul_f32 v49, 0x3b000000, v49")
        self.rnd(48, 1, 50, MASK)
        a("v_add_f32 v49, 0x%x, v49" % EPS)
        self.rnd(48, 1, 50, MASK)
        a("v_sqrt_f32 v49, v49")
        self.rnd(48, 1, 50, MASK)
        a("v_rcp_f32 v49, v49")
        for j in range(8):
            a("v_sub_f32 v%d, v%d, v48" % (40 + j, 40 + j))
        self.rnd(40, 4, 52, MASK)
        for j in range(8):
            a("v_mul_f32 v%d, v%d, v49" % (40 + j, 40 + j))
        self.pack(28, 40, 4)
        a("ds_write_b128 v13, %s offset:%d" % (vr(28), L_N - L_SC))
        a("v_lshrrev_b32 v1, 2, v7")
        a("v_lshlrev_b32 v21, 10, v1")
        a("v_lshl_add_u32 v21, v3, 3, v21")
        a("s_lshl_b32 s77, %s, 8" % S_W)
        a("s_add_u32 s77, s77, %d" % L_SC)
        a("v_add_u32 v21, s77, v21")
        a("v_lshlrev_b32 v22, 6, v11")
        a("v_lshl_add_u32 v22, v12, 5, v22")
        a("v_lshl_add_u32 v22, v4, 3, v22")
        a("s_lshl_b32 s77, %s, 13" % S_W)
        a("s_add_u32 s77, s77, %d" % L_M)
        a("v_add_u32 v22, s77, v22")
        a("v_xor_b32 v23, 32, v22")
        a("v_lshlrev_b32 v20, 2, v7")
        a("v_lshl_add_u32 v20, v3, 7, v20")
        a("s_lshl_b32 s77, %s, 9" % S_W)
        a("s_add_u32 s77, s77, %d" % L_RED)
        a("v_add_u32 v20, s77, v20")
        a("s_waitcnt lgkmcnt(0)")
        a("s_barrier")
        for kk in range(4):
            a("ds_read2_b64 %s, v21 offset0:%d offset1:%d" % (vr(40 + 4 * kk), 8 * kk, 8 * kk + 4))
        a("s_lshl_b32 s80, %s, 14" % S_W)
        a("s_add_u32 s80, s80, %d" % L_WQ)
        self.wq_loads(0, self.wqe)
        a("s_waitcnt vmcnt(%d) lgkmcnt(0)" % self.wqe)
        self.stamp(7)
        self.wm_tr_reads(128)
        for tau in range(2):
            a("s_waitcnt lgkmcnt(%d)" % (8 - 8 * tau))
            for kk in range(4):
                acc = 32 + 4 * tau
                a("v_mfma_f32_16x16x32_bf16 %s, %s, %s, %s" % (vr(acc), vr(40 + 4 * kk), vr(128 + 16 * tau + 4 * kk), "0" if kk == 0 else vr(acc)))
        a("ds_write_b32 v20, v32")
        a("ds_write_b32 v20, v36 offset:64")
        a("s_waitcnt lgkmcnt(0)")
        a("s_barrier")
        a("s_barrier")
        a("L_qload:")
        self.wq_loads(self.wqe, 16)
        a("v_lshrrev_b32 v1, 2, v7")
        a("v_lshlrev_b32 v16, 9, v1")
        a("v_lshl_add_u32 v16, v3, 6, v16")
        a("v_lshl_add_u32 v16, v4, 4, v16")
        a("s_lshl_b32 s56, %s, 11" % S_W)
        a("s_add_u32 s56, s56, %d" % WS_H)
        a("s_add_u32 s57, s56, 8192")

        def h_loads():
            for e in range(4):
                a("buffer_load_dwordx4 %s, v16, %s, %s offen offset:%d sc1" % (vr(40 + 4 * e), q4(R_WS), "s56" if e < 2 else "s57", (e & 1) * 256))
        a("v_lshl_add_u32 v18, v4, 2, v1")
        a("v_lshl_add_u32 v18, v18, 2, v3")
        a("v_lshlrev_b32 v18, 4, v18")
        a("s_add_u32 s77, s82, %d" % L_N)
        a("v_add_u32 v18, s77, v18")
        a("v_lshrrev_b32 v36, 2, v0")
        a("v_lshlrev_b32 v36, 7, v36")
        a("v_bfe_u32 v1, v0, 3, 2")
        a("v_lshl_add_u32 v36, v1, 5, v36")
        a("v_lshl_add_u32 v36, v4, 3, v36")
        a("v_add_u32 v36, s80, v36")
        for tau in range(1, 4):
            a("v_xor_b32 v%d, %d, v36" % (36 + tau, 32 * tau))
        self.k_setup()
        a("s_mov_b32 s79, 0")
        a("s_waitcnt vmcnt(%d)" % self.hw)
        h_loads()
        a("s_waitcnt vmcnt(4)")
        a("v_readfirstlane_b32 s73, v15")
        a("s_mul_i32 s73, s73, %d" % LCG_A)
        a("s_add_u32 s73, s73, %d" % LCG_C)
        self.stamp(8)
        for tau in range(4):
            for kk in range(4):
                for rd in range(2):
                    a("ds_read_b64_tr_b16 %s, v%d offset:%d" % (vr(128 + 16 * tau + 4 * kk + 2 * rd, 2), 36 + tau, kk * 4096 + rd * 2048))
            a("s_waitcnt lgkmcnt(4)")
        a("s_branch L_h_in")
        a("L_h_retry:")
        h_loads()
        a("L_h_in:")
        a("s_waitcnt vmcnt(0) lgkmcnt(0)")
        a("v_min3_u32 v1, v41, v43, v45")
        a("v_max3_u32 v6, v41, v43, v45")
        a("v_min3_u32 v1, v1, v47, v49")
        a("v_max3_u32 v6, v6, v47, v49")
        a("v_min3_u32 v1, v1, v51, v53")
        a("v_max3_u32 v6, v6, v51, v53")
        a("v_min3_u32 v1, v1, v55, s73")
        a("v_max3_u32 v6, v6, v55, s73")
        a("v_cmp_ne_u32 vcc, v1, v6")
        a("s_cbranch_vccz L_h_ok")
        self.spin_tail("L_h_retry", "s79")
        a("L_h_ok:")
        self.stamp(9)
        for e in range(self.kearly):
            self.k_load(e)
        for j in range(8):
            a("v_and_b32 v%d, %s, v%d" % (41 + 2 * j, MASK, 40 + 2 * j))
            a("v_lshlrev_b32 v%d, 16, v%d" % (40 + 2 * j, 40 + 2 * j))
        for j in range(0, 8, 2):
            a("v_pk_add_f32 v[%d:%d], v[%d:%d], v[%d:%d]" % (40 + j, 41 + j, 40 + j, 41 + j, 48 + j, 49 + j))
        self.pack(48, 40, 4)
        for rho in range(4):
            if rho:
                for r in range(4):
                    a("v_mov_b32_dpp v%d, v%d row_ror:%d row_mask:0xf bank_mask:0xf" % (48 + 4 * rho + r, 48 + r, 4 * rho))
        for rho in range(4):
            for tau in range(4):
                kk = (tau - rho) & 3
                a("v_mfma_f32_16x16x32_bf16 %s, %s, %s, %s" % (vr(192 + 4 * tau), vr(128 + 16 * tau + 4 * kk), vr(48 + 4 * rho), "0" if rho == 0 else vr(192 + 4 * tau)))
        for tau in range(4):
            a("s_mov_b32 exec_lo, 0x%x" % (0x000f000f << (4 * tau)))
            a("s_mov_b32 exec_hi, 0x%x" % (0x000f000f << (4 * tau)))
            a("ds_write_b128 v18, %s" % vr(192 + 4 * tau))
        a("s_mov_b64 exec, -1")
        a("s_waitcnt lgkmcnt(0)")
        a("s_barrier")
        self.stamp(10)
        a("s_barrier")
        a("s_branch L_stream")

    def front_wave(self):
        a = self.a
        MASK = "s83"
        a("L_front:")
        a("s_setprio 3")
        a("s_mov_b32 s83, 0xffff0000")
        for j in range(4):
            a("v_mov_b32 v%d, -1" % (32 + j))
        a("v_mov_b32 v13, 0")
        a("s_mov_b32 s80, %d" % WS_E)
        a("s_lshl_b32 s62, %s, 16" % S_G)
        a("s_lshl_b32 s77, %s, 10" % S_I)
        a("s_add_u32 s82, s62, s77")
        a("s_add_u32 s82, s82, %d" % WS_A)
        a("s_add_u32 s78, s62, %d" % (WS_A + 24 * 1024))
        a("s_lshl_b32 s56, %s, 12" % S_G)
        a("s_add_u32 s57, s56, %d" % ((WS_B - 13 * 1024) & 0xffffffff))
        a("s_cmp_ge_u32 %s, 13" % S_I)
        a("s_cselect_b32 s78, s57, s78")
        a("s_add_u32 s57, s56, %d" % (WS_C - 17 * 1024))
        a("s_cmp_ge_u32 %s, 17" % S_I)
        a("s_cselect_b32 s78, s57, s78")
        a("s_lshl_b32 s56, %s, 11" % S_G)
        a("s_add_u32 s57, s56, %d" % (WS_M2 - 21 * 1024))
        a("s_cmp_ge_u32 %s, 21" % S_I)
        a("s_cselect_b32 s78, s57, s78")
        a("s_cmp_ge_u32 %s, 23" % S_I)
        a("s_cselect_b32 s78, 0x40000000, s78")
        a("s_add_u32 s78, s78, s77")
        a("s_mov_b32 s%d, %d" % (R_WS + 2, KSIZE['ws']))
        a("s_mov_b32 s%d, 0x00020000" % (R_WS + 3))
        a("s_waitcnt lgkmcnt(0)")
        a("s_mov_b64 s[%d:%d], s[%d:%d]" % (R_WS, R_WS + 1, P_WS, P_WS + 1))
        a("buffer_load_dword v15, v13, %s, s80 offen sc1" % q4(R_WS))
        a("s_cmp_lg_u32 s96, 0")
        a("s_cbranch_scc1 L_f_noclr")
        a("buffer_store_dwordx4 %s, v8, %s, s82 offen sc1" % (vr(32), q4(R_WS)))
        a("buffer_store_dwordx4 %s, v8, %s, s78 offen sc1" % (vr(32), q4(R_WS)))
        a("L_f_noclr:")
        if self.stamps:
            a("s_mov_b32 s%d, s100" % STAMP0)
            for k in range(1, 12):
                a("s_mov_b32 s%d, 0" % (STAMP0 + k))
        a("s_getreg_b32 s72, hwreg(HW_REG_XCC_ID, 0, 4)")
        if self.force_remote:
            a("s_and_b32 s72, %s, 15" % S_I)
        a("s_lshl_b32 s60, %s, 8" % S_G)
        a("s_add_u32 s60, s60, %d" % WS_IDC)
        a("s_lshl2_add_u32 s77, %s, s60" % S_I)
        a("s_lshl_b32 s59, %s, 12" % S_G)
        a("s_add_u32 s59, s59, %d" % WS_IDR)
        a("s_lshl_b32 s76, %s, 7" % S_I)
        a("s_add_u32 s76, s76, s59")
        a("v_and_b32 v19, 31, v0")
        a("v_lshlrev_b32 v20, 7, v19")
        a("v_lshlrev_b32 v19, 2, v19")
        a("v_add_u32 v17, %d, v8" % L_Q)
        a("s_add_u32 s62, s62, %d" % WS_Q)
        a("s_waitcnt vmcnt(0)")
        a("v_readfirstlane_b32 s73, v15")
        a("s_mul_i32 s73, s73, %d" % LCG_A)
        a("s_add_u32 s73, s73, %d" % LCG_C)
        a("s_xor_b32 s72, s72, s73")
        a("v_mov_b32 v22, s72")
        a("v_mov_b32 v25, s73")
        a("s_mov_b64 exec, 1")
        a("buffer_store_dword v22, v13, %s, s77 offen" % q4(R_WS))
        a("buffer_store_dword v22, v13, %s, s76 offen sc1" % q4(R_WS))
        a("s_mov_b64 exec, -1")
        self.stamp(4)
        a("s_cmp_lg_u32 s96, 0")
        a("s_cbranch_scc1 L_f_qcu")
        if self.warm:
            a("s_mov_b32 exec_lo, 0x01010101")
            a("s_mov_b32 exec_hi, 0x01010101")
            a("buffer_load_dword v14, v8, %s, s82 offen sc1" % q4(R_WS))
            a("s_cmp_lt_u32 %s, 13" % S_I)
            a("s_cselect_b32 s78, s78, 0x40000000")
            a("buffer_load_dword v14, v8, %s, s78 offen sc1" % q4(R_WS))
            a("s_mov_b64 exec, -1")
        a("L_f_ids:")
        a("s_mov_b32 s79, 0")
        a("s_mov_b32 s58, 1")
        a("L_id_again:")
        a("buffer_load_dword v23, v19, %s, s60 offen sc1" % q4(R_WS))
        a("s_waitcnt vmcnt(0)")
        a("v_cmp_ne_u32 vcc, s72, v23")
        a("s_cbranch_vccnz L_id_slow")
        a("L_id_ok:")
        self.stamp(5)
        self.count(8, "s79")
        a("s_cmp_lg_u32 s96, 0")
        a("s_cbranch_scc1 L_f_qpub")
        a("s_cmp_lg_u32 %s, 0" % S_I)
        a("s_cbranch_scc1 L_f_nogr")
        a("s_lshl_b32 s77, %s, 7" % S_G)
        a("s_add_u32 s77, s77, %d" % WS_GR)
        a("s_mov_b64 exec, 1")
        a("buffer_store_dword v25, v13, %s, s77 offen sc1" % q4(R_WS))
        a("s_mov_b64 exec, -1")
        a("L_f_nogr:")
        if self.qsleep:
            a("s_sleep %d" % self.qsleep)
        a("L_f_gather:")
        a("s_lshl_b32 s77, %s, 10" % S_B)
        a("s_add_u32 s62, s62, s77")
        a("s_mov_b32 s79, 0")

        def q_load():
            a("buffer_load_dwordx4 %s, v8, %s, s62 offen sc1" % (vr(28), q4(R_WS)))
        for _ in range(self.qdeep - 1):
            q_load()
            a("s_sleep %d" % (2 * self.half // self.qdeep))
        a("L_q_retry:")
        q_load()
        a("s_waitcnt vmcnt(%d)" % (self.qdeep - 1))
        a("v_max3_u32 v1, v28, v29, v30")
        a("v_max_u32 v1, v1, v31")
        a("v_cmp_eq_u32 vcc, -1, v1")
        a("s_cbranch_vccz L_q_ok")
        self.spin_tail("L_q_retry", "s79")
        a("L_q_ok:")
        self.count(9, "s79")
        a("ds_write_b128 v17, %s" % vr(28))
        a("v_mov_b32 v24, s58")
        a("v_mov_b32 v1, %d" % L_LOC)
        a("ds_write_b64 v1, v[24:25]")
        a("s_waitcnt %slgkmcnt(0)" % ("" if not self.exp else "vmcnt(0) "))
        self.stamp(6)
        a("s_barrier")
        self.finish()
        a("L_id_slow:")
        a("s_sleep 4")
        a("s_add_u32 s79, s79, 1")
        a("s_cmp_lt_u32 s79, %d" % self.idmax)
        a("s_cbranch_scc1 L_id_again")
        a("L_id_retry:")
        a("buffer_load_dword v23, v20, %s, s59 offen sc1" % q4(R_WS))
        a("s_waitcnt vmcnt(0)")
        a("v_xor_b32 v1, s73, v23")
        a("v_cmp_lt_u32 vcc, 15, v1")
        a("s_cbranch_vccz L_id_all")
        self.spin_tail("L_id_retry", "s79")
        a("L_id_all:")
        a("v_cmp_ne_u32 vcc, s72, v23")
        a("s_cbranch_vccz L_id_ok")
        a("s_mov_b32 s58, 0")
        a("s_branch L_id_ok")
        a("L_f_qpub:")
        a("v_add_u32 v16, %d, v8" % L_N)
        a("v_lshlrev_b32 v18, 3, v7")
        a("v_lshl_add_u32 v18, v3, 10, v18")
        a("s_lshl_b32 s77, %s, 7" % S_S)
        a("s_add_u32 s77, s77, s62")
        a("s_cmp_eq_u32 s58, 0")
        a("s_barrier")
        for w in range(4):
            a("ds_read_b128 %s, v16 offset:%d" % (vr(64 + 4 * w), w * 1024))
        a("s_waitcnt lgkmcnt(2)")
        a("v_pk_add_f32 v[64:65], v[64:65], v[68:69]")
        a("v_pk_add_f32 v[66:67], v[66:67], v[70:71]")
        a("s_waitcnt lgkmcnt(0)")
        a("v_pk_add_f32 v[72:73], v[72:73], v[76:77]")
        a("v_pk_add_f32 v[74:75], v[74:75], v[78:79]")
        a("v_pk_add_f32 v[64:65], v[64:65], v[72:73]")
        a("v_pk_add_f32 v[66:67], v[66:67], v[74:75]")
        self.pack(26, 64, 2)
        a("s_cbranch_scc1 L_qp_remote")
        a("buffer_store_dwordx2 v[26:27], v18, %s, s77 offen" % q4(R_WS))
        a("L_qp_done:")
        a("s_barrier")
        self.stamp(3)
        a("s_branch L_f_gather")
        a("L_qp_remote:")
        a("buffer_store_dwordx2 v[26:27], v18, %s, s77 offen sc1" % q4(R_WS))
        a("s_branch L_qp_done")
        a("L_f_qcu:")
        a("s_cmp_ge_u32 %s, 4" % S_S)
        a("s_cbranch_scc1 L_f_ids")
        a("v_lshrrev_b32 v1, 3, v0")
        a("v_and_b32 v18, 1, v0")
        a("v_lshl_add_u32 v1, v1, 1, v18")
        a("v_bfe_u32 v21, v0, 1, 2")
        a("v_lshlrev_b32 v16, 3, v1")
        a("v_lshl_add_u32 v16, v21, 7, v16")
        a("v_add_u32 v16, %d, v16" % L_RED)
        a("v_lshlrev_b32 v18, 2, v1")
        a("v_lshl_add_u32 v18, v21, 10, v18")
        a("s_lshl2_add_u32 s61, %s, %s" % (S_G, S_S))
        a("s_and_b32 s77, s61, 15")
        a("s_lshl_b32 s77, s77, 6")
        a("s_add_u32 s77, s77, %d" % L_N)
        a("v_add_u32 v18, s77, v18")
        a("v_lshlrev_b32 v21, 3, v0")
        a("s_lshl_b32 s61, s61, 9")
        a("s_add_u32 s61, s61, %d" % WS_H)
        a("s_barrier")
        a("ds_read_b32 v26, v18")
        a("s_waitcnt lgkmcnt(0)")
        self.unpack(48, 26, 1, MASK)
        self.stamp(1)
        a("s_cmp_lt_u32 %s, 4" % S_G)
        a("s_barrier")
        for h in range(4):
            a("ds_read_b64 %s, v16 offset:%d" % (vr(64 + 2 * h, 2), h * 512))
        a("s_waitcnt lgkmcnt(2)")
        a("v_pk_add_f32 v[64:65], v[64:65], v[66:67]")
        a("s_waitcnt lgkmcnt(0)")
        a("v_pk_add_f32 v[68:69], v[68:69], v[70:71]")
        a("v_pk_add_f32 v[64:65], v[64:65], v[68:69]")
        a("s_cbranch_scc1 L_f_h_sa")
        self.rnd(64, 1, 40, MASK)
        a("v_pk_add_f32 v[64:65], v[64:65], 1.0 op_sel_hi:[1,0]")
        self.rnd(64, 1, 40, MASK)
        a("v_pk_mul_f32 v[64:65], v[64:65], v[48:49]")
        a("L_f_h_sa:")
        a("v_cvt_pk_bf16_f32 v24, v64, v65")
        a("buffer_store_dwordx2 v[24:25], v21, %s, s61 offen sc1" % q4(R_WS))
        a("s_barrier")
        self.stamp(2)
        a("s_branch L_f_ids")

    def stamps_out(self):
        a = self.a
        a("L_stamps:")
        a("s_waitcnt vmcnt(0)")
        a("s_lshl_b32 s76, s2, 3")
        a("s_add_u32 s76, s76, %s" % S_W)
        a("s_lshl_b32 s76, s76, 6")
        a("s_add_u32 s76, s76, %d" % WS_STAMP)
        a("v_mov_b32 v1, 0")
        for k in range(12):
            a("v_writelane_b32 v1, s%d, %d" % (STAMP0 + k, k))
        a("v_lshlrev_b32 v2, 2, v0")
        a("s_mov_b64 exec, 0xffff")
        a("buffer_store_dword v1, v2, %s, s76 offen sc1" % q4(R_WS))
        if self.pop:
            a("s_mov_b64 exec, -1")
            a("s_cmp_lg_u32 s76, %d" % (WS_STAMP + 3 * 64))
            a("s_cbranch_scc1 L_exit")
            a("L_pw:")
            a("s_memrealtime s[100:101]")
            a("s_waitcnt lgkmcnt(0)")
            a("s_sub_u32 s77, s100, s%d" % STAMP0)
            a("s_cmp_lt_u32 s77, 6000")
            a("s_cbranch_scc1 L_pw")
            a("v_lshlrev_b32 v2, 9, v0")
            for j in range(4):
                a("s_mov_b32 s77, %d" % (WS_STAMP + j * 32768))
                a("buffer_load_dword v%d, v2, %s, s77 offen sc1" % (10 + j, q4(R_WS)))
                a("buffer_load_dword v%d, v2, %s, s77 offen offset:%d sc1" % (14 + j, q4(R_WS), self.pwave * 64 + self.pk * 4))
            a("s_waitcnt vmcnt(0)")
            a("s_sub_u32 s78, s%d, 2000" % STAMP0)
            for j in range(8):
                a("v_subrev_u32 v%d, s78, v%d" % (10 + j, 10 + j))
            neutral = "0" if self.pop == "max" else "-1"
            a("v_mov_b32 v20, %s" % neutral)
            for j in range(4):
                m = 0
                for l in range(64):
                    if (self.pgm >> (l & 7)) & 1 and self.ilo <= 8 * j + (l >> 3) < self.ihi:
                        m |= 1 << l
                a("s_mov_b32 exec_lo, 0x%x" % (m & 0xffffffff))
                a("s_mov_b32 exec_hi, 0x%x" % (m >> 32))
                a("v_%s_u32 v20, v20, v%d" % (self.pop, 14 + j))
            a("s_mov_b64 exec, -1")
            a("v_min3_u32 v10, v10, v11, v12")
            a("v_min_u32 v10, v10, v13")
            self.allreduce("v_min_u32", [10], [11])
            self.allreduce("v_%s_u32" % self.pop, [20], [21])
            a("v_sub_u32 v20, v20, v10")
            a("v_readfirstlane_b32 s76, v20")
            a("v_readfirstlane_b32 s79, v10")
            a("s_mul_i32 s76, s76, %d" % self.pamp)
            a("s_min_u32 s76, s76, 100000")
            a("s_add_u32 s76, s76, 10000")
            a("s_add_u32 s79, s79, s78")
            a("L_pspin:")
            a("s_memrealtime s[100:101]")
            a("s_waitcnt lgkmcnt(0)")
            a("s_sub_u32 s77, s100, s79")
            a("s_cmp_lt_u32 s77, s76")
            a("s_cbranch_scc1 L_pspin")
        a("s_endpgm")

    def build(self):
        a = self.a
        self.prologue()
        self.main_wave()
        self.front_wave()
        if self.stamps:
            self.stamps_out()
        a("L_exit:")
        a("L_last:")
        a("s_endpgm")
        lines, n = hazard.fix(a.lines)
        sys.stderr.write("hazard pass inserted %d wait states, %d lines\n" % (n, len(lines)))
        return kernel_file("\n".join(lines) + "\n", 256, 320, LDS_BYTES, 232)


if __name__ == "__main__":
    kw = {}
    out = sys.argv[1]
    for x in sys.argv[2:]:
        k, v = x.split("=")
        kw[k] = int(v) if v.lstrip("-").isdigit() else v
    open(out, "w").write(Gen(**kw).build())
```

```python
import sys
from asmlib import *
import hazard

WS_B, WS_C, WS_M2 = 0x0, 0x8000, 0x10000
WS_H, WS_E, WS_IDC, WS_GR, WS_IDR = 0x18000, 0x1C000, 0x1D000, 0x1E000, 0x20000
WS_A = 0x80000
WS_Q, WS_ST = WS_A + 32768, WS_A + 36864
WS_STAMP = 0x100000
L_V = 0
L_WQ = 65536
L_M = 0
L_T1 = 65536
L_T2 = 98304
L_MISC = 131072
L_Q = L_MISC
L_SC = L_MISC + 1024
L_N = L_SC + 4096
L_H2 = L_SC
L_P = L_N + 4096
L_RED = L_P + 2048
L_RED2 = L_RED + 2048
L_MAX = L_RED2 + 1024
L_SUM = L_MAX + 64
L_LOC = L_SUM + 64
L_DUMP = L_MISC + 16384
LDS_BYTES = L_DUMP + 2048
assert L_LOC + 64 <= LDS_BYTES

LOG2E = 0x3FB8AA3B
NLOG2E = 0xBFB8AA3B
SCALE = 0x3DB504F3
EPS = 0x3727C5AC
SPIN_MAX = 0x10000

S_G, S_I, S_B, S_S, S_W = "s4", "s5", "s6", "s7", "s3"
P_X, P_WQ, P_WO, P_WG, P_WU = 8, 14, 16, 20, 22
P_WD, P_C, P_WMOD, P_OUT, P_DBG, P_WS = 24, 26, 28, 30, 32, 34
R_WS, R_K, R_V, R_TA, R_TB, R_WD, R_X, R_C, R_OUT, R_DBG = 36, 40, 44, 48, 52, 56, 60, 64, 68, 72
R_WO = R_K
R_WQ, R_WMOD = 48, 52
LCG_A, LCG_C = 1664525, 1013904223
STAMP0 = 84


def q4(n):
    return "s[%d:%d]" % (n, n + 3)


def vr(n, k=4):
    return "v[%d:%d]" % (n, n + k - 1)


class Gen:
    def __init__(self, stamps=False, win=5, ramp=3, pb=9, helpm=1, xhelp=1, kearly=8, idmax=12, t1early=0, hdeep=2, qdeep=2, half=16, winv=6, helpg=1, sent=0, ntw="", warm=1, cdelay=3, st_local="sc1", nt="nt", mg_h=7, pref=1, force_remote=0, exp=0, tailfree=3, hsleep=0, qsleep=20, pop="", pgm=255, ilo=0, ihi=32, pamp=20, pwave=0, pk=0):
        self.pop, self.pgm, self.ilo, self.ihi, self.pamp, self.pwave, self.pk = pop, pgm, ilo, ihi, pamp, pwave, pk
        self.a = Asm()
        self.stamps = stamps
        self.win = win
        self.winv = winv
        self.helpg = helpg
        self.sent = sent
        self.pb, self.helpm = pb, helpm
        self.xhelp, self.kearly = xhelp, kearly
        self.ramp, self.idmax, self.t1early = ramp, idmax, t1early
        self.hdeep, self.qdeep, self.half = hdeep, qdeep, half
        self.ntw = ntw
        self.warm = warm
        self.cdelay = cdelay
        self.st_local = st_local
        self.nt = nt
        self.mg_h = mg_h
        self.pref = pref
        self.exp = exp
        self.tailfree = tailfree
        self.hsleep = hsleep
        self.qsleep = qsleep
        self.force_remote = force_remote

    def stamp(self, k):
        if self.stamps:
            a = self.a
            a("s_memrealtime s[100:101]")
            a("s_waitcnt lgkmcnt(0)")
            a("s_mov_b32 s%d, s100" % (STAMP0 + k))

    def count(self, k, reg):
        if self.stamps:
            self.a("s_mul_i32 s%d, %s, 100" % (STAMP0 + k, reg))
            self.a("s_add_u32 s%d, s%d, s%d" % (STAMP0 + k, STAMP0 + k, STAMP0))

    def finish(self):
        a = self.a
        if self.stamps:
            a("s_branch L_stamps")
        else:
            a("s_endpgm")

    def mksrd(self, d, p, size):
        a = self.a
        a("s_mov_b64 s[%d:%d], s[%d:%d]" % (d, d + 1, p, p + 1))
        a("s_mov_b32 s%d, %d" % (d + 2, size))
        a("s_mov_b32 s%d, 0x00020000" % (d + 3))

    def spin_tail(self, lab, cnt):
        a = self.a
        a("s_add_u32 %s, %s, 1" % (cnt, cnt))
        a("s_cmp_lt_u32 %s, %d" % (cnt, SPIN_MAX))
        a("s_cbranch_scc1 %s" % lab)

    def allreduce(self, op, regs, tmp, rors=(1, 2, 4, 8)):
        a = self.a
        for r in rors:
            for x in regs:
                a("%s_dpp v%d, v%d, v%d row_ror:%d row_mask:0xf bank_mask:0xf" % (op, x, x, x, r))
        for sw in ("v_permlane16_swap_b32", "v_permlane32_swap_b32"):
            for x, t in zip(regs, tmp):
                a("v_mov_b32 v%d, v%d" % (t, x))
            for x, t in zip(regs, tmp):
                a("%s v%d, v%d" % (sw, x, t))
            for x, t in zip(regs, tmp):
                a("%s v%d, v%d, v%d" % (op, x, x, t))

    def unpack(self, dst, src, n, mask):
        a = self.a
        for j in range(n):
            a("v_lshlrev_b32 v%d, 16, v%d" % (dst + 2 * j, src + j))
            a("v_and_b32 v%d, %s, v%d" % (dst + 2 * j + 1, mask, src + j))

    def pack(self, dst, src, n):
        a = self.a
        for j in range(n):
            a("v_cvt_pk_bf16_f32 v%d, v%d, v%d" % (dst + j, src + 2 * j, src + 2 * j + 1))

    def rnd(self, x, n, tmp, mask):
        self.pack(tmp, x, n)
        self.unpack(x, tmp, n, mask)

    def sigma_voff(self, dst, rowb, t1, t2):
        a = self.a
        a("v_bfe_u32 v%d, v0, 3, 2" % t1)
        a("v_lshlrev_b32 v%d, 3, v%d" % (t1, t1))
        a("v_bfe_u32 v%d, v0, 1, 2" % t2)
        a("v_add_u32 v%d, v%d, v%d" % (t1, t1, t2))
        a("v_lshrrev_b32 v%d, 5, v0" % t2)
        a("v_lshl_add_u32 v%d, v%d, 2, v%d" % (t1, t2, t1))
        a("v_mul_u32_u24 v%d, %d, v%d" % (t1, rowb, t1))
        a("v_and_b32 v%d, 1, v0" % t2)
        a("v_lshl_add_u32 v%d, v%d, 4, v%d" % (dst, t2, t1))

    def prologue(self):
        a = self.a
        a("L_start:")
        if self.stamps:
            a("s_memrealtime s[100:101]")
        a("s_load_dwordx2 s[%d:%d], s[0:1], 8" % (R_K, R_K + 1))
        a("s_load_dwordx16 s[8:23], s[0:1], 0")
        a("s_load_dwordx8 s[24:31], s[0:1], 64")
        a("s_load_dwordx4 s[32:35], s[0:1], 96")
        a("s_getpc_b64 s[70:71]")
        a("L_pc:")
        a("s_cmpk_ge_u32 s2, 256")
        a("s_cbranch_scc1 L_exit")
        a("v_lshrrev_b32 v1, 6, v0")
        a("v_and_b32 v0, 63, v0")
        a("v_readfirstlane_b32 %s, v1" % S_W)
        a("s_and_b32 %s, s2, 7" % S_G)
        a("s_lshr_b32 %s, s2, 3" % S_I)
        a("s_lshr_b32 %s, s2, 6" % S_B)
        a("s_and_b32 %s, %s, 7" % (S_S, S_I))
        a("v_and_b32 v7, 15, v0")
        a("v_lshrrev_b32 v3, 4, v0")
        a("v_and_b32 v4, 3, v0")
        a("v_lshlrev_b32 v8, 4, v0")
        a("s_cmp_eq_u32 %s, 3" % S_B)
        a("s_cselect_b32 s96, 2, 0")
        a("s_cmp_lg_u32 %s, 4" % S_W)
        a("s_cbranch_scc1 L_main")
        if self.pref:
            a("v_lshl_add_u32 v1, %s, 4, v7" % S_S)
            a("v_lshlrev_b32 v1, 7, v1")
            a("v_min_u32 v1, L_last-L_pc, v1")
            a("s_mov_b64 exec, 0xffff")
            a("global_load_dword v2, v1, s[70:71]")
            a("s_mov_b64 exec, -1")
        a("s_branch L_front")
        a("L_main:")

    def t_loads(self, srd, voff, pol=None):
        a = self.a
        pol = self.ntw if pol is None else pol
        a("buffer_load_dwordx4 v%d, %s, s79 offen %s lds" % (voff, q4(srd), pol))
        a("s_add_u32 s77, s79, s74")
        for e in range(1, 4):
            a("buffer_load_dwordx4 v%d, %s, s77 offen offset:%d %s lds" % (voff, q4(srd), e * 1024, pol))
            if e < 3:
                a("s_add_u32 s77, s77, s74")

    def local_store(self, text):
        a = self.a
        l1, l2 = a.label("L_ls"), a.label("L_ls")
        a("s_cmp_eq_u32 s73, 0")
        a("s_cbranch_scc1 %s" % l1)
        a(text)
        a("%s:" % l2)
        self.deferred.append((l1, text + " sc1", l2))

    def main_wave(self):
        a = self.a
        W = self.win
        MASK = "s83"
        self.deferred = []
        a("s_mov_b32 s%d, 0x00020000" % (R_K + 3))
        for d in (R_TA, R_TB, R_C):
            a("s_mov_b32 s%d, s%d" % (d + 3, R_K + 3))
        a("s_mov_b32 s%d, %d" % (R_TA + 2, KSIZE['wmod']))
        a("s_mov_b32 s%d, %d" % (R_K + 2, KSIZE['k']))
        a("s_lshl_b32 s%d, s96, 11" % (R_C + 2))
        a("s_lshl_b32 s82, %s, 10" % S_W)
        a("v_lshrrev_b32 v1, 1, v0")
        a("v_mul_u32_u24 v1, 6, v1")
        a("v_and_or_b32 v1, v0, 1, v1")
        a("v_lshlrev_b32 v5, 10, v1")
        a("s_lshl2_add_u32 s77, %s, %s" % (S_I, S_W))
        a("s_mul_i32 s78, s77, 192")
        a("s_add_u32 s78, s78, %s" % S_G)
        a("s_lshl_b32 s78, s78, 7")
        a("s_lshl_b32 s74, s96, 3")
        a("s_sub_u32 s77, s77, s74")
        a("s_lshl3_add_u32 s79, s77, %s" % S_G)
        a("s_lshl_b32 s79, s79, 10")
        a("s_mov_b32 s%d, %d" % (R_TB + 2, KSIZE['wq']))
        a("s_mov_b32 s74, %d" % (112 * 8192))
        a("s_lshr_b32 s75, s2, 5")
        a("s_cmp_eq_u32 s75, 6")
        a("s_waitcnt lgkmcnt(0)")
        for d, p in ((R_C, P_C), (R_TA, P_WMOD), (R_TB, P_WQ)):
            a("s_mov_b64 s[%d:%d], s[%d:%d]" % (d, d + 1, p, p + 1))
        a("buffer_load_dwordx4 %s, v8, %s, s82 offen" % (vr(24), q4(R_C)))
        a("s_mov_b64 exec, 0xff")
        a("buffer_load_dword v23, v5, %s, s78 offen" % q4(R_TA))
        a("s_mov_b64 exec, -1")
        a("s_cbranch_scc1 L_qcu")
        nh = 9 + self.xhelp
        for e in range(nh):
            if e == 9:
                a("s_cmp_lt_u32 s77, 64")
                a("s_cselect_b64 s[%d:%d], s[%d:%d], s[12:13]" % (R_V, R_V + 1, R_K, R_K + 1))
                a("s_cselect_b32 s74, 0, %d" % (512 * 1024))
                a("s_mov_b64 s[%d:%d], s[%d:%d]" % (R_V + 2, R_V + 3, R_K + 2, R_K + 3))
                a("s_sub_u32 s79, s79, s74")
            a("buffer_load_dwordx4 %s, v8, %s, s79 offen" % (vr(128), q4(R_TB if e < 5 else R_K if e < 9 else R_V)))
            if e == 4:
                a("s_lshl_b32 s79, %s, 11" % S_G)
                a("s_add_u32 s79, s79, s77")
                a("s_add_u32 s79, s79, %d" % (24 * 2048 + 1536))
                a("s_lshl_b32 s79, s79, 10")
                a("s_lshr_b32 s74, s74, 3")
            elif e < nh - 1:
                a("s_add_u32 s79, s79, s74")
            if e + 1 == self.ramp and self.ramp < W:
                a("s_waitcnt vmcnt(%d)" % self.ramp)
            if e >= W - 1 and e < nh - 1:
                a("s_waitcnt vmcnt(%d)" % (W - 1))
        a("s_cmp_lg_u32 s96, 0")
        a("s_cbranch_scc1 L_qcu")
        if self.stamps:
            a("s_mov_b32 s%d, s100" % STAMP0)
            for k in range(1, 12):
                a("s_mov_b32 s%d, 0" % (STAMP0 + k))
        self.k_setup()
        a("s_waitcnt vmcnt(%d)" % (W - 1))
        for e in range(16):
            if e == self.kearly:
                a("L_stream:")
            self.k_load(e)
            if e in (9, 11, 13):
                self.setup_common((e - 9) // 2)
            a("s_waitcnt vmcnt(%d)" % (W - 1))
        self.stamp(1)
        ops = []
        st = dict(e=0)

        def after(tag):
            idx = max(k for k, t in enumerate(ops) if t == tag)
            return len(ops) - 1 - idx

        def nxt(wait=True):
            e = st["e"]
            if e >= 18:
                return
            st["e"] += 1
            if wait and e > 1:
                a("s_waitcnt vmcnt(%d)" % ((W if e < 8 else self.winv) - 1))
            if e < 16:
                step, j = e >> 2, e & 3
                if j == 0:
                    a("s_add_u32 m0, s98, %d" % (L_V + step * 16384))
                    a("s_add_u32 s97, s76, %d" % (step * 131072))
                a("buffer_load_dwordx4 v%d, %s, s97 offen offset:%d %s lds" % (5 + (j & 1), q4(R_V), j * 1024, self.nt))
                ops.append("v%d" % step)
            elif e == 16:
                a("s_mov_b32 m0, s64")
                a("buffer_load_dwordx4 v228, %s, s57 offen %s lds" % (q4(R_WO), self.ntw))
                ops.append("t")
            else:
                a("buffer_load_dwordx4 v228, %s, s99 offen offset:1024 %s lds" % (q4(R_WO), self.ntw))
                ops.append("t")
        nxt()
        nxt()
        a("s_cmp_ge_u32 %s, 24" % S_I)
        a("s_cbranch_scc1 L_su_m")
        a("s_cmp_ge_u32 %s, 16" % S_I)
        a("s_cbranch_scc1 L_su_g")
        a("s_branch L_su_w")
        a("L_su_done:")
        self.mksrd(R_WO, P_WO, KSIZE['wo'])
        a("v_mul_lo_u32 v10, v10, s78")
        a("v_add_u32 v10, v10, v11")
        a("v_xor_b32 v11, 16, v10")
        a("s_lshl_b32 s74, s78, 4")
        a("s_sub_u32 s74, s74, 1024")
        a("s_cmp_eq_u32 s72, 0")
        a("s_cselect_b32 s77, 1, -1")
        a("s_mul_i32 s75, s75, s77")
        while st["e"] < (16 if self.exp else self.pb):
            nxt()
        assert self.pb > max(W, self.winv)
        self.stamp(2)
        if self.exp:
            a("s_waitcnt vmcnt(0)")
            self.stamp(3)
            self.finish()
        a("s_barrier")
        self.stamp(3)
        a("ds_read_b128 %s, v9" % vr(32))
        a("ds_read_b64 v[60:61], v14 offset:%d" % (L_LOC - L_MISC))
        nxt()
        a("s_waitcnt lgkmcnt(0)")
        for e in range(16):
            a("v_mfma_f32_16x16x32_bf16 %s, %s, %s, 0" % (vr(128 + 4 * e), vr(64 + 4 * e), vr(32)))
        a("v_readfirstlane_b32 s73, v60")
        nxt()
        for rho in range(4):
            subs = [x for x in range(4) if x != rho]
            for k, sub in enumerate(subs):
                for rp in range(4):
                    D = 128 + 4 * (4 * rho + rp)
                    src1 = D + rho if k == 0 else 36 + rp
                    a("v_add_f32_dpp v%d, v%d, v%d row_ror:%d row_mask:0xf bank_mask:0x%x" % (36 + rp, D + sub, src1, (4 * (rho - sub)) & 15, 1 << rho))
        nxt()
        self.rnd(36, 2, 40, MASK)
        for r in range(4):
            a("v_mul_f32 v%d, 0x%x, v%d" % (36 + r, SCALE, 36 + r))
        self.rnd(36, 2, 40, MASK)
        a("v_max3_f32 v42, v36, v37, v38")
        a("v_max_f32 v42, v42, v39")
        self.allreduce("v_max_f32", [42], [43], rors=(4, 8))
        a("ds_write_b32 v13, v42 offset:%d" % (L_MAX - L_MISC))
        nxt()
        a("s_waitcnt lgkmcnt(0)")
        a("s_barrier")
        a("ds_read_b128 %s, v14 offset:%d" % (vr(44), L_MAX - L_MISC))
        a("s_waitcnt lgkmcnt(0)")
        a("v_max3_f32 v42, v44, v45, v46")
        a("v_max_f32 v42, v42, v47")
        for r in range(4):
            a("v_sub_f32 v%d, v%d, v42" % (36 + r, 36 + r))
        for r in range(4):
            a("v_mul_f32 v%d, 0x%x, v%d" % (36 + r, LOG2E, 36 + r))
        for r in range(4):
            a("v_exp_f32 v%d, v%d" % (36 + r, 36 + r))
        self.pack(40, 36, 2)
        a("ds_write_b64 v15, %s" % vr(40, 2))
        nxt()
        a("v_add_f32 v36, v36, v37")
        a("v_add_f32 v38, v38, v39")
        a("v_add_f32 v36, v36, v38")
        self.allreduce("v_add_f32", [36], [37], rors=(4, 8))
        a("ds_write_b32 v13, v36 offset:%d" % (L_SUM - L_MISC))
        nxt()
        a("s_waitcnt vmcnt(%d) lgkmcnt(0)" % after("v1"))
        a("s_barrier")
        self.stamp(4)
        a("ds_read_b128 %s, v14 offset:%d" % (vr(44), L_SUM - L_MISC))
        for kg in range(8):
            a("ds_read_b128 %s, v16 offset:%d" % (vr(64 + 4 * kg), kg * 256))

        def vreads(kg):
            step, u = kg >> 1, kg & 1
            T0 = step * 4 + 2 * u
            for d in range(2):
                base = 128 + 8 * kg + 4 * d
                a("ds_read_b64_tr_b16 %s, v%d offset:%d" % (vr(base, 2), 17 + d, T0 * 4096))
                a("ds_read_b64_tr_b16 %s, v%d offset:%d" % (vr(base + 2, 2), 17 + d, (T0 + 1) * 4096))

        def vmfma(kg):
            for d in range(2):
                a("v_mfma_f32_16x16x32_bf16 %s, %s, %s, %s" % (vr(48 + 4 * d), vr(128 + 8 * kg + 4 * d), vr(64 + 4 * kg), "0" if kg == 0 else vr(48 + 4 * d)))
        vreads(0)
        nxt()
        a("s_waitcnt lgkmcnt(12)")
        a("v_add_f32 v44, v44, v45")
        a("v_add_f32 v46, v46, v47")
        a("v_add_f32 v43, v44, v46")
        a("s_lshl_b64 exec, 1, %s" % S_W)
        self.local_store("buffer_store_dwordx2 %s, v19, %s, s81 offen" % (vr(42, 2), q4(R_WS)))
        ops.append("s")
        a("s_mov_b64 exec, -1")
        a("s_waitcnt lgkmcnt(0)")
        for kg in range(1, 4):
            vreads(kg)
        vmfma(0)
        for kg in range(1, 4):
            a("s_waitcnt lgkmcnt(%d)" % (12 - 4 * kg))
            vmfma(kg)
        while st["e"] < 18:
            nxt()
        for step in (2, 3):
            a("s_waitcnt vmcnt(%d)" % after("v%d" % step))
            a("s_barrier")
            if step == 3:
                self.stamp(5)
            vreads(2 * step)
            vreads(2 * step + 1)
            a("s_waitcnt lgkmcnt(4)")
            vmfma(2 * step)
            a("s_waitcnt lgkmcnt(0)")
            vmfma(2 * step + 1)
        a("s_mov_b32 exec_lo, 0x000f000f")
        a("s_mov_b32 exec_hi, 0x000f000f")
        self.pack(56, 48, 4)
        self.local_store("buffer_store_dwordx4 %s, v20, %s, s82 offen" % (vr(56), q4(R_WS)))
        a("s_mov_b64 exec, -1")
        a("s_barrier")
        self.stamp(6)
        a("s_cmp_lg_u32 s96, 0")
        a("s_cbranch_scc1 L_role_gm")
        self.role_w()
        self.setup_g()
        self.role_g()
        self.setup_wm()
        self.role_m()
        for l1, text, l2 in self.deferred:
            a("%s:" % l1)
            a(text)
            a("s_branch %s" % l2)
        self.mload()

    def k_setup(self):
        a = self.a
        a("s_mov_b32 s83, 0xffff0000")
        a("s_lshl_b32 s98, %s, 12" % S_W)
        a("s_lshl3_add_u32 s76, %s, %s" % (S_B, S_G))
        a("s_lshl_b32 s76, s76, 7")
        a("s_add_u32 s76, s76, %s" % S_S)
        a("s_lshl2_add_u32 s76, s76, %s" % S_W)
        a("s_addk_i32 s76, 384")
        a("s_lshl_b32 s76, s76, 12")
        a("v_bfe_u32 v1, v0, 2, 2")
        a("v_lshl_add_u32 v1, v1, 4, v3")
        a("v_lshl_add_u32 v1, v1, 2, v4")
        a("v_lshlrev_b32 v2, 4, v1")

    def k_load(self, e):
        a = self.a
        rho, j = e >> 2, e & 3
        if j == 0 and rho > 0:
            a("s_add_u32 s97, s76, %d" % (rho * 131072))
        a("buffer_load_dwordx4 %s, v2, %s, %s offen offset:%d %s" % (vr(64 + 4 * e), q4(R_K), "s76" if rho == 0 else "s97", j * 256, self.nt))

    def setup_common(self, part):
        a = self.a
        if part == 0:
            self.mksrd(R_V, 12, KSIZE['v'])
            self.mksrd(R_WS, P_WS, KSIZE['ws'])
            self.mksrd(R_X, P_X, KSIZE['x'])
            a("v_lshlrev_b32 v1, 1, v3")
            a("v_xor_b32 v1, v1, v7")
            a("v_lshlrev_b32 v1, 4, v1")
            a("v_lshl_add_u32 v5, v3, 8, v1")
            a("v_xor_b32 v6, 0x80, v5")
            a("v_bfe_u32 v1, v0, 2, 2")
            a("v_lshlrev_b32 v9, 8, v4")
            a("v_lshl_add_u32 v9, v3, 6, v9")
            a("v_lshl_add_u32 v9, v1, 4, v9")
            a("v_add_u32 v9, %d, v9" % L_Q)
            a("v_lshlrev_b32 v14, 4, v4")
            a("v_add_u32 v14, %d, v14" % L_MISC)
            a("s_lshl_b32 s77, %s, 2" % S_W)
            a("v_add_u32 v13, s77, v14")
            a("v_lshl_add_u32 v16, v3, 6, v14")
            a("v_add_u32 v16, %d, v16" % (L_P - L_MISC))
            a("v_lshl_add_u32 v15, v1, 9, v16")
            a("s_lshr_b32 s77, %s, 1" % S_W)
            a("s_lshl_b32 s77, s77, 8")
            a("s_and_b32 s78, %s, 1" % S_W)
            a("s_lshl_b32 s78, s78, 3")
            a("s_add_u32 s77, s77, s78")
            a("v_add_u32 v15, s77, v15")
        elif part == 1:
            a("v_lshrrev_b32 v17, 2, v0")
            a("v_and_b32 v18, 7, v17")
            a("s_lshl_b32 s77, %s, 1" % S_W)
            a("v_xor_b32 v18, s77, v18")
            a("v_lshlrev_b32 v18, 5, v18")
            a("v_lshl_add_u32 v17, v17, 8, v18")
            a("v_lshl_add_u32 v17, v4, 3, v17")
            a("v_xor_b32 v18, 32, v17")
            a("v_lshlrev_b32 v19, 8, v4")
            a("s_lshl_b32 s81, %s, 16" % S_G)
            a("s_lshl_b32 s77, %s, 3" % S_I)
            a("s_add_u32 s81, s81, s77")
            a("s_add_u32 s81, s81, %d" % WS_ST)
        else:
            a("v_lshlrev_b32 v20, 13, v4")
            a("v_lshl_add_u32 v20, v3, 8, v20")
            a("s_lshl_b32 s82, %s, 16" % S_G)
            a("s_lshr_b32 s77, %s, 2" % S_S)
            a("s_lshl_b32 s77, s77, 10")
            a("s_add_u32 s82, s82, s77")
            a("s_lshl_b32 s77, %s, 6" % S_B)
            a("s_add_u32 s82, s82, s77")
            a("s_and_b32 s77, %s, 3" % S_S)
            a("s_lshl_b32 s77, s77, 4")
            a("s_add_u32 s82, s82, s77")
            a("s_lshl_b32 s77, %s, 11" % S_W)
            a("s_add_u32 s82, s82, s77")
            a("s_add_u32 s82, s82, %d" % WS_A)
            a("v_and_b32 v12, 1, v3")
            a("v_lshlrev_b32 v1, 1, v12")
            a("v_xor_b32 v1, v1, v4")
            a("v_lshlrev_b32 v11, 4, v1")
            a("v_lshrrev_b32 v10, 2, v0")
            a("s_and_b32 s72, %s, 1" % S_I)
            a("v_lshlrev_b32 v228, 7, v10")
            a("v_lshl_add_u32 v228, v4, 4, v228")
            a("s_lshl_b32 s57, %s, 2" % S_G)
            a("s_add_u32 s57, s57, %s" % S_W)
            a("s_lshl_b32 s57, s57, 5")
            a("s_add_u32 s57, s57, %s" % S_I)
            a("s_lshl_b32 s57, s57, 12")
            a("s_add_u32 s99, s57, 1024")
            a("s_mov_b32 s64, %d" % L_DUMP)

    def setup_wm(self):
        a = self.a
        a("L_su_w:")
        a("s_mov_b32 s96, 0")
        self.mksrd(R_TA, P_WO, KSIZE['wo'])
        self.mksrd(R_TB, P_WD, KSIZE['wd'])
        self.mksrd(R_OUT, P_OUT, KSIZE['out'])
        a("s_mov_b32 s78, 1024")
        a("s_lshl_b32 s79, %s, 19" % S_G)
        a("s_lshl_b32 s77, %s, 6" % S_I)
        a("s_add_u32 s79, s79, s77")
        a("v_lshl_add_u32 v228, v10, 10, v11")
        a("s_lshl_b32 s77, %s, 2" % S_W)
        a("s_add_u32 s77, s77, s72")
        a("s_lshl_b32 s64, s77, 11")
        a("s_add_u32 s64, s64, %d" % L_T1)
        a("s_lshl_b32 s57, s77, 15")
        a("s_add_u32 s57, s57, s79")
        a("s_add_u32 s99, s57, 15360")
        a("s_mov_b32 s72, 1")
        a("v_min_u32 v195, 55, v0")
        a("v_lshlrev_b32 v195, 10, v195")
        a("s_lshl_b32 s56, %s, 4" % S_G)
        a("s_add_u32 s56, s56, %s" % S_I)
        a("s_lshl_b32 s56, s56, 8")
        a("s_add_u32 s56, s56, %d" % WS_B)
        a("s_lshl_b32 s65, %s, 8" % S_G)
        a("s_add_u32 s65, s65, %s" % S_W)
        a("s_lshl_b32 s65, s65, 8")
        a("s_add_u32 s65, s65, %d" % WS_ST)
        a("s_lshl3_add_u32 s66, %s, %s" % (S_G, S_W))
        a("s_lshl_b32 s66, s66, 13")
        a("s_add_u32 s66, s66, %d" % WS_A)
        a("s_add_u32 s67, s66, 4096")
        a("v_and_b32 v1, 7, v0")
        a("v_lshlrev_b32 v1, 3, v1")
        a("v_lshl_add_u32 v21, v3, 6, v1")
        a("v_bfe_u32 v1, v0, 3, 2")
        a("v_lshlrev_b32 v27, 3, v1")
        a("v_bfe_u32 v1, v0, 1, 2")
        a("v_add_u32 v27, v27, v1")
        a("v_lshrrev_b32 v1, 5, v0")
        a("v_lshl_add_u32 v27, v1, 2, v27")
        a("v_and_b32 v1, 1, v0")
        a("v_lshl_add_u32 v27, v1, 5, v27")
        a("v_lshlrev_b32 v27, 10, v27")
        a("s_mul_i32 s58, %s, %d" % (S_W, 7 * 1024))
        a("s_add_u32 s77, s58, %d" % L_T2)
        a("v_lshlrev_b32 v28, 3, v0")
        a("v_add_u32 v28, s77, v28")
        a("s_add_u32 s58, s58, %d" % WS_C)
        a("s_add_u32 s59, s58, 4096")
        a("v_lshrrev_b32 v1, 2, v7")
        a("v_lshlrev_b32 v29, 9, v1")
        a("v_lshl_add_u32 v29, v3, 7, v29")
        a("v_lshl_add_u32 v29, v4, 4, v29")
        a("v_lshlrev_b32 v193, 2, v4")
        a("v_lshl_add_u32 v192, v1, 10, v193")
        a("v_lshl_add_u32 v193, v1, 6, v193")
        a("v_lshl_add_u32 v194, v3, 12, v193")
        a("v_lshrrev_b32 v1, 1, v3")
        a("v_lshlrev_b32 v30, 7, v1")
        a("v_lshl_add_u32 v30, v4, 5, v30")
        a("v_lshl_add_u32 v30, v12, 4, v30")
        a("s_lshl_b32 s77, %s, 8" % S_W)
        a("s_add_u32 s77, s77, %d" % L_RED2)
        a("v_add_u32 v30, s77, v30")
        a("v_lshlrev_b32 v31, 3, v7")
        a("v_add_u32 v31, %d, v31" % L_RED2)
        a("s_branch L_su_wm")
        a("L_su_m:")
        a("s_mov_b32 s96, 2")
        self.mksrd(R_TA, P_WMOD, KSIZE['wmod'])
        a("s_mov_b32 s78, 6144")
        a("s_lshl_b32 s77, %s, 3" % S_G)
        a("s_add_u32 s77, s77, %s" % S_I)
        a("s_sub_u32 s77, s77, 24")
        a("s_lshl_b32 s79, s77, 6")
        a("s_add_u32 s79, s79, 2048")
        a("s_lshl_b32 s56, s77, 8")
        a("s_add_u32 s56, s56, %d" % WS_M2)
        if self.helpm:
            a("s_lshl2_add_u32 s77, %s, s72" % S_W)
            a("s_lshl_b32 s58, s77, 11")
            a("s_add_u32 s58, s58, %d" % L_T1)
            a("s_mul_i32 s66, s77, %d" % (32 * 6144))
            a("s_add_u32 s66, s66, s79")
            a("s_xor_b32 s77, s77, 1")
            a("s_mul_i32 s67, s77, %d" % (32 * 6144))
            a("s_add_u32 s67, s67, s79")
            a("s_mov_b32 s72, 1")
        self.mksrd(R_TB, P_WU, KSIZE['wu'])
        a("s_cmp_eq_u32 %s, %d" % (S_G, self.mg_h))
        a("s_cselect_b32 s%d, 0, %d" % (R_TB + 2, KSIZE['wu']))
        a("s_cmp_gt_u32 %s, %d" % (S_G, self.mg_h))
        a("s_cselect_b32 s77, 1, 0")
        a("s_sub_u32 s65, %s, s77" % S_G)
        a("s_lshl_b32 s65, s65, 9")
        a("s_lshl_b32 s77, %s, 3" % S_S)
        a("s_add_u32 s77, s77, %s" % S_W)
        a("s_add_u32 s77, s77, 4")
        a("s_mul_i32 s77, s77, %d" % (8 * 3584))
        a("s_add_u32 s65, s65, s77")
        a("v_lshrrev_b32 v27, 3, v0")
        a("v_mul_u32_u24 v27, 3584, v27")
        a("v_and_b32 v1, 7, v0")
        a("v_lshl_add_u32 v27, v1, 6, v27")
        a("v_lshrrev_b32 v1, 2, v7")
        a("v_lshlrev_b32 v21, 10, v1")
        a("v_lshl_add_u32 v21, v3, 3, v21")
        a("s_lshl_b32 s77, %s, 8" % S_W)
        a("s_add_u32 s77, s77, %d" % L_SC)
        a("v_add_u32 v21, s77, v21")
        a("L_su_wm:")
        a("s_lshl_b32 s77, %s, 1" % S_W)
        a("s_add_u32 s77, s77, s72")
        a("s_lshl_b32 s80, s77, 12")
        a("s_add_u32 s80, s80, %d" % L_T1)
        a("s_lshl_b32 s75, s78, 6")
        a("s_mul_i32 s77, s77, s75")
        a("s_add_u32 s79, s79, s77")
        a("v_lshlrev_b32 v22, 6, v10")
        a("v_lshl_add_u32 v22, v12, 5, v22")
        a("v_lshl_add_u32 v22, v4, 3, v22")
        a("s_lshl_b32 s77, %s, 13" % S_W)
        a("s_add_u32 s77, s77, %d" % L_T1)
        a("v_add_u32 v22, s77, v22")
        a("v_xor_b32 v23, 32, v22")
        a("v_lshlrev_b32 v24, 2, v7")
        a("v_lshl_add_u32 v24, v3, 7, v24")
        a("s_lshl_b32 s77, %s, 9" % S_W)
        a("s_add_u32 s77, s77, %d" % L_RED)
        a("v_add_u32 v24, s77, v24")
        a("v_lshlrev_b32 v25, 3, v0")
        a("v_add_u32 v25, %d, v25" % L_RED)
        a("v_lshlrev_b32 v26, 2, v0")
        a("s_branch L_su_done")

    def setup_g(self):
        a = self.a
        a("L_su_g:")
        a("s_mov_b32 s96, 1")
        self.mksrd(R_TA, P_WG, KSIZE['wg'])
        self.mksrd(R_TB, P_WU, KSIZE['wu'])
        a("s_mov_b32 s78, 3584")
        a("s_cmp_gt_u32 %s, %d" % (S_G, self.mg_h))
        a("s_cselect_b32 s77, 1, 0")
        a("s_sub_u32 s77, %s, s77" % S_G)
        a("s_lshl_b32 s77, s77, 3")
        a("s_add_u32 s77, s77, %s" % S_I)
        a("s_sub_u32 s77, s77, 16")
        a("s_lshl_b32 s79, s77, 6")
        a("s_lshl_b32 s56, s77, 2")
        a("s_add_u32 s56, s56, %s" % S_W)
        a("s_lshl_b32 s56, s56, 7")
        a("s_add_u32 s56, s56, %d" % WS_C)
        a("s_lshl_b32 s77, s72, 2")
        a("s_add_u32 s77, s77, %s" % S_W)
        a("s_lshl_b32 s80, s77, 12")
        a("s_add_u32 s80, s80, %d" % L_T1)
        a("s_mul_i32 s77, s77, %d" % (64 * 3584))
        a("s_add_u32 s79, s79, s77")
        a("s_mov_b32 s75, %d" % (256 * 3584))
        a("s_lshl4_add_u32 s58, %s, %s" % (S_W, S_S))
        a("s_add_u32 s58, s58, 8")
        a("s_mul_i32 s58, s58, %d" % (8 * 6144))
        a("s_lshl_b32 s77, %s, 9" % S_G)
        a("s_add_u32 s58, s58, s77")
        a("v_lshrrev_b32 v28, 3, v0")
        a("v_mul_u32_u24 v28, 6144, v28")
        a("v_and_b32 v1, 7, v0")
        a("v_lshl_add_u32 v28, v1, 6, v28")
        a("v_lshrrev_b32 v1, 3, v7")
        a("v_lshrrev_b32 v21, 1, v3")
        a("v_cmp_eq_u32 vcc, v1, v21")
        a("v_and_b32 v1, 1, v0")
        a("v_lshlrev_b32 v1, 4, v1")
        a("v_mov_b32 v22, 0x3f80")
        a("v_lshlrev_b32 v1, v1, v22")
        a("v_cndmask_b32 v1, 0, v1, vcc")
        a("v_bfe_u32 v22, v0, 1, 2")
        for j in range(4):
            a("v_cmp_eq_u32 vcc, %d, v22" % j)
            a("v_cndmask_b32 v%d, 0, v1, vcc" % (224 + j))
        a("v_lshlrev_b32 v26, 4, v4")
        a("v_lshl_add_u32 v26, v12, 3, v26")
        a("v_lshl_add_u32 v26, v21, 2, v26")
        a("v_lshl_add_u32 v1, v21, 4, v7")
        a("v_lshlrev_b32 v27, 4, v1")
        a("v_lshl_add_u32 v27, v12, 3, v27")
        a("v_lshrrev_b32 v1, 2, v1")
        a("v_lshlrev_b32 v25, 8, v1")
        a("v_and_b32 v22, 1, v0")
        a("v_lshl_add_u32 v22, v22, 1, v12")
        a("v_lshl_add_u32 v22, v22, 6, v25")
        a("v_bfe_u32 v1, v0, 1, 1")
        a("v_lshl_add_u32 v22, v1, 3, v22")
        a("s_lshl_b32 s77, %s, 4" % S_W)
        a("s_add_u32 s77, s77, %d" % L_H2)
        a("v_add_u32 v22, s77, v22")
        a("v_lshl_add_u32 v25, v4, 4, v25")
        a("v_lshl_add_u32 v21, v12, 12, v25")
        a("v_lshl_add_u32 v25, v12, 3, v25")
        a("v_lshlrev_b32 v23, 6, v3")
        a("v_lshl_add_u32 v23, v4, 4, v23")
        a("v_add_u32 v23, %d, v23" % L_H2)
        a("v_lshlrev_b32 v24, 6, v10")
        a("v_lshl_add_u32 v24, v1, 15, v24")
        a("v_lshl_add_u32 v1, v12, 1, v1")
        a("v_xor_b32 v1, %s, v1" % S_W)
        a("v_lshl_add_u32 v24, v1, 4, v24")
        a("v_and_b32 v1, 1, v0")
        a("v_lshl_add_u32 v24, v1, 3, v24")
        a("v_add_u32 v24, %d, v24" % L_T1)
        a("s_lshl_b32 s77, %s, 6" % S_W)
        a("s_add_u32 s65, s77, %d" % WS_M2)
        a("s_add_u32 s66, s65, 4096")
        a("s_add_u32 s67, s65, 8192")
        for gp in range(4):
            a("s_add_u32 s%d, s77, %d" % (68 + gp, WS_B + gp * 8192))
        a("s_branch L_su_done")

    def gr_wait(self, t):
        a = self.a
        a("v_readfirstlane_b32 s97, v61")
        a("v_and_b32 v2, 7, v0")
        a("v_lshlrev_b32 v2, 7, v2")
        a("s_mov_b32 s98, %d" % WS_GR)
        a("s_mov_b32 s77, 0")
        a("L_gr_retry_%s:" % t)
        a("buffer_load_dword v62, v2, %s, s98 offen sc1" % q4(R_WS))
        a("s_waitcnt vmcnt(0)")
        a("v_cmp_ne_u32 vcc, s97, v62")
        a("s_cbranch_vccz L_gr_ok_%s" % t)
        self.spin_tail("L_gr_retry_%s" % t, "s77")
        a("L_gr_ok_%s:" % t)

    def wm_tr_reads(self, base=96):
        a = self.a
        for tau in range(2):
            for kk in range(4):
                for rd in range(2):
                    a("ds_read_b64_tr_b16 %s, v%d offset:%d" % (vr(base + 16 * tau + 4 * kk + 2 * rd, 2), 22 + tau, (2 * kk + rd) * 1024))
            if tau == 0:
                a("s_waitcnt lgkmcnt(4)")

    def wm_publish(self, r0, r1, done):
        a = self.a
        a("ds_write_b32 v24, v%d" % r0)
        a("ds_write_b32 v24, v%d offset:64" % r1)
        a("s_waitcnt lgkmcnt(0)")
        a("s_barrier")
        self.stamp(7)
        a("s_cmp_lg_u32 %s, 0" % S_W)
        a("s_cbranch_scc1 %s" % done)
        for h in range(4):
            a("ds_read_b64 %s, v25 offset:%d" % (vr(32 + 2 * h, 2), h * 512))
        a("s_waitcnt lgkmcnt(2)")
        a("v_pk_add_f32 v[32:33], v[32:33], v[34:35]")
        a("s_waitcnt lgkmcnt(0)")
        a("v_pk_add_f32 v[36:37], v[36:37], v[38:39]")
        a("v_pk_add_f32 v[32:33], v[32:33], v[36:37]")
        a("v_cvt_pk_bf16_f32 v32, v32, v33")
        a("buffer_store_dword v32, v26, %s, s56 offen sc1" % q4(R_WS))

    def role_w(self):
        a = self.a
        a("s_xor_b32 m0, s64, 0x800")
        a("s_xor_b32 s57, s57, 0x8000")
        a("s_add_u32 s99, s57, 15360")
        a("buffer_load_dwordx4 v10, %s, s57 offen %s lds" % (q4(R_TA), self.ntw))
        a("buffer_load_dwordx4 v10, %s, s99 offen offset:1024 %s lds" % (q4(R_TA), self.ntw))
        a("s_mov_b32 m0, s80")
        a("s_mov_b32 s78, 0")
        self.t_loads(R_TA, 10)

        def loads():
            a("buffer_load_dwordx2 %s, v21, %s, s65 offen sc1" % (vr(50, 2), q4(R_WS)))
            for e in range(8):
                a("buffer_load_dwordx4 %s, v8, %s, %s offen offset:%d sc1" % (vr(64 + 4 * e), q4(R_WS), "s66" if e < 4 else "s67", (e & 3) * 1024))
        loads()
        a("s_waitcnt vmcnt(9)")
        self.wm_tr_reads()
        a("s_branch L_w_in")
        a("L_w_retry:")
        loads()
        a("L_w_in:")
        a("s_waitcnt vmcnt(8)")
        a("v_max_f32_dpp v52, v50, v50 quad_perm:[1,0,3,2] row_mask:0xf bank_mask:0xf")
        a("v_max_f32_dpp v52, v52, v52 quad_perm:[2,3,0,1] row_mask:0xf bank_mask:0xf")
        a("v_max_f32_dpp v52, v52, v52 row_ror:4 row_mask:0xf bank_mask:0xf")
        a("v_sub_f32 v52, v50, v52")
        a("v_mul_f32 v52, 0x%x, v52" % LOG2E)
        a("v_exp_f32 v52, v52")
        a("v_mul_f32 v53, v52, v51")
        a("v_add_f32_dpp v53, v53, v53 quad_perm:[1,0,3,2] row_mask:0xf bank_mask:0xf")
        a("v_add_f32_dpp v53, v53, v53 quad_perm:[2,3,0,1] row_mask:0xf bank_mask:0xf")
        a("v_add_f32_dpp v53, v53, v53 row_ror:4 row_mask:0xf bank_mask:0xf")
        a("v_rcp_f32 v53, v53")
        a("v_mul_f32 v52, v52, v53")
        a("s_waitcnt lgkmcnt(0)")
        for e in range(8):
            kk, rg = e >> 1, e & 1
            a("s_waitcnt vmcnt(%d)" % (7 - e))
            for tau in range(2):
                acc = 32 + 8 * tau + 4 * rg
                a("v_mfma_f32_16x16x32_bf16 %s, %s, %s, %s" % (vr(acc), vr(64 + 4 * e), vr(96 + 16 * tau + 4 * kk), "0" if kk == 0 else vr(acc)))
        for s in range(8):
            for tau in range(2):
                a("%s v%d, v52, v%d row_newbcast:%d row_mask:0xf bank_mask:0xf" % ("v_mul_f32_dpp" if s == 0 else "v_fmac_f32_dpp", 48 + tau, 32 + 8 * tau + s, s))
        a("v_cmp_u_f32 vcc, v48, v49")
        a("s_cbranch_vccz L_w_ok")
        self.spin_tail("L_w_retry", "s78")
        a("L_w_ok:")
        self.wm_publish(48, 49, "L_w_pub_done")
        a("L_w_pub_done:")
        a("s_barrier")
        self.stamp(8)
        a("s_lshl_b32 s77, %s, 1" % S_I)
        a("s_and_b32 s78, %s, 1" % S_W)
        a("s_add_u32 s77, s77, s78")
        a("s_mul_i32 s77, s77, %d" % (56 * 1024))
        a("s_lshl_b32 s78, %s, 7" % S_G)
        a("s_add_u32 s77, s77, s78")
        a("s_cmp_lt_u32 %s, 2" % S_W)
        a("s_cbranch_scc1 L_w_notouch")
        a("buffer_load_dword v1, v195, %s, s77 offen %s" % (q4(R_TB), self.ntw))
        a("L_w_notouch:")
        a("s_cmp_ge_u32 %s, 8" % S_I)
        a("s_cbranch_scc1 L_done")
        self.role_d()

    def role_d(self):
        a = self.a
        MASK = "s83"
        a("s_lshl_b32 s76, %s, 3" % S_G)
        a("s_add_u32 s76, s76, %s" % S_I)
        a("s_lshl_b32 s76, s76, 4")
        a("s_mul_i32 s78, %s, 7" % S_W)
        a("s_mov_b32 s77, %s" % S_I)
        a("s_barrier")
        for k in range(7):
            a("s_cmp_ge_u32 s77, 7")
            a("s_cselect_b32 s77, 0, s77")
            a("s_add_u32 s79, s78, s77")
            a("s_lshl_b32 s80, s79, 10")
            a("s_add_u32 m0, s80, %d" % L_T2)
            a("s_lshl_b32 s79, s79, 16")
            a("s_add_u32 s79, s79, s76")
            a("buffer_load_dwordx4 v27, %s, s79 offen %s lds" % (q4(R_TB), self.ntw))
            a("s_add_u32 s77, s77, 1")
        a("s_cmp_lg_u32 %s, 0" % S_W)
        a("s_cbranch_scc1 L_d_nox")
        a("s_lshr_b32 s78, s76, 6")
        a("s_lshl_b32 s78, s78, 8")
        a("s_and_b32 s77, s76, 63")
        a("s_add_u32 s78, s78, s77")
        a("s_add_u32 s79, s78, %d" % WS_B)
        a("s_add_u32 s80, s79, 16384")
        a("s_add_u32 s81, s78, %d" % WS_M2)
        a("s_add_u32 s82, s81, %d" % (3 * 4096))
        a("buffer_load_dword v42, v192, %s, s76 offen" % q4(R_X))
        self.gr_wait("d")
        a("s_mov_b32 s77, 0")
        a("L_d_x_retry:")
        a("buffer_load_dword v40, v193, %s, s81 offen sc1" % q4(R_WS))
        a("buffer_load_dword v41, v193, %s, s82 offen sc1" % q4(R_WS))
        a("buffer_load_dword v32, v194, %s, s79 offen sc1" % q4(R_WS))
        a("buffer_load_dword v33, v194, %s, s80 offen sc1" % q4(R_WS))
        a("s_waitcnt vmcnt(0)")
        self.unpack(48, 32, 2, MASK)
        a("v_pk_add_f32 v[48:49], v[48:49], v[50:51]")
        self.allreduce("v_add_f32", [48, 49], [50, 51], rors=())
        self.unpack(50, 40, 3, MASK)
        a("v_pk_fma_f32 v[48:49], v[48:49], v[50:51], v[54:55]")
        a("v_pk_add_f32 v[50:51], v[48:49], v[52:53]")
        a("v_cmp_u_f32 vcc, v50, v51")
        a("s_cbranch_vccz L_d_nox")
        self.spin_tail("L_d_x_retry", "s77")
        a("L_d_nox:")
        a("s_waitcnt vmcnt(0)")
        for e in range(7):
            for rd in range(2):
                a("ds_read_b64_tr_b16 %s, v28 offset:%d" % (vr(96 + 4 * e + 2 * rd, 2), e * 1024 + rd * 512))
        a("s_mov_b32 s77, 0")
        a("s_barrier")
        self.stamp(9)
        a("L_d_retry:")
        for u in range(4):
            a("buffer_load_dwordx4 %s, v29, %s, %s offen offset:%d sc1" % (vr(64 + 4 * u), q4(R_WS), "s58" if u < 2 else "s59", (u & 1) * 2048))
        a("s_waitcnt lgkmcnt(0)")
        for e in range(7):
            if e & 1 == 0:
                a("s_waitcnt vmcnt(%d)" % (3 - (e >> 1)))
            acc = 32 + 4 * (e & 1)
            a("v_mfma_f32_16x16x32_bf16 %s, %s, %s, %s" % (vr(acc), vr(96 + 4 * e), vr(64 + 4 * (e >> 1)), "0" if e < 2 else vr(acc)))
        for r in range(4):
            a("v_add_f32_dpp v%d, v%d, v%d row_shl:8 row_mask:0xf bank_mask:0xf" % (44 + r, 36 + r, 32 + r))
        a("v_cmp_u_f32 vcc, v44, v44")
        a("s_and_b32 vcc_lo, vcc_lo, 0x000f000f")
        a("s_and_b32 vcc_hi, vcc_hi, 0x00f000f0")
        a("s_or_b32 s79, vcc_lo, vcc_hi")
        a("s_cbranch_scc0 L_d_ok")
        self.spin_tail("L_d_retry", "s77")
        a("L_d_ok:")
        a("s_mov_b32 exec_lo, 0x000f000f")
        a("s_mov_b32 exec_hi, 0x00f000f0")
        a("ds_write_b128 v30, %s" % vr(44))
        a("s_mov_b64 exec, -1")
        a("s_waitcnt lgkmcnt(0)")
        a("s_barrier")
        self.stamp(10)
        a("s_cmp_lg_u32 %s, 0" % S_W)
        a("s_cbranch_scc1 L_d_epoch")
        for p in range(8):
            a("ds_read_b64 %s, v31 offset:%d" % (vr(64 + 2 * p, 2), p * 128))
        for j in range(4):
            a("s_waitcnt lgkmcnt(%d)" % (6 - 2 * j))
            a("v_pk_add_f32 v[%d:%d], v[%d:%d], v[%d:%d]" % (64 + 4 * j, 65 + 4 * j, 64 + 4 * j, 65 + 4 * j, 66 + 4 * j, 67 + 4 * j))
        a("v_pk_add_f32 v[64:65], v[64:65], v[68:69]")
        a("v_pk_add_f32 v[72:73], v[72:73], v[76:77]")
        a("v_pk_add_f32 v[64:65], v[64:65], v[72:73]")
        a("v_pk_fma_f32 v[64:65], v[64:65], v[52:53], v[48:49]")
        a("v_cvt_pk_bf16_f32 v64, v64, v65")
        a("s_mov_b64 exec, 0xffff")
        a("buffer_store_dword v64, v192, %s, s76 offen" % q4(R_OUT))
        a("s_mov_b64 exec, -1")
        self.stamp(11)
        a("L_done:")
        self.finish()
        a("L_d_epoch:")
        a("s_lshl_b32 s77, s2, 2")
        a("s_add_u32 s77, s77, %s" % S_W)
        a("s_cmp_lg_u32 s77, 1")
        a("s_cbranch_scc1 L_done")
        a("s_mov_b32 s77, %d" % WS_E)
        a("s_mov_b64 exec, 1")
        a("buffer_store_dword v61, v8, %s, s77 offen sc1" % q4(R_WS))
        a("s_mov_b64 exec, -1")
        a("s_branch L_done")

    def role_g(self):
        a = self.a
        MASK = "s83"
        a("L_role_gm:")
        a("s_cmp_eq_u32 s96, 2")
        a("s_cbranch_scc1 L_role_m")
        if self.helpm:
            self.mksrd(R_V, P_WMOD, KSIZE['wmod'])
            a("buffer_load_dword v29, v28, %s, s58 offen offset:2048 %s" % (q4(R_V), self.ntw))
            a("s_barrier")
        a("s_cmp_eq_u32 %s, %d" % (S_G, self.mg_h))
        a("s_cbranch_scc1 L_done")
        a("s_mov_b32 m0, s80")
        self.t_loads(R_TA, 10)
        a("s_add_u32 m0, s80, 32768")
        a("s_xor_b32 s80, s80, 16384")
        a("s_barrier")
        self.t_loads(R_TB, 11)
        a("s_barrier")
        a("s_mov_b32 m0, s80")
        a("s_add_u32 s79, s79, s75")
        self.t_loads(R_TA, 10)
        a("s_add_u32 m0, s80, 32768")
        a("s_lshl_b32 s76, %s, 10" % S_W)
        self.t_loads(R_TB, 11)
        a("buffer_load_dwordx2 %s, v27, %s, s76 offen" % (vr(32, 2), q4(R_X)))
        a("buffer_load_dwordx2 %s, v27, %s, s76 offen offset:512" % (vr(34, 2), q4(R_X)))
        self.gr_wait("g")
        a("s_mov_b32 s79, 0")
        a("s_barrier")
        self.stamp(7)

        def mloads():
            for k, so in enumerate(("s65", "s66", "s67")):
                a("buffer_load_dwordx2 %s, v25, %s, %s offen sc1" % (vr(36 + 4 * k, 2), q4(R_WS), so))
                a("buffer_load_dwordx2 %s, v25, %s, %s offen offset:2048 sc1" % (vr(38 + 4 * k, 2), q4(R_WS), so))

        def loads():
            for e in range(8):
                gp, ac = e >> 1, e & 1
                a("buffer_load_dwordx4 %s, v21, %s, s%d offen offset:%d sc1" % (vr(64 + 4 * e), q4(R_WS), 68 + gp, ac * 2048))

        def mcheck():
            a("v_max3_u32 v1, v36, v37, v38")
            for j in range(39, 47, 2):
                a("v_max3_u32 v1, v1, v%d, v%d" % (j, j + 1))
            a("v_max_u32 v1, v1, v47")
            a("v_cmp_eq_u32 vcc, -1, v1")
        mloads()
        loads()
        for t in range(16):
            for rd in range(2):
                a("ds_read_b64_tr_b16 %s, v24 offset:%d" % (vr(128 + 4 * t + 2 * rd, 2), (2 * t + rd) * 1024))
            if t % 4 == 3:
                a("s_waitcnt lgkmcnt(4)")
        a("s_branch L_g_m_in")
        a("L_g_m_retry:")
        a("s_waitcnt vmcnt(0)")
        mloads()
        loads()
        a("L_g_m_in:")
        a("s_waitcnt vmcnt(8)")
        mcheck()
        a("s_cbranch_vccz L_g_m_ok")
        self.spin_tail("L_g_m_retry", "s79")
        a("L_g_m_ok:")
        self.stamp(11)
        a("s_mov_b32 s79, 0")
        self.unpack(192, 32, 16, MASK)
        for j in range(0, 8, 2):
            a("v_pk_add_f32 v[%d:%d], v[%d:%d], 1.0 op_sel_hi:[1,0]" % (216 + j, 217 + j, 216 + j, 217 + j))
        a("s_branch L_g_in")
        a("L_g_retry:")
        loads()
        a("L_g_in:")
        for e in range(8):
            a("s_waitcnt vmcnt(%d)" % (7 - e))
            acc = 32 + 4 * (e & 1)
            a("v_mfma_f32_16x16x32_bf16 %s, %s, %s, %s" % (vr(acc), vr(224), vr(64 + 4 * e), "0" if e < 2 else vr(acc)))
        a("v_cmp_u_f32 vcc, v32, v36")
        a("s_cbranch_vccz L_g_ok")
        self.spin_tail("L_g_retry", "s79")
        a("L_g_ok:")
        self.stamp(8)
        for j in range(0, 8, 2):
            a("v_pk_fma_f32 v[%d:%d], v[%d:%d], v[%d:%d], v[%d:%d]" % (32 + j, 33 + j, 32 + j, 33 + j, 200 + j, 201 + j, 192 + j, 193 + j))
        a("v_readfirstlane_b32 s78, v32")
        for j in range(8):
            a("v_subrev_f32 v%d, s78, v%d" % (32 + j, 32 + j))
        a("v_pk_add_f32 v[40:41], v[32:33], v[34:35]")
        a("v_pk_mul_f32 v[42:43], v[32:33], v[32:33]")
        a("v_pk_add_f32 v[48:49], v[36:37], v[38:39]")
        a("v_pk_fma_f32 v[42:43], v[34:35], v[34:35], v[42:43]")
        a("v_pk_add_f32 v[40:41], v[40:41], v[48:49]")
        a("v_pk_fma_f32 v[42:43], v[36:37], v[36:37], v[42:43]")
        a("v_add_f32 v40, v40, v41")
        a("v_pk_fma_f32 v[42:43], v[38:39], v[38:39], v[42:43]")
        a("v_add_f32 v41, v42, v43")
        self.allreduce("v_add_f32", [40, 41], [42, 43])
        a("v_mul_f32 v40, 0x3b000000, v40")
        a("v_mul_f32 v41, 0x3b000000, v41")
        a("v_fma_f32 v41, -v40, v40, v41")
        a("v_max_f32 v41, 0, v41")
        a("v_add_f32 v41, 0x%x, v41" % EPS)
        a("v_rsq_f32 v42, v41")
        a("v_mul_f32 v40, -v40, v42")
        for j in range(0, 8, 2):
            a("v_pk_fma_f32 v[%d:%d], v[%d:%d], v[42:43], v[40:41] op_sel_hi:[1,0,0]" % (32 + j, 33 + j, 32 + j, 33 + j))
        for j in range(0, 8, 2):
            a("v_pk_fma_f32 v[%d:%d], v[%d:%d], v[%d:%d], v[%d:%d]" % (32 + j, 33 + j, 32 + j, 33 + j, 216 + j, 217 + j, 208 + j, 209 + j))
        self.pack(40, 32, 4)
        a("ds_write_b64 v22, v[40:41]")
        a("ds_write_b64 v22, v[42:43] offset:2048")
        a("s_waitcnt lgkmcnt(0)")
        a("s_barrier")
        self.stamp(9)
        for t in range(12):
            a("ds_read_b128 %s, v23 offset:%d" % (vr(64 + 4 * t), t * 256))
        for t in range(16):
            if t < 4:
                a("s_waitcnt lgkmcnt(11)")
                a("ds_read_b128 %s, v23 offset:%d" % (vr(64 + 4 * (12 + t)), (12 + t) * 256))
            else:
                a("s_waitcnt lgkmcnt(%d)" % (15 - t))
            a("v_mfma_f32_16x16x32_bf16 %s, %s, %s, %s" % (vr(32), vr(128 + 4 * t), vr(64 + 4 * t), "0" if t == 0 else vr(32)))
        a("v_permlane32_swap_b32 v32, v34")
        a("v_permlane32_swap_b32 v33, v35")
        a("v_mul_f32 v32, 0x%x, v32" % NLOG2E)
        a("v_mul_f32 v33, 0x%x, v33" % NLOG2E)
        a("v_exp_f32 v32, v32")
        a("v_exp_f32 v33, v33")
        a("v_add_f32 v32, 1.0, v32")
        a("v_add_f32 v33, 1.0, v33")
        a("v_rcp_f32 v32, v32")
        a("v_rcp_f32 v33, v33")
        a("v_mul_f32 v32, v32, v34")
        a("v_mul_f32 v33, v33, v35")
        a("s_mov_b32 exec_lo, 0x000f000f")
        a("s_mov_b32 exec_hi, 0x000f000f")
        a("v_cvt_pk_bf16_f32 v32, v32, v33")
        a("buffer_store_dword v32, v26, %s, s56 offen sc1" % q4(R_WS))
        a("s_mov_b64 exec, -1")
        self.stamp(10)
        self.finish()

    def role_m(self):
        a = self.a
        a("L_role_m:")
        if self.helpm:
            for k, so in enumerate(("s66", "s67")):
                a("s_xor_b32 m0, s58, %d" % (k * 0x800))
                a("s_add_u32 s77, %s, s74" % so)
                a("buffer_load_dwordx4 v10, %s, %s offen %s lds" % (q4(R_TA), so, self.ntw))
                a("buffer_load_dwordx4 v10, %s, s77 offen offset:1024 %s lds" % (q4(R_TA), self.ntw))
                if k == 0:
                    a("s_barrier")
            a("s_mov_b32 m0, s80")
            self.t_loads(R_TA, 10)
        else:
            a("s_mov_b32 m0, s80")
            self.t_loads(R_TA, 10)
            a("s_add_u32 s79, s79, s75")
            a("s_xor_b32 m0, s80, 0x1000")
            a("s_barrier")
            self.t_loads(R_TA, 10)
        if self.helpg:
            a("s_barrier")
            a("buffer_load_dword v1, v27, %s, s65 offen %s" % (q4(R_TB), self.ntw))
        for kk in range(4):
            a("ds_read2_b64 %s, v21 offset0:%d offset1:%d" % (vr(64 + 4 * kk), 8 * kk, 8 * kk + 4))
        a("s_waitcnt vmcnt(%d) lgkmcnt(0)" % (1 if self.helpg else 0))
        self.wm_tr_reads()
        a("s_waitcnt lgkmcnt(0)")
        for kk in range(4):
            for tau in range(2):
                acc = 32 + 4 * tau
                a("v_mfma_f32_16x16x32_bf16 %s, %s, %s, %s" % (vr(acc), vr(64 + 4 * kk), vr(96 + 16 * tau + 4 * kk), "0" if kk == 0 else vr(acc)))
        self.wm_publish(32, 36, "L_done")
        self.stamp(8)
        self.finish()

    def silu8(self, src, dst):
        a = self.a
        self.unpack(40, src, 4, "s83")
        for j in range(8):
            a("v_mul_f32 v%d, 0x%x, v%d" % (48 + j, NLOG2E, 40 + j))
        for j in range(8):
            a("v_exp_f32 v%d, v%d" % (48 + j, 48 + j))
        for j in range(8):
            a("v_add_f32 v%d, 1.0, v%d" % (48 + j, 48 + j))
        for j in range(8):
            a("v_rcp_f32 v%d, v%d" % (48 + j, 48 + j))
        for j in range(8):
            a("v_mul_f32 v%d, v%d, v%d" % (48 + j, 48 + j, 40 + j))
        self.pack(dst, 48, 4)

    def wq_loads(self, win):
        a = self.a
        a("s_mov_b32 s74, %d" % (65536 - 1024))
        for kk in range(4):
            a("s_add_u32 m0, s80, %d" % (kk * 4096))
            for e in range(4):
                a("buffer_load_dwordx4 v9, %s, s81 offen offset:%d %s lds" % (q4(R_TB), e * 1024, self.nt))
                if e < 3:
                    a("s_add_u32 s81, s81, s74")
                elif kk < 3:
                    a("s_add_u32 s81, s81, %d" % (65536 + 3072))
                if win and 4 * kk + e >= win - 1:
                    a("s_waitcnt vmcnt(%d)" % (win - 1))

    def mload(self):
        a = self.a
        MASK = "s83"
        a("L_qcu:")
        if self.stamps:
            a("s_mov_b32 s%d, s100" % STAMP0)
            for k in range(1, 12):
                a("s_mov_b32 s%d, 0" % (STAMP0 + k))
        self.mksrd(R_WS, P_WS, KSIZE['ws'])
        a("s_mov_b32 s77, %d" % WS_E)
        a("v_mov_b32 v14, 0")
        a("buffer_load_dword v15, v14, %s, s77 offen sc1" % q4(R_WS))
        a("s_mov_b32 s83, 0xffff0000")
        a("v_add_u32 v13, s82, v8")
        a("v_add_u32 v13, %d, v13" % L_SC)
        a("v_and_b32 v1, 7, v0")
        a("v_lshlrev_b32 v9, 1, v3")
        a("v_xor_b32 v1, v1, v9")
        a("v_lshrrev_b32 v9, 3, v0")
        a("v_lshlrev_b32 v9, 13, v9")
        a("v_lshl_add_u32 v9, v1, 4, v9")
        a("s_add_u32 s81, s82, %s" % S_G)
        a("s_lshl3_add_u32 s81, s81, %s" % S_S)
        a("s_lshl_b32 s81, s81, 7")
        a("s_cmp_lt_u32 %s, 4" % S_S)
        a("s_cbranch_scc1 L_mload")
        a("s_lshl_b32 s80, %s, 14" % S_W)
        a("s_add_u32 s80, s80, %d" % L_WQ)
        self.silu8(24, 24)
        a("ds_write_b128 v13, %s" % vr(24))
        a("s_branch L_qload")
        a("L_mload:")
        self.mksrd(R_X, P_X, KSIZE['x'])
        a("buffer_load_dwordx4 %s, v8, %s, s82 offen" % (vr(28), q4(R_X)))
        a("v_and_b32 v12, 1, v3")
        a("v_lshlrev_b32 v1, 1, v12")
        a("v_xor_b32 v1, v1, v4")
        a("v_lshrrev_b32 v11, 2, v0")
        a("v_mul_u32_u24 v10, 6144, v11")
        a("v_lshl_add_u32 v10, v1, 4, v10")
        a("s_lshl_b32 s80, %s, 13" % S_W)
        a("s_add_u32 m0, s80, %d" % L_M)
        a("s_and_b32 s78, %s, 2" % S_I)
        a("s_lshl2_add_u32 s78, s78, %s" % S_G)
        a("s_and_b32 s77, %s, 1" % S_I)
        a("s_lshl1_add_u32 s78, s78, s77")
        a("s_lshl_b32 s78, s78, 6")
        a("s_mul_i32 s79, %s, %d" % (S_W, 128 * 6144))
        a("s_add_u32 s79, s79, s78")
        a("s_mov_b32 s74, %d" % (16 * 6144 - 1024))
        self.t_loads(R_TA, 10)
        a("s_add_u32 m0, s80, %d" % (L_M + 4096))
        a("s_add_u32 s79, s79, %d" % (64 * 6144))
        a("s_waitcnt vmcnt(7)")
        self.silu8(24, 24)
        a("ds_write_b128 v13, %s" % vr(24))
        self.t_loads(R_TA, 10)
        a("s_waitcnt vmcnt(8)")
        self.unpack(40, 28, 4, MASK)
        a("v_pk_add_f32 v[48:49], v[40:41], v[42:43]")
        a("v_pk_add_f32 v[50:51], v[44:45], v[46:47]")
        a("v_pk_add_f32 v[48:49], v[48:49], v[50:51]")
        a("v_add_f32 v48, v48, v49")
        self.allreduce("v_add_f32", [48], [49])
        a("v_mul_f32 v48, 0x3b000000, v48")
        for j in range(8):
            a("v_sub_f32 v%d, v%d, v48" % (52 + j, 40 + j))
        a("v_mul_f32 v49, v52, v52")
        for j in range(1, 8):
            a("v_fmac_f32 v49, v%d, v%d" % (52 + j, 52 + j))
        self.allreduce("v_add_f32", [49], [50])
        a("v_mul_f32 v49, 0x3b000000, v49")
        self.rnd(48, 1, 50, MASK)
        a("v_add_f32 v49, 0x%x, v49" % EPS)
        self.rnd(48, 1, 50, MASK)
        a("v_sqrt_f32 v49, v49")
        self.rnd(48, 1, 50, MASK)
        a("v_rcp_f32 v49, v49")
        for j in range(8):
            a("v_sub_f32 v%d, v%d, v48" % (40 + j, 40 + j))
        self.rnd(40, 4, 52, MASK)
        for j in range(8):
            a("v_mul_f32 v%d, v%d, v49" % (40 + j, 40 + j))
        self.pack(28, 40, 4)
        a("ds_write_b128 v13, %s offset:%d" % (vr(28), L_N - L_SC))
        a("v_lshrrev_b32 v1, 2, v7")
        a("v_lshlrev_b32 v21, 10, v1")
        a("v_lshl_add_u32 v21, v3, 3, v21")
        a("s_lshl_b32 s77, %s, 8" % S_W)
        a("s_add_u32 s77, s77, %d" % L_SC)
        a("v_add_u32 v21, s77, v21")
        a("v_lshlrev_b32 v22, 6, v11")
        a("v_lshl_add_u32 v22, v12, 5, v22")
        a("v_lshl_add_u32 v22, v4, 3, v22")
        a("s_lshl_b32 s77, %s, 13" % S_W)
        a("s_add_u32 s77, s77, %d" % L_M)
        a("v_add_u32 v22, s77, v22")
        a("v_xor_b32 v23, 32, v22")
        a("v_lshlrev_b32 v20, 2, v7")
        a("v_lshl_add_u32 v20, v3, 7, v20")
        a("s_lshl_b32 s77, %s, 9" % S_W)
        a("s_add_u32 s77, s77, %d" % L_RED)
        a("v_add_u32 v20, s77, v20")
        a("s_waitcnt lgkmcnt(0)")
        a("s_barrier")
        for kk in range(4):
            a("ds_read2_b64 %s, v21 offset0:%d offset1:%d" % (vr(40 + 4 * kk), 8 * kk, 8 * kk + 4))
        a("s_waitcnt vmcnt(0) lgkmcnt(0)")
        self.stamp(7)
        self.wm_tr_reads(128)
        for tau in range(2):
            a("s_waitcnt lgkmcnt(%d)" % (8 - 8 * tau))
            for kk in range(4):
                acc = 32 + 4 * tau
                a("v_mfma_f32_16x16x32_bf16 %s, %s, %s, %s" % (vr(acc), vr(40 + 4 * kk), vr(128 + 16 * tau + 4 * kk), "0" if kk == 0 else vr(acc)))
        a("ds_write_b32 v20, v32")
        a("ds_write_b32 v20, v36 offset:64")
        a("s_waitcnt lgkmcnt(0)")
        a("s_barrier")
        a("s_lshl_b32 s80, %s, 14" % S_W)
        a("s_add_u32 s80, s80, %d" % L_WQ)
        a("s_barrier")
        a("L_qload:")
        self.wq_loads(0)
        a("v_lshrrev_b32 v1, 2, v7")
        a("v_lshlrev_b32 v16, 9, v1")
        a("v_lshl_add_u32 v16, v3, 6, v16")
        a("v_lshl_add_u32 v16, v4, 4, v16")
        a("s_lshl_b32 s56, %s, 11" % S_W)
        a("s_add_u32 s56, s56, %d" % WS_H)
        a("s_add_u32 s57, s56, 8192")

        def h_loads():
            for e in range(4):
                a("buffer_load_dwordx4 %s, v16, %s, %s offen offset:%d sc1" % (vr(40 + 4 * e), q4(R_WS), "s56" if e < 2 else "s57", (e & 1) * 256))
        h_loads()
        a("v_lshl_add_u32 v18, v4, 2, v1")
        a("v_lshl_add_u32 v18, v18, 2, v3")
        a("v_lshlrev_b32 v18, 4, v18")
        a("s_add_u32 s77, s82, %d" % L_N)
        a("v_add_u32 v18, s77, v18")
        a("v_lshrrev_b32 v36, 2, v0")
        a("v_lshlrev_b32 v36, 7, v36")
        a("v_bfe_u32 v1, v0, 3, 2")
        a("v_lshl_add_u32 v36, v1, 5, v36")
        a("v_lshl_add_u32 v36, v4, 3, v36")
        a("v_add_u32 v36, s80, v36")
        for tau in range(1, 4):
            a("v_xor_b32 v%d, %d, v36" % (36 + tau, 32 * tau))
        self.k_setup()
        a("s_mov_b32 s79, 0")
        a("s_waitcnt vmcnt(4)")
        a("v_readfirstlane_b32 s73, v15")
        a("s_mul_i32 s73, s73, %d" % LCG_A)
        a("s_add_u32 s73, s73, %d" % LCG_C)
        self.stamp(8)
        for tau in range(4):
            for kk in range(4):
                for rd in range(2):
                    a("ds_read_b64_tr_b16 %s, v%d offset:%d" % (vr(128 + 16 * tau + 4 * kk + 2 * rd, 2), 36 + tau, kk * 4096 + rd * 2048))
            a("s_waitcnt lgkmcnt(4)")
        a("s_branch L_h_in")
        a("L_h_retry:")
        h_loads()
        a("L_h_in:")
        a("s_waitcnt vmcnt(0) lgkmcnt(0)")
        a("v_min3_u32 v1, v41, v43, v45")
        a("v_max3_u32 v6, v41, v43, v45")
        a("v_min3_u32 v1, v1, v47, v49")
        a("v_max3_u32 v6, v6, v47, v49")
        a("v_min3_u32 v1, v1, v51, v53")
        a("v_max3_u32 v6, v6, v51, v53")
        a("v_min3_u32 v1, v1, v55, s73")
        a("v_max3_u32 v6, v6, v55, s73")
        a("v_cmp_ne_u32 vcc, v1, v6")
        a("s_cbranch_vccz L_h_ok")
        self.spin_tail("L_h_retry", "s79")
        a("L_h_ok:")
        self.stamp(9)
        for e in range(self.kearly):
            self.k_load(e)
        for j in range(8):
            a("v_and_b32 v%d, %s, v%d" % (41 + 2 * j, MASK, 40 + 2 * j))
            a("v_lshlrev_b32 v%d, 16, v%d" % (40 + 2 * j, 40 + 2 * j))
        for j in range(0, 8, 2):
            a("v_pk_add_f32 v[%d:%d], v[%d:%d], v[%d:%d]" % (40 + j, 41 + j, 40 + j, 41 + j, 48 + j, 49 + j))
        self.pack(48, 40, 4)
        for rho in range(4):
            if rho:
                for r in range(4):
                    a("v_mov_b32_dpp v%d, v%d row_ror:%d row_mask:0xf bank_mask:0xf" % (48 + 4 * rho + r, 48 + r, 4 * rho))
        for rho in range(4):
            for tau in range(4):
                kk = (tau - rho) & 3
                a("v_mfma_f32_16x16x32_bf16 %s, %s, %s, %s" % (vr(192 + 4 * tau), vr(128 + 16 * tau + 4 * kk), vr(48 + 4 * rho), "0" if rho == 0 else vr(192 + 4 * tau)))
        for tau in range(4):
            a("s_mov_b32 exec_lo, 0x%x" % (0x000f000f << (4 * tau)))
            a("s_mov_b32 exec_hi, 0x%x" % (0x000f000f << (4 * tau)))
            a("ds_write_b128 v18, %s" % vr(192 + 4 * tau))
        a("s_mov_b64 exec, -1")
        a("s_waitcnt lgkmcnt(0)")
        a("s_barrier")
        self.stamp(10)
        a("s_barrier")
        a("s_branch L_stream")

    def front_wave(self):
        a = self.a
        MASK = "s83"
        a("L_front:")
        a("s_setprio 3")
        a("s_mov_b32 s83, 0xffff0000")
        for j in range(4):
            a("v_mov_b32 v%d, -1" % (32 + j))
        a("v_mov_b32 v13, 0")
        a("s_mov_b32 s80, %d" % WS_E)
        a("s_lshl_b32 s62, %s, 16" % S_G)
        a("s_lshl_b32 s77, %s, 10" % S_I)
        a("s_add_u32 s82, s62, s77")
        a("s_add_u32 s82, s82, %d" % WS_A)
        a("s_add_u32 s78, s62, %d" % (WS_A + 24 * 1024))
        a("s_lshl_b32 s56, %s, 12" % S_G)
        a("s_add_u32 s57, s56, %d" % ((WS_B - 13 * 1024) & 0xffffffff))
        a("s_cmp_ge_u32 %s, 13" % S_I)
        a("s_cselect_b32 s78, s57, s78")
        a("s_add_u32 s57, s56, %d" % (WS_C - 17 * 1024))
        a("s_cmp_ge_u32 %s, 17" % S_I)
        a("s_cselect_b32 s78, s57, s78")
        a("s_lshl_b32 s56, %s, 11" % S_G)
        a("s_add_u32 s57, s56, %d" % (WS_M2 - 21 * 1024))
        a("s_cmp_ge_u32 %s, 21" % S_I)
        a("s_cselect_b32 s78, s57, s78")
        a("s_cmp_ge_u32 %s, 23" % S_I)
        a("s_cselect_b32 s78, 0x40000000, s78")
        a("s_add_u32 s78, s78, s77")
        a("s_mov_b32 s%d, %d" % (R_WS + 2, KSIZE['ws']))
        a("s_mov_b32 s%d, 0x00020000" % (R_WS + 3))
        a("s_waitcnt lgkmcnt(0)")
        a("s_mov_b64 s[%d:%d], s[%d:%d]" % (R_WS, R_WS + 1, P_WS, P_WS + 1))
        a("buffer_load_dword v15, v13, %s, s80 offen sc1" % q4(R_WS))
        a("s_cmp_lg_u32 s96, 0")
        a("s_cbranch_scc1 L_f_noclr")
        a("buffer_store_dwordx4 %s, v8, %s, s82 offen sc1" % (vr(32), q4(R_WS)))
        a("buffer_store_dwordx4 %s, v8, %s, s78 offen sc1" % (vr(32), q4(R_WS)))
        a("L_f_noclr:")
        if self.stamps:
            a("s_mov_b32 s%d, s100" % STAMP0)
            for k in range(1, 12):
                a("s_mov_b32 s%d, 0" % (STAMP0 + k))
        a("s_getreg_b32 s72, hwreg(HW_REG_XCC_ID, 0, 4)")
        if self.force_remote:
            a("s_and_b32 s72, %s, 15" % S_I)
        a("s_lshl_b32 s60, %s, 8" % S_G)
        a("s_add_u32 s60, s60, %d" % WS_IDC)
        a("s_lshl2_add_u32 s77, %s, s60" % S_I)
        a("s_lshl_b32 s59, %s, 12" % S_G)
        a("s_add_u32 s59, s59, %d" % WS_IDR)
        a("s_lshl_b32 s76, %s, 7" % S_I)
        a("s_add_u32 s76, s76, s59")
        a("v_and_b32 v19, 31, v0")
        a("v_lshlrev_b32 v20, 7, v19")
        a("v_lshlrev_b32 v19, 2, v19")
        a("v_add_u32 v17, %d, v8" % L_Q)
        a("s_add_u32 s62, s62, %d" % WS_Q)
        a("s_waitcnt vmcnt(0)")
        a("v_readfirstlane_b32 s73, v15")
        a("s_mul_i32 s73, s73, %d" % LCG_A)
        a("s_add_u32 s73, s73, %d" % LCG_C)
        a("s_xor_b32 s72, s72, s73")
        a("v_mov_b32 v22, s72")
        a("v_mov_b32 v25, s73")
        a("s_mov_b64 exec, 1")
        a("buffer_store_dword v22, v13, %s, s77 offen" % q4(R_WS))
        a("buffer_store_dword v22, v13, %s, s76 offen sc1" % q4(R_WS))
        a("s_mov_b64 exec, -1")
        self.stamp(4)
        a("s_cmp_lg_u32 s96, 0")
        a("s_cbranch_scc1 L_f_qcu")
        if self.warm:
            a("s_mov_b32 exec_lo, 0x01010101")
            a("s_mov_b32 exec_hi, 0x01010101")
            a("buffer_load_dword v14, v8, %s, s82 offen sc1" % q4(R_WS))
            a("s_cmp_lt_u32 %s, 13" % S_I)
            a("s_cselect_b32 s78, s78, 0x40000000")
            a("buffer_load_dword v14, v8, %s, s78 offen sc1" % q4(R_WS))
            a("s_mov_b64 exec, -1")
        a("L_f_ids:")
        a("s_mov_b32 s79, 0")
        a("s_mov_b32 s58, 1")
        a("L_id_again:")
        a("buffer_load_dword v23, v19, %s, s60 offen sc1" % q4(R_WS))
        a("s_waitcnt vmcnt(0)")
        a("v_cmp_ne_u32 vcc, s72, v23")
        a("s_cbranch_vccnz L_id_slow")
        a("L_id_ok:")
        self.stamp(5)
        self.count(8, "s79")
        a("s_cmp_lg_u32 s96, 0")
        a("s_cbranch_scc1 L_f_qpub")
        a("s_cmp_lg_u32 %s, 0" % S_I)
        a("s_cbranch_scc1 L_f_nogr")
        a("s_lshl_b32 s77, %s, 7" % S_G)
        a("s_add_u32 s77, s77, %d" % WS_GR)
        a("s_mov_b64 exec, 1")
        a("buffer_store_dword v25, v13, %s, s77 offen sc1" % q4(R_WS))
        a("s_mov_b64 exec, -1")
        a("L_f_nogr:")
        if self.qsleep:
            a("s_sleep %d" % self.qsleep)
        a("L_f_gather:")
        a("s_lshl_b32 s77, %s, 10" % S_B)
        a("s_add_u32 s62, s62, s77")
        a("s_mov_b32 s79, 0")

        def q_load():
            a("buffer_load_dwordx4 %s, v8, %s, s62 offen sc1" % (vr(28), q4(R_WS)))
        for _ in range(self.qdeep - 1):
            q_load()
            a("s_sleep %d" % (2 * self.half // self.qdeep))
        a("L_q_retry:")
        q_load()
        a("s_waitcnt vmcnt(%d)" % (self.qdeep - 1))
        a("v_max3_u32 v1, v28, v29, v30")
        a("v_max_u32 v1, v1, v31")
        a("v_cmp_eq_u32 vcc, -1, v1")
        a("s_cbranch_vccz L_q_ok")
        self.spin_tail("L_q_retry", "s79")
        a("L_q_ok:")
        self.count(9, "s79")
        a("ds_write_b128 v17, %s" % vr(28))
        a("v_mov_b32 v24, s58")
        a("v_mov_b32 v1, %d" % L_LOC)
        a("ds_write_b64 v1, v[24:25]")
        a("s_waitcnt %slgkmcnt(0)" % ("" if not self.exp else "vmcnt(0) "))
        self.stamp(6)
        a("s_barrier")
        self.finish()
        a("L_id_slow:")
        a("s_sleep 4")
        a("s_add_u32 s79, s79, 1")
        a("s_cmp_lt_u32 s79, %d" % self.idmax)
        a("s_cbranch_scc1 L_id_again")
        a("L_id_retry:")
        a("buffer_load_dword v23, v20, %s, s59 offen sc1" % q4(R_WS))
        a("s_waitcnt vmcnt(0)")
        a("v_xor_b32 v1, s73, v23")
        a("v_cmp_lt_u32 vcc, 15, v1")
        a("s_cbranch_vccz L_id_all")
        self.spin_tail("L_id_retry", "s79")
        a("L_id_all:")
        a("v_cmp_ne_u32 vcc, s72, v23")
        a("s_cbranch_vccz L_id_ok")
        a("s_mov_b32 s58, 0")
        a("s_branch L_id_ok")
        a("L_f_qpub:")
        a("v_add_u32 v16, %d, v8" % L_N)
        a("v_lshlrev_b32 v18, 3, v7")
        a("v_lshl_add_u32 v18, v3, 10, v18")
        a("s_lshl_b32 s77, %s, 7" % S_S)
        a("s_add_u32 s77, s77, s62")
        a("s_cmp_eq_u32 s58, 0")
        a("s_barrier")
        for w in range(4):
            a("ds_read_b128 %s, v16 offset:%d" % (vr(64 + 4 * w), w * 1024))
        a("s_waitcnt lgkmcnt(2)")
        a("v_pk_add_f32 v[64:65], v[64:65], v[68:69]")
        a("v_pk_add_f32 v[66:67], v[66:67], v[70:71]")
        a("s_waitcnt lgkmcnt(0)")
        a("v_pk_add_f32 v[72:73], v[72:73], v[76:77]")
        a("v_pk_add_f32 v[74:75], v[74:75], v[78:79]")
        a("v_pk_add_f32 v[64:65], v[64:65], v[72:73]")
        a("v_pk_add_f32 v[66:67], v[66:67], v[74:75]")
        self.pack(26, 64, 2)
        a("s_cbranch_scc1 L_qp_remote")
        a("buffer_store_dwordx2 v[26:27], v18, %s, s77 offen" % q4(R_WS))
        a("L_qp_done:")
        a("s_barrier")
        self.stamp(3)
        a("s_branch L_f_gather")
        a("L_qp_remote:")
        a("buffer_store_dwordx2 v[26:27], v18, %s, s77 offen sc1" % q4(R_WS))
        a("s_branch L_qp_done")
        a("L_f_qcu:")
        a("s_cmp_ge_u32 %s, 4" % S_S)
        a("s_cbranch_scc1 L_f_ids")
        a("v_lshrrev_b32 v1, 3, v0")
        a("v_and_b32 v18, 1, v0")
        a("v_lshl_add_u32 v1, v1, 1, v18")
        a("v_bfe_u32 v21, v0, 1, 2")
        a("v_lshlrev_b32 v16, 3, v1")
        a("v_lshl_add_u32 v16, v21, 7, v16")
        a("v_add_u32 v16, %d, v16" % L_RED)
        a("v_lshlrev_b32 v18, 2, v1")
        a("v_lshl_add_u32 v18, v21, 10, v18")
        a("s_and_b32 s61, %s, 1" % S_I)
        a("s_lshl1_add_u32 s61, %s, s61" % S_G)
        a("s_lshl_b32 s77, s61, 6")
        a("s_add_u32 s77, s77, %d" % L_N)
        a("v_add_u32 v18, s77, v18")
        a("v_lshlrev_b32 v21, 3, v0")
        a("s_and_b32 s77, %s, 2" % S_I)
        a("s_lshl3_add_u32 s61, s77, s61")
        a("s_lshl_b32 s61, s61, 9")
        a("s_add_u32 s61, s61, %d" % WS_H)
        a("s_barrier")
        a("ds_read_b32 v26, v18")
        a("s_waitcnt lgkmcnt(0)")
        self.unpack(48, 26, 1, MASK)
        self.stamp(1)
        a("s_cmp_lt_u32 %s, 26" % S_I)
        a("s_barrier")
        for h in range(4):
            a("ds_read_b64 %s, v16 offset:%d" % (vr(64 + 2 * h, 2), h * 512))
        a("s_waitcnt lgkmcnt(2)")
        a("v_pk_add_f32 v[64:65], v[64:65], v[66:67]")
        a("s_waitcnt lgkmcnt(0)")
        a("v_pk_add_f32 v[68:69], v[68:69], v[70:71]")
        a("v_pk_add_f32 v[64:65], v[64:65], v[68:69]")
        a("s_cbranch_scc1 L_f_h_sa")
        self.rnd(64, 1, 40, MASK)
        a("v_pk_add_f32 v[64:65], v[64:65], 1.0 op_sel_hi:[1,0]")
        self.rnd(64, 1, 40, MASK)
        a("v_pk_mul_f32 v[64:65], v[64:65], v[48:49]")
        a("L_f_h_sa:")
        a("v_cvt_pk_bf16_f32 v24, v64, v65")
        a("buffer_store_dwordx2 v[24:25], v21, %s, s61 offen sc1" % q4(R_WS))
        a("s_barrier")
        self.stamp(2)
        a("s_branch L_f_ids")

    def stamps_out(self):
        a = self.a
        a("L_stamps:")
        a("s_waitcnt vmcnt(0)")
        a("s_lshl_b32 s76, s2, 3")
        a("s_add_u32 s76, s76, %s" % S_W)
        a("s_lshl_b32 s76, s76, 6")
        a("s_add_u32 s76, s76, %d" % WS_STAMP)
        a("v_mov_b32 v1, 0")
        for k in range(12):
            a("v_writelane_b32 v1, s%d, %d" % (STAMP0 + k, k))
        a("v_lshlrev_b32 v2, 2, v0")
        a("s_mov_b64 exec, 0xffff")
        a("buffer_store_dword v1, v2, %s, s76 offen sc1" % q4(R_WS))
        if self.pop:
            a("s_mov_b64 exec, -1")
            a("s_cmp_lg_u32 s76, %d" % (WS_STAMP + 3 * 64))
            a("s_cbranch_scc1 L_exit")
            a("L_pw:")
            a("s_memrealtime s[100:101]")
            a("s_waitcnt lgkmcnt(0)")
            a("s_sub_u32 s77, s100, s%d" % STAMP0)
            a("s_cmp_lt_u32 s77, 6000")
            a("s_cbranch_scc1 L_pw")
            a("v_lshlrev_b32 v2, 9, v0")
            for j in range(4):
                a("s_mov_b32 s77, %d" % (WS_STAMP + j * 32768))
                a("buffer_load_dword v%d, v2, %s, s77 offen sc1" % (10 + j, q4(R_WS)))
                a("buffer_load_dword v%d, v2, %s, s77 offen offset:%d sc1" % (14 + j, q4(R_WS), self.pwave * 64 + self.pk * 4))
            a("s_waitcnt vmcnt(0)")
            a("s_sub_u32 s78, s%d, 2000" % STAMP0)
            for j in range(8):
                a("v_subrev_u32 v%d, s78, v%d" % (10 + j, 10 + j))
            neutral = "0" if self.pop == "max" else "-1"
            a("v_mov_b32 v20, %s" % neutral)
            for j in range(4):
                m = 0
                for l in range(64):
                    if (self.pgm >> (l & 7)) & 1 and self.ilo <= 8 * j + (l >> 3) < self.ihi:
                        m |= 1 << l
                a("s_mov_b32 exec_lo, 0x%x" % (m & 0xffffffff))
                a("s_mov_b32 exec_hi, 0x%x" % (m >> 32))
                a("v_%s_u32 v20, v20, v%d" % (self.pop, 14 + j))
            a("s_mov_b64 exec, -1")
            a("v_min3_u32 v10, v10, v11, v12")
            a("v_min_u32 v10, v10, v13")
            self.allreduce("v_min_u32", [10], [11])
            self.allreduce("v_%s_u32" % self.pop, [20], [21])
            a("v_sub_u32 v20, v20, v10")
            a("v_readfirstlane_b32 s76, v20")
            a("v_readfirstlane_b32 s79, v10")
            a("s_mul_i32 s76, s76, %d" % self.pamp)
            a("s_min_u32 s76, s76, 100000")
            a("s_add_u32 s76, s76, 10000")
            a("s_add_u32 s79, s79, s78")
            a("L_pspin:")
            a("s_memrealtime s[100:101]")
            a("s_waitcnt lgkmcnt(0)")
            a("s_sub_u32 s77, s100, s79")
            a("s_cmp_lt_u32 s77, s76")
            a("s_cbranch_scc1 L_pspin")
        a("s_endpgm")

    def build(self):
        a = self.a
        self.prologue()
        self.main_wave()
        self.front_wave()
        if self.stamps:
            self.stamps_out()
        a("L_exit:")
        a("L_last:")
        a("s_endpgm")
        lines, n = hazard.fix(a.lines)
        sys.stderr.write("hazard pass inserted %d wait states, %d lines\n" % (n, len(lines)))
        return kernel_file("\n".join(lines) + "\n", 256, 320, LDS_BYTES, 232)


if __name__ == "__main__":
    kw = {}
    out = sys.argv[1]
    for x in sys.argv[2:]:
        k, v = x.split("=")
        kw[k] = int(v) if v.lstrip("-").isdigit() else v
    open(out, "w").write(Gen(**kw).build())
```
